```python
import torch

def _softmax(x, axis=-1):
    return torch.softmax(x, dim=axis)
def _gelu(x):
    return torch.nn.functional.gelu(x, approximate="tanh")
def _silu(x):
    return torch.nn.functional.silu(x)
def _sigmoid(x):
    return torch.sigmoid(x)
def _layernorm(x, axis=-1, eps=1e-5):
    m = x.mean(dim=axis, keepdim=True)
    v = x.var(dim=axis, keepdim=True, unbiased=False)
    return (x - m) / torch.sqrt(v + eps)
def _scatter_add(tgt, idx, src, axis=0):
    return tgt.clone().index_add_(axis, idx, src)
def _segment_sum(src, seg, n):
    out = torch.zeros((n,) + src.shape[1:], dtype=src.dtype)
    return out.index_add_(0, seg, src)
def _pad(x, pw):
    flat = tuple(v for pair in reversed(pw) for v in pair)
    return torch.nn.functional.pad(x, flat)

kernel_name = 'gated_mix__ssm_conv_s4d__ssm_conv_h3__prompt'

def setup_inputs():

    _w = (lambda a: (lambda t: t.to(torch.bfloat16) if t.is_floating_point() else t)(torch.as_tensor(a)))
    def _A_setup():
        Bsz, L, D, N = 1, 2048, 512, 128
        return {
            "u": _w((lambda *s: torch.randn(*s, dtype=torch.bfloat16) * 0.05)(Bsz, L, D)),
            "log_A_real": _w((lambda *s: torch.randn(*s, dtype=torch.bfloat16) * 3.2)(D, N) * 0.5),
            "A_imag": _w((lambda *s: torch.randn(*s, dtype=torch.bfloat16) * 0.2)(D, N) * 3.14),
            "C_real": _w((lambda *s: torch.randn(*s, dtype=torch.bfloat16) * 3.2)(D, N) / N ** 0.5),
            "C_imag": _w((lambda *s: torch.randn(*s, dtype=torch.bfloat16) * 3.2)(D, N) / N ** 0.5),
            "log_dt": _w((lambda *s: torch.randn(*s, dtype=torch.bfloat16) * 0.2)(D) * 0.5 - 4.0),
            "D_skip": _w((lambda *s: torch.randn(*s, dtype=torch.bfloat16) * 0.4)(D)),
        }
    _A_in = _A_setup()

    def _B_setup():
        B, S, D = 1, 2048, 512
        ks = 4
        return {
            "q": _w((lambda *s: torch.randn(*s, dtype=torch.bfloat16) * 0.05)(B, S, D)),
            "k": _w((lambda *s: torch.randn(*s, dtype=torch.bfloat16) * 0.8)(B, S, D)),
            "v": _w((lambda *s: torch.randn(*s, dtype=torch.bfloat16) * 0.8)(B, S, D)),
            "shift_k": _w((lambda *s: torch.randn(*s, dtype=torch.bfloat16) * 0.8)(D, ks) * 0.5),
            "ssm_k": _w((lambda *s: torch.randn(*s, dtype=torch.bfloat16) * 0.8)(D, S) * (1.0 / S ** 0.5)),
            "ssm_D": _w((lambda *s: torch.randn(*s, dtype=torch.bfloat16) * 0.8)(D)),
        }
    _B_in = _B_setup()

    return {
        "A_u": _A_in["u"],
        "A_log_A_real": _A_in["log_A_real"],
        "A_A_imag": _A_in["A_imag"],
        "A_C_real": _A_in["C_real"],
        "A_C_imag": _A_in["C_imag"],
        "A_log_dt": _A_in["log_dt"],
        "A_D_skip": _A_in["D_skip"],
        "B_q": _B_in["q"],
        "B_k": _B_in["k"],
        "B_v": _B_in["v"],
        "B_shift_k": _B_in["shift_k"],
        "B_ssm_k": _B_in["ssm_k"],
        "B_ssm_D": _B_in["ssm_D"],
        "gate_w": _w((lambda *s: torch.randn(*s, dtype=torch.bfloat16) * 0.05)(512) * 16.0),
    }

def reference(A_u, A_log_A_real, A_A_imag, A_C_real, A_C_imag, A_log_dt, A_D_skip, B_q, B_k, B_v, B_shift_k, B_ssm_k, B_ssm_D, gate_w):
    def _A_ref(u, log_A_real, A_imag, C_real, C_imag, log_dt, D_skip):
        L = u.shape[1]
        dt = torch.exp(log_dt)
        A = -torch.exp(log_A_real) + 1j * A_imag
        C = (C_real + 1j * C_imag) * dt[:, None]
        pos = (lambda x, dt: x.to(dt))(torch.arange(L), log_dt.dtype)
        P = torch.exp((A * dt[:, None])[:, :, None] * pos[None, None, :])
        K = 2.0 * torch.einsum("dn,dnl->dl", C, P).real
        L2 = 2 * L
        u_t = (lambda x, *d: x.permute(*d))(u, 0, 2, 1)
        Kf = (lambda x, *a, **k: torch.fft.rfft(x.float(), *a, **k))(K, L2)
        Uf = (lambda x, *a, **k: torch.fft.rfft(x.float(), *a, **k))(u_t, L2)
        y = (lambda x, *a, **k: torch.fft.irfft(x, *a, **k).to(torch.bfloat16))(Uf * Kf[None, :, :], L2)[:, :, :L]
        y = (lambda x, *d: x.permute(*d))(y, 0, 2, 1)
        return y + u * D_skip[None, None, :]

    def _B_ref(q, k, v, shift_k, ssm_k, ssm_D):
        B, S, D = q.shape
        ks = shift_k.shape[-1]
        k_pad = _pad(k, ((0, 0), (ks - 1, 0), (0, 0)))
        k_shift = torch.zeros_like(k)
        for t in range(ks):
            k_shift = k_shift + k_pad[:, t:t + S, :] * shift_k[:, ks - 1 - t][None, None, :]
        kv = k_shift * v
        L = 2 * S
        kv_pad = _pad(kv, ((0, 0), (0, S), (0, 0)))
        kf_pad = _pad(ssm_k, ((0, 0), (0, S)))
        kv_f = (lambda x, axes=(-2,-1): torch.fft.rfft2(x.float(), dim=axes))(kv_pad[:, None, :, :], axes=(1, 2))
        kf_f = (lambda x, axes=(-2,-1): torch.fft.rfft2(x.float(), dim=axes))(kf_pad[:, None, :], axes=(1, 2))
        kf_f = (lambda x, *d: x.permute(*d))(kf_f, 1, 2, 0)
        y_f = kv_f * kf_f[None, :, :, :]
        y = (lambda x, s, axes=(-2,-1): torch.fft.irfft2(x, s=s, dim=axes).to(torch.bfloat16))(y_f, (1, L), axes=(1, 2))[:, 0, :S, :]
        y = y + kv * ssm_D[None, None, :]
        return q * y

    x = A_u
    g = _sigmoid((x * gate_w).sum(-1, keepdims=True))
    a = _A_ref(x, A_log_A_real, A_A_imag, A_C_real, A_C_imag, A_log_dt, A_D_skip)
    b = _B_ref(x, B_k, B_v, B_shift_k, B_ssm_k, B_ssm_D)
    return g * a + (1 - g) * b
```

```python
import re

TRANS = ('v_exp_f32', 'v_log_f32', 'v_rcp_f32', 'v_rsq_f32', 'v_sqrt_f32', 'v_sin_f32', 'v_cos_f32')
NODST_S = ('s_cmp', 's_waitcnt', 's_barrier', 's_nop', 's_branch', 's_cbranch', 's_endpgm', 's_setprio', 's_sleep', 's_bitcmp')

def regs_of(tok):
    tok = tok.strip()
    tok = tok.lstrip('-')
    m = re.fullmatch(r'\|?abs\((.*)\)\|?', tok)
    if m: tok = m.group(1)
    tok = tok.strip('|')
    m = re.fullmatch(r'([vsa])(\d+)', tok)
    if m: return [(m.group(1), int(m.group(2)))]
    m = re.fullmatch(r'([vsa])\[(\d+):(\d+)\]', tok)
    if m: return [(m.group(1), i) for i in range(int(m.group(2)), int(m.group(3)) + 1)]
    if tok == 'vcc': return [('s', 106), ('s', 107)]
    if tok == 'vcc_lo': return [('s', 106)]
    if tok == 'vcc_hi': return [('s', 107)]
    if tok == 'exec': return [('s', 126), ('s', 127)]
    if tok == 'm0': return [('s', 124)]
    return []

class Ins:
    def __init__(self, text):
        self.text = text
        t = text.split(';')[0].strip()
        parts = t.split(None, 1)
        self.op = parts[0]
        rest = parts[1] if len(parts) > 1 else ''
        ops = []; cur = ''; depth = 0
        for ch in rest:
            if ch in '[(': depth += 1
            if ch in '])': depth -= 1
            if ch == ',' and depth == 0: ops.append(cur); cur = ''
            else: cur += ch
        if cur.strip(): ops.append(cur)
        mods = ''
        if ops:
            last = ops[-1].strip().split(None, 1)
            ops[-1] = last[0]
            mods = last[1] if len(last) > 1 else ''
        self.mods = mods
        ops = [o.strip() for o in ops]
        self.ops = ops
        op = self.op
        self.cls = 'other'
        d = []; s = []
        if op.startswith('v_mfma'):
            self.cls = 'sgemm' if op.endswith('_f32') and 'x4_f32' in op or op.endswith('x2_f32') else 'xdl'
            d = regs_of(ops[0]); self.srcA = regs_of(ops[1]); self.srcB = regs_of(ops[2]); self.srcC = regs_of(ops[3])
            s = self.srcA + self.srcB + self.srcC
            if '16x16x32' in op: self.passes = 4
            elif '32x32x16' in op: self.passes = 8
            elif '16x16x4_f32' in op: self.passes = 8
            elif '32x32x2_f32' in op: self.passes = 16
            else: raise Exception('unknown mfma ' + op)
        elif op.startswith('v_'):
            self.cls = 'valu'
            d = regs_of(ops[0])
            rs = ops[1:]
            if op.startswith(('v_add_co', 'v_sub_co', 'v_addc_co', 'v_subb_co', 'v_subrev_co', 'v_mad_u64', 'v_div_scale')):
                d += regs_of(ops[1]); rs = ops[2:]
            for o in rs: s += regs_of(o)
            if op.startswith(('v_fmac', 'v_pk_fmac', 'v_dot2c')) or 'dpp' in op or 'd16' in op or op.startswith('v_writelane'): s += regs_of(ops[0])
            if op.startswith('v_permlane') : d += regs_of(ops[1]); s += regs_of(ops[0])
            if op.startswith('v_cmpx'): d += regs_of('exec')
        elif op.startswith('ds_'):
            self.cls = 'ds'
            if op.startswith(('ds_read', 'ds_bpermute', 'ds_permute', 'ds_swizzle')) or '_rtn' in op:
                d = regs_of(ops[0])
                for o in ops[1:]: s += regs_of(o)
                if 'd16' in op: s += regs_of(ops[0])
            else:
                for o in ops: s += regs_of(o)
        elif op.startswith(('buffer_', 'global_')):
            self.cls = 'vmem'
            islds = re.search(r'\blds\b', mods) is not None or '_lds_' in op
            self.islds = islds
            if ('load' in op) and not islds:
                d = regs_of(ops[0])
                for o in ops[1:]: s += regs_of(o)
            else:
                for o in ops: s += regs_of(o)
                if 'atomic' in op and 'sc0' in mods: d = regs_of(ops[0])
            if islds: s += regs_of('m0')
        elif op.startswith(('s_load', 's_buffer_load', 's_memtime', 's_memrealtime')):
            self.cls = 'smem'
            d = regs_of(ops[0])
            for o in ops[1:]: s += regs_of(o)
        elif op.startswith('s_'):
            self.cls = 'salu'
            if op.startswith(NODST_S):
                for o in ops: s += regs_of(o)
            else:
                d = regs_of(ops[0])
                for o in ops[1:]: s += regs_of(o)
                if 'saveexec' in op: d += regs_of('exec')
        self.d = set(d); self.s = set(s)
        self.trans = op.replace('_e32', '').replace('_e64', '') in TRANS
        self.dpp = 'dpp' in op or 'row_' in mods or 'quad_perm' in mods
        self.states = 1
        if op == 's_nop': self.states = int(ops[0], 0) + 1

def need(p, c):
    n = 0
    pv = {r for r in p.d if r[0] in 'va'}; ps = {r for r in p.d if r[0] == 's'}
    if p.cls == 'valu':
        if c.cls in ('xdl', 'sgemm') and pv & c.s: n = max(n, 2)
        if c.cls in ('xdl', 'sgemm') and ('s', 126) in ps: n = max(n, 4)
        if p.trans and c.cls in ('valu',) and not c.trans and pv & (c.s | c.d): n = max(n, 1)
        if p.trans and c.cls in ('valu',) and c.trans and pv & (c.s): n = max(n, 1)
        if p.trans and c.cls in ('ds', 'vmem') and pv & c.s: n = max(n, 1)
        if c.cls == 'valu' and c.dpp and pv & c.s: n = max(n, 2)
        if c.cls == 'valu' and c.dpp and ('s', 126) in ps: n = max(n, 5)
        if c.cls == 'valu' and c.op.startswith('v_permlane') and pv & c.s: n = max(n, 2)
        if c.cls == 'valu' and c.op.startswith(('v_readlane', 'v_readfirstlane')) and pv & c.s: n = max(n, 1)
        if ps:
            if c.cls == 'vmem' and ps & c.s: n = max(n, 5)
            if c.cls == 'valu' and ps & c.s:
                n = max(n, 4 if c.op.startswith(('v_readlane', 'v_writelane')) else 2)
            if c.cls in ('salu', 'smem') and ps & c.s: n = max(n, 1)
            if ('s', 126) in ps and c.cls == 'valu' and c.op.startswith(('v_readlane', 'v_readfirstlane', 'v_writelane', 'v_permlane')): n = max(n, 4)
        if 'sdwa' in p.op or 'op_sel' in p.mods:
            if c.cls == 'valu' and pv & (c.s | c.d): n = max(n, 1)
    if p.cls == 'salu':
        if ('s', 124) in p.d and c.cls == 'vmem' and getattr(c, 'islds', False): n = max(n, 1)
    if p.cls == 'vmem' and 'store' in p.op and ('x4' in p.op or 'x3' in p.op):
        data = set(regs_of(p.ops[0])) if p.op.startswith('buffer') else set(regs_of(p.ops[1]))
        if data & c.d: n = max(n, 2)
    if p.cls in ('xdl', 'sgemm'):
        idx = {2: 0, 4: 1, 8: 2, 16: 3}[p.passes]
        if p.cls == 'xdl':
            if c.cls in ('xdl', 'sgemm'):
                if pv & set(c.srcA + c.srcB): n = max(n, [5, 8, 12, 20][idx])
                if pv & set(c.srcC):
                    if c.cls == 'xdl' and set(c.srcC) == pv and c.passes == p.passes: n = max(n, [2, 0, 0, 0][idx])
                    else: n = max(n, [4, 6, 10, 18][idx])
                elif pv & c.d: n = max(n, [5, 8, 12, 20][idx])
            elif pv & (c.s | c.d): n = max(n, [5, 8, 12, 20][idx])
            if c.cls == 'valu' and set(p.srcC) & c.d: n = max(n, [1, 3, 7, 15][idx])
        else:
            if c.cls in ('xdl', 'sgemm'):
                if pv & set(c.srcA + c.srcB): n = max(n, [4, 6, 10, 18][idx])
                if pv & set(c.srcC):
                    if c.cls == 'sgemm' and set(c.srcC) == pv: n = max(n, [2, 0, 0, 0][idx])
                    else: n = max(n, [2, 4, 8, 16][idx])
                elif pv & c.d: n = max(n, [4, 6, 10, 18][idx])
            elif pv & (c.s | c.d): n = max(n, [4, 6, 10, 18][idx])
    return n

class Asm:
    def __init__(self):
        self.lines = []
        self.win = []
        self.nops = 0
    def raw(self, text):
        self.lines.append(text)
    def label(self, name):
        self.lines.append(name + ':')
    def comment(self, t):
        self.lines.append('    ; ' + t)
    def fence(self):
        worst = 0; dist = 0
        for p in reversed(self.win):
            w = 0
            if p.cls == 'valu': w = 5
            if p.cls in ('xdl', 'sgemm'): w = {2: 5, 4: 8, 8: 12, 16: 20}[p.passes]
            if p.cls == 'vmem': w = 2
            if p.cls == 'salu': w = 1 if ('s', 124) in p.d else 0
            worst = max(worst, w - dist)
            dist += p.states
        while worst > 0:
            k = min(worst, 16)
            self('s_nop %d' % (k - 1))
            worst -= k
        self.win = []
    def __call__(self, text):
        for ln in text.strip().split('\n'):
            ln = ln.strip()
            if not ln: continue
            if ln.startswith(';'): self.lines.append('    ' + ln); continue
            if ln.endswith(':'): self.label(ln[:-1]); continue
            c = Ins(ln)
            req = 0; dist = 0
            for p in reversed(self.win):
                req = max(req, need(p, c) - dist)
                dist += p.states
                if dist > 24: break
            while req > 0:
                k = min(req, 16)
                nop = Ins('s_nop %d' % (k - 1))
                self.lines.append('    s_nop %d' % (k - 1)); self.win.append(nop); self.nops += 1
                req -= k
            self.lines.append('    ' + ln)
            self.win.append(c)
            if len(self.win) > 40: self.win = self.win[-30:]
    def text(self):
        return '\n'.join(self.lines) + '\n'

def vr(a, n=1):
    return 'v%d' % a if n == 1 else 'v[%d:%d]' % (a, a + n - 1)
def sr(a, n=1):
    return 's%d' % a if n == 1 else 's[%d:%d]' % (a, a + n - 1)

def kdesc(name, vgpr, sgpr=102, extra=''):
    acc = (vgpr + 3) // 4 * 4
    return f""".p2align 6
.amdhsa_kernel {name}
  .amdhsa_next_free_vgpr {vgpr}
  .amdhsa_next_free_sgpr {sgpr}
  .amdhsa_accum_offset {acc}
  .amdhsa_group_segment_fixed_size 0
  .amdhsa_kernarg_size 136
  .amdhsa_user_sgpr_count 2
  .amdhsa_user_sgpr_kernarg_segment_ptr 1
  .amdhsa_system_sgpr_workgroup_id_x 1
  .amdhsa_float_denorm_mode_32 3
{extra}.end_amdhsa_kernel
"""
```

```python
import struct
from asmlib import *

def f2u(x): return struct.unpack('<I', struct.pack('<f', x))[0]
L2E = 1.4426950408889634
L2E_HI = struct.unpack('<f', struct.pack('<I', 0x3FB8AA00))[0]
L2E_LO = L2E - L2E_HI
INV2PI = 0.15915494309189535

WS_UR = 0
WS_KVR = 2 << 20
WS_KA = 4 << 20
WS_G = 6 << 20

def load_ptrs(A):
    A('''s_load_dwordx16 s[8:23], s[0:1], 0
s_load_dwordx16 s[24:39], s[0:1], 64
s_load_dwordx2 s[40:41], s[0:1], 128''')
P = dict(u=8, logA=10, Aim=12, Cr=14, Ci=16, logdt=18, Dskip=20, q=22, k=24, v=26, shk=28, ssmk=30, ssmD=32, gw=34, out=36, dbg=38, ws=40)
def ptr(n): return sr(P[n], 2)

def rnd(A, d, s):
    A(f'v_cvt_pk_bf16_f32 {vr(d)}, 0, {vr(s)}')
def lo2f(A, d, s): A(f'v_lshlrev_b32 {vr(d)}, 16, {vr(s)}')
def hi2f(A, d, s): A(f'v_and_b32 {vr(d)}, 0xffff0000, {vr(s)}')

def bfexp(A, d, x, t0, t1, sHI, sLO):
    A(f'''v_mul_f32 {vr(t0)}, {sr(sHI)}, {vr(x)}
v_rndne_f32 {vr(t1)}, {vr(t0)}
v_sub_f32 {vr(t0)}, {vr(t0)}, {vr(t1)}
v_fma_f32 {vr(t0)}, {vr(x)}, {sr(sLO)}, {vr(t0)}
v_exp_f32 {vr(t0)}, {vr(t0)}
v_cvt_i32_f32 {vr(t1)}, {vr(t1)}
v_ldexp_f32 {vr(t0)}, {vr(t0)}, {vr(t1)}''')
    rnd(A, d, t0)

def gen_T(A, lds_base):
    U0, U1, V0, V1 = 8, 12, 16, 20
    K = [24, 28, 32, 36, 40]
    SK = 44
    GU, GW = 60, 68
    vo, vk1, vk2, vk3, vsk, vg, vgw = 1, 2, 3, 4, 5, 6, 7
    T = 76
    A(f'''v_and_b32 v{T}, 63, v0
v_lshrrev_b32 v{T+1}, 1, v{T}          ; rp
v_and_b32 v{T+2}, 1, v{T}              ; h
s_and_b32 s4, s2, 7                    ; stripe
s_lshr_b32 s5, s2, 3                   ; j
s_lshl_b32 s6, s4, 7
s_lshl_b32 s7, s3, 5
s_add_u32 s6, s6, s7                   ; 128 s + 32 w
v_lshlrev_b32 v{T+3}, 4, v{T+2}
v_add_u32 v{T+3}, s6, v{T+3}           ; cb
v_lshlrev_b32 v{vsk}, 2, v{T+3}
s_lshl_b32 s7, s5, 16                  ; j*64*1024
v_lshlrev_b32 v{vo}, 11, v{T+1}
v_add3_u32 v{vo}, v{vo}, v{T+3}, s7    ; voff
v_subrev_u32 v{vk1}, 0x400, v{vo}
v_subrev_u32 v{vk2}, 0x800, v{vo}
v_subrev_u32 v{vk3}, 0xc00, v{vo}
v_and_b32 v{vgw}, 31, v0
v_lshlrev_b32 v{vgw}, 5, v{vgw}        ; ch16*32
v_lshrrev_b32 v{vg}, 5, v0
v_lshlrev_b32 v{vg}, 10, v{vg}
s_lshl_b32 s7, s2, 13                  ; 8 rows * 1024 * b
v_add3_u32 v{vg}, v{vg}, v{vgw}, s7
s_waitcnt lgkmcnt(0)
s_mov_b32 s44, s{P['k']}
s_mov_b32 s45, s{P['k']+1}
s_mov_b32 s46, 0x200000
s_mov_b32 s47, 0x00020000
buffer_load_dwordx4 {vr(K[0],4)}, v{vk3}, s[44:47], 0 offen
buffer_load_dwordx4 {vr(K[1],4)}, v{vk2}, s[44:47], 0 offen
buffer_load_dwordx4 {vr(K[2],4)}, v{vk1}, s[44:47], 0 offen
buffer_load_dwordx4 {vr(K[3],4)}, v{vo}, s[44:47], 0 offen
buffer_load_dwordx4 {vr(K[4],4)}, v{vo}, s[44:47], 0 offen offset:1024
global_load_dwordx4 {vr(SK,4)}, v{vsk}, {ptr('shk')}
global_load_dwordx4 {vr(SK+4,4)}, v{vsk}, {ptr('shk')} offset:16
global_load_dwordx4 {vr(SK+8,4)}, v{vsk}, {ptr('shk')} offset:32
global_load_dwordx4 {vr(SK+12,4)}, v{vsk}, {ptr('shk')} offset:48
global_load_dwordx4 {vr(V0,4)}, v{vo}, {ptr('v')}
global_load_dwordx4 {vr(V1,4)}, v{vo}, {ptr('v')} offset:1024
global_load_dwordx4 {vr(U0,4)}, v{vo}, {ptr('u')}
global_load_dwordx4 {vr(U1,4)}, v{vo}, {ptr('u')} offset:1024
global_load_dwordx4 {vr(GU,4)}, v{vg}, {ptr('u')}
global_load_dwordx4 {vr(GU+4,4)}, v{vg}, {ptr('u')} offset:16
global_load_dwordx4 {vr(GW,4)}, v{vgw}, {ptr('gw')}
global_load_dwordx4 {vr(GW+4,4)}, v{vgw}, {ptr('gw')} offset:16''')
    A(f'''s_mul_i32 s7, s3, 4224
s_add_u32 s7, s7, {lds_base}
v_mul_u32_u24 v2, 1088, v{T+2}
v_lshlrev_b32 v3, 2, v{T+1}
v_sub_u32 v2, v2, v3
v_add_u32 v2, 124, v2
v_add_u32 v2, s7, v2
v_lshlrev_b32 v3, 4, v{T}
v_add_u32 v3, s7, v3
v_lshrrev_b32 v4, 3, v{T}              ; ch
v_lshlrev_b32 v4, 12, v4
v_and_b32 v5, 7, v{T}
v_lshlrev_b32 v5, 4, v5
v_add_u32 v4, v4, v5
s_lshl_b32 s6, s6, 11                  ; (64 s + 16 w) * 4096
s_lshl_b32 s7, s5, 7
s_sub_u32 s7, 3968, s7                 ; (1984 - 64 j)*2
s_add_u32 s6, s6, s7
v_add_u32 v4, s6, v4
v_add_u32 v5, {WS_KVR}, v4
v_add_u32 v6, 0x8000, v4
v_add_u32 v7, 0x8000, v5
s_mov_b32 s48, 0x05040100
s_mov_b32 s49, 0x07060302''')
    W = T
    KP = T + 8
    VP = T + 18
    AC = T + 22
    PR = T + 26
    O = T + 30
    A('s_waitcnt vmcnt(6)')
    for c2 in range(4):
        for t in range(4):
            for ee in range(2):
                src = SK + 2 * (2 * c2 + ee) + (t >> 1)
                (hi2f if t & 1 else lo2f)(A, W + 2 * t + ee, src)
        for i in range(5):
            lo2f(A, KP + 2 * i, K[i] + c2); hi2f(A, KP + 2 * i + 1, K[i] + c2)
        lo2f(A, VP, V0 + c2); hi2f(A, VP + 1, V0 + c2); lo2f(A, VP + 2, V1 + c2); hi2f(A, VP + 3, V1 + c2)
        for a in range(2):
            A(f'v_pk_mul_f32 {vr(AC+2*a,2)}, {vr(KP+2*a,2)}, {vr(W+6,2)}')
        for a in range(2):
            rnd(A, AC + 2 * a, AC + 2 * a); rnd(A, AC + 2 * a + 1, AC + 2 * a + 1)
        for tp in range(1, 4):
            for a in range(2):
                A(f'v_pk_mul_f32 {vr(PR+2*a,2)}, {vr(KP+2*(a+tp),2)}, {vr(W+2*(3-tp),2)}')
            for a in range(2):
                rnd(A, PR + 2 * a, PR + 2 * a); rnd(A, PR + 2 * a + 1, PR + 2 * a + 1)
            for a in range(2):
                A(f'v_pk_add_f32 {vr(AC+2*a,2)}, {vr(AC+2*a,2)}, {vr(PR+2*a,2)}')
            for a in range(2):
                rnd(A, AC + 2 * a, AC + 2 * a); rnd(A, AC + 2 * a + 1, AC + 2 * a + 1)
        for a in range(2):
            A(f'v_pk_mul_f32 {vr(AC+2*a,2)}, {vr(AC+2*a,2)}, {vr(VP+2*a,2)}')
        A(f'''v_cvt_pk_bf16_f32 v{O}, v{AC+2}, v{AC}
v_cvt_pk_bf16_f32 v{O+1}, v{AC+3}, v{AC+1}
ds_write_b32 v2, v{O} offset:{2112 + (2*c2)*128}
ds_write_b32 v2, v{O+1} offset:{2112 + (2*c2+1)*128}''')
    A('s_waitcnt vmcnt(4)')
    for c2 in range(4):
        A(f'''v_perm_b32 v{O}, v{U0+c2}, v{U1+c2}, s48
v_perm_b32 v{O+1}, v{U0+c2}, v{U1+c2}, s49
ds_write_b32 v2, v{O} offset:{(2*c2)*128}
ds_write_b32 v2, v{O+1} offset:{(2*c2+1)*128}''')
        O ^= 2 if False else 0
    R = 8
    A(f'''s_waitcnt lgkmcnt(0)
ds_read_b128 {vr(R,4)}, v3 offset:2112
ds_read_b128 {vr(R+4,4)}, v3 offset:{2112+1088}
ds_read_b128 {vr(R+8,4)}, v3
ds_read_b128 {vr(R+12,4)}, v3 offset:1088
s_waitcnt lgkmcnt(3)
global_store_dwordx4 v5, {vr(R,4)}, {ptr('ws')}
s_waitcnt lgkmcnt(2)
global_store_dwordx4 v7, {vr(R+4,4)}, {ptr('ws')}
s_waitcnt lgkmcnt(1)
global_store_dwordx4 v4, {vr(R+8,4)}, {ptr('ws')}
s_waitcnt lgkmcnt(0)
global_store_dwordx4 v6, {vr(R+12,4)}, {ptr('ws')}''')
    A('s_waitcnt vmcnt(4)')
    X = 24; Y = 40
    for i in range(8):
        lo2f(A, X + 2 * i, GU + i); hi2f(A, X + 2 * i + 1, GU + i)
        lo2f(A, Y + 2 * i, GW + i); hi2f(A, Y + 2 * i + 1, GW + i)
    for i in range(8):
        A(f'v_pk_mul_f32 {vr(X+2*i,2)}, {vr(X+2*i,2)}, {vr(Y+2*i,2)}')
    for i in range(16): rnd(A, X + i, X + i)
    for st in (4, 2, 1):
        for i in range(st):
            A(f'v_pk_add_f32 {vr(X+2*i,2)}, {vr(X+2*i,2)}, {vr(X+2*(i+st),2)}')
    A(f'v_add_f32 v{X}, v{X}, v{X+1}')
    for sh in (1, 2, 4, 8):
        A(f'v_add_f32_dpp v{X}, v{X}, v{X} row_shr:{sh} row_mask:0xf bank_mask:0xf bound_ctrl:0')
    A(f'v_add_f32_dpp v{X}, v{X}, v{X} row_bcast:15 row_mask:0xa bank_mask:0xf')
    rnd(A, X, X)
    A(f'''v_mul_f32 v{X}, {f2u(-L2E):#x}, v{X}
v_exp_f32 v{X}, v{X}
v_add_f32 v{X}, 1.0, v{X}
v_rcp_f32 v{X}, v{X}
v_cvt_pk_bf16_f32 v{X}, v{X}, v{X}
v_lshrrev_b32 v1, 5, v0
v_lshlrev_b32 v1, 1, v1
s_lshl_b32 s7, s2, 4
s_add_u32 s7, s7, {WS_G}
v_add_u32 v1, s7, v1
v_and_b32 v2, 31, v0
v_cmp_eq_u32 vcc, 31, v2
s_and_saveexec_b64 s[50:51], vcc
global_store_short v1, v{X}, {ptr('ws')}
s_endpgm''')

def gen_K(A, lds_par, lds_kc):
    PR = 16
    A(f'''s_sub_u32 s4, s3, 4                    ; kw 0..3
s_lshr_b32 s5, s4, 1                   ; cc
s_and_b32 s6, s4, 1                    ; mh
s_lshl_b32 s7, s2, 1
s_add_u32 s7, s7, s5                   ; channel d
v_and_b32 v1, 63, v0                   ; lane
s_lshl_b32 s42, s7, 8                  ; d*256 bytes
s_lshl_b32 s43, s6, 7
s_add_u32 s42, s42, s43
v_lshlrev_b32 v2, 1, v1
v_add_u32 v2, s42, v2
s_lshl_b32 s43, s7, 1
v_mov_b32 v3, s43
s_waitcnt lgkmcnt(0)
global_load_ushort v4, v3, {ptr('logdt')}
global_load_ushort v5, v2, {ptr('logA')}
global_load_ushort v6, v2, {ptr('Aim')}
global_load_ushort v7, v2, {ptr('Cr')}
global_load_ushort v8, v2, {ptr('Ci')}
s_mov_b32 s44, {f2u(L2E_HI):#x}
s_mov_b32 s45, {f2u(L2E_LO):#x}
v_and_b32 v9, 15, v1                   ; idx
v_lshrrev_b32 v10, 4, v1               ; kq
v_lshlrev_b32 v11, 3, v9
v_cvt_f32_u32 v84, v11
v_and_b32 v11, 7, v9
v_and_b32 v12, 8, v9
v_lshl_or_b32 v11, v12, 4, v11
v_cvt_f32_u32 v85, v11                 ; pH0
v_and_b32 v11, 3, v9
v_lshlrev_b32 v11, 1, v11
v_and_b32 v12, 4, v9
v_lshl_or_b32 v11, v12, 5, v11
v_add_u32 v11, 0x100, v11              ; rows<8
v_and_b32 v12, 1, v9
v_lshlrev_b32 v12, 2, v12
v_and_b32 v13, 6, v9
v_lshl_or_b32 v12, v13, 6, v12
v_add_u32 v12, 0x200, v12              ; rows>=8
v_cmp_gt_u32 vcc, 8, v9
v_cndmask_b32 v11, v12, v11, vcc
v_cvt_f32_u32 v86, v11                 ; pH1
v_lshlrev_b32 v11, 7, v9
v_add_u32 v11, 0x400, v11
v_cvt_f32_u32 v87, v11                 ; pH2
s_lshl_b32 s46, s4, 10
s_add_u32 s46, s46, {lds_par}
v_lshlrev_b32 v11, 4, v1
v_add_u32 v11, s46, v11
v_lshlrev_b32 v12, 4, v10
v_add_u32 v12, s46, v12
s_waitcnt vmcnt(0)
v_lshlrev_b32 v4, 16, v4
v_lshlrev_b32 v5, 16, v5
v_lshlrev_b32 v6, 16, v6
v_lshlrev_b32 v7, 16, v7
v_lshlrev_b32 v8, 16, v8''')
    bfexp(A, 4, 4, 13, 14, 44, 45)
    bfexp(A, 5, 5, 13, 14, 44, 45)
    A(f'''v_mul_f32 v5, v5, v4
v_mul_f32 v80, {f2u(-L2E):#x}, v5
v_mul_f32 v6, v6, v4
v_mul_f32 v81, {f2u(INV2PI):#x}, v6    ; b'
v_add_f32 v4, v4, v4
v_mul_f32 v82, v7, v4                  ; cr
v_mul_f32 v83, v8, v4                  ; ci
ds_write_b128 v11, v[80:83]
s_waitcnt lgkmcnt(0)''')
    for kp in range(8):
        A(f'ds_read_b128 {vr(PR+4*kp,4)}, v12 offset:{64*kp}')
    ACC = [88, 92, 96]
    POS = [84, 85, 86, 87]
    M, TH, C, S = 100, 104, 108, 112
    OUT = [116, 124]
    pend = []
    def interleave(vlist):
        nonlocal pend
        n = len(vlist); k = len(pend)
        pos = [int((i + 0.5) * n / k) for i in range(k)] if k else []
        j = 0
        for i, ins in enumerate(vlist):
            while j < k and pos[j] == i:
                A(pend[j]); j += 1
            A(ins)
        while j < k: A(pend[j]); j += 1
        pend = []
    for kp in range(16):
        a_, b_, cr, ci = [PR + 4 * kp + i for i in range(4)]
        O = OUT[kp & 1]
        A(f's_waitcnt lgkmcnt({min(7, 15-kp)})')
        if kp < 8: A(f'ds_read_b128 {vr(PR+4*(kp+8),4)}, v12 offset:{64*(kp+8)}')
        vl = []
        for e in range(4): vl.append(f'v_mul_f32 v{TH+e}, v{b_}, v{POS[e]}')
        for e in range(4): vl.append(f'v_mul_f32 v{M+e}, v{a_}, v{POS[e]}')
        for e in range(4): vl.append(f'v_fract_f32 v{TH+e}, v{TH+e}')
        for e in range(4): vl.append(f'v_exp_f32 v{M+e}, v{M+e}')
        for e in range(4): vl.append(f'v_cos_f32 v{C+e}, v{TH+e}')
        for e in range(4): vl.append(f'v_sin_f32 v{S+e}, v{TH+e}')
        vl.append(f'v_mul_f32 v{C}, v{M}, v{C}')
        vl.append(f'v_mul_f32 v{S}, v{M}, v{S}')
        for e in range(1, 4):
            vl.append(f'v_mul_f32 v{O+2*(e-1)}, v{M+e}, v{C+e}')
            vl.append(f'v_mul_f32 v{O+2*(e-1)+1}, v{M+e}, v{S+e}')
        vl.append(f'v_mul_f32 v{O+6}, v{cr}, v{C}')
        vl.append(f'v_mul_f32 v{O+7}, v{cr}, v{S}')
        vl.append(f'v_fma_f32 v{O+6}, -v{ci}, v{S}, v{O+6}')
        vl.append(f'v_fma_f32 v{O+7}, -v{ci}, v{C}, -v{O+7}')
        interleave(vl)
        for tt in range(3):
            c0 = '0' if kp == 0 else vr(ACC[tt], 4)
            pend.append(f'v_mfma_f32_16x16x4_f32 {vr(ACC[tt],4)}, v{O+2*tt}, v{O+6}, {c0}')
        for tt in range(3):
            pend.append(f'v_mfma_f32_16x16x4_f32 {vr(ACC[tt],4)}, v{O+2*tt+1}, v{O+7}, {vr(ACC[tt],4)}')
    vl = [f's_mul_i32 s46, s4, 3072',
          f's_add_u32 s46, s46, {lds_kc}',
          'v_and_b32 v11, 1, v10', 'v_lshlrev_b32 v11, 4, v11', 'v_lshrrev_b32 v12, 1, v10', 'v_lshl_or_b32 v11, v12, 9, v11',
          'v_lshl_add_u32 v11, v9, 5, v11', 'v_add_u32 v11, s46, v11',
          'v_lshlrev_b32 v13, 8, v10', 'v_lshl_add_u32 v14, v9, 4, v13', 'v_lshl_add_u32 v15, v9, 3, v13',
          'v_cmp_gt_u32 vcc, 2, v10', 'v_cndmask_b32 v14, v15, v14, vcc', 'v_add_u32 v14, s46, v14',
          'v_mov_b32 v15, 0x80', 'v_cndmask_b32 v15, v15, 8, vcc', 'v_add_u32 v15, v14, v15',
          'v_lshl_add_u32 v13, v9, 2, v13', 'v_add_u32 v13, s46, v13']
    interleave(vl)
    A(f'''ds_write_b128 v11, {vr(ACC[0],4)}
ds_write_b64 v14, {vr(ACC[1],2)} offset:1024
ds_write_b64 v15, {vr(ACC[1]+2,2)} offset:1024
ds_write_b32 v13, v{ACC[2]} offset:2048
ds_write_b32 v13, v{ACC[2]+1} offset:2112
ds_write_b32 v13, v{ACC[2]+2} offset:2176
ds_write_b32 v13, v{ACC[2]+3} offset:2240''')
    CI = 16
    A(f'''v_subrev_u32 v1, 0x100, v0
v_lshlrev_b32 v2, 3, v1''')
    for i in range(8):
        A(f'''v_add_u32 v3, {i}, v2
v_cvt_f32_u32 v4, v3
v_cvt_pk_bf16_f32 v4, v4, 0
v_subrev_u32 v4, {133*128}, v4
v_cmp_gt_u32 vcc, 0x80, v3
v_cndmask_b32 v4, v4, v3, vcc
v_lshlrev_b32 v{CI+i}, 2, v4
v_add_u32 v{CI+i}, {lds_kc}, v{CI+i}''')
    A('''s_waitcnt lgkmcnt(0)
s_barrier''')
    RD = 32
    for i in range(8):
        A(f'ds_read2st64_b32 {vr(RD+4*i,2)}, v{CI+i} offset0:0 offset1:12')
        A(f'ds_read2st64_b32 {vr(RD+4*i+2,2)}, v{CI+i} offset0:24 offset1:36')
        if i == 3:
            A('s_waitcnt lgkmcnt(0)')
    A(f'''s_lshl_b32 s42, s2, 13
s_add_u32 s42, s42, {WS_KA}
v_lshlrev_b32 v2, 4, v1
v_add_u32 v2, s42, v2
v_add_u32 v3, 0x1000, v2
s_waitcnt lgkmcnt(0)''')
    for i in range(8):
        A(f'v_add_f32 v{RD+4*i}, v{RD+4*i}, v{RD+4*i+1}')
        A(f'v_add_f32 v{RD+4*i+2}, v{RD+4*i+2}, v{RD+4*i+3}')
    for i in range(4):
        A(f'v_cvt_pk_bf16_f32 v{64+i}, v{RD+8*i}, v{RD+8*i+4}')
        A(f'v_cvt_pk_bf16_f32 v{68+i}, v{RD+8*i+2}, v{RD+8*i+6}')
    A(f'''global_store_dwordx4 v2, v[64:67], {ptr('ws')}
global_store_dwordx4 v3, v[68:71], {ptr('ws')}
s_endpgm''')

def gen_k1(A, name='prep_kernel'):
    A.raw(f'.globl {name}\n.p2align 8\n.type {name},@function\n{name}:')
    A(f'''s_cmp_ge_u32 s2, 256
s_cbranch_scc1 L{name}_end''')
    load_ptrs(A)
    A(f'''v_lshrrev_b32 v1, 6, v0
v_readfirstlane_b32 s3, v1
s_cmp_ge_u32 s3, 4
s_cbranch_scc1 L{name}_kgen''')
    LDS_T = 0; LDS_PAR = 4 * 4224; LDS_KC = LDS_PAR + 4096
    gen_T(A, LDS_T)
    A.win = []
    A.label(f'L{name}_kgen')
    gen_K(A, LDS_PAR, LDS_KC)
    A.win = []
    A.label(f'L{name}_end')
    A('s_endpgm')
    return LDS_KC + 4 * 3072
```

```python
from asmlib import *
from k1 import *

KXS = 16640
UXC = 4576
UXS = 2 * UXC
L_KX = 0
L_UX = L_KX + 4 * KXS
L_Y = L_UX + 4 * UXS
L_G = L_Y + 4 * 4096
L_END = L_G + 4096

def mfma_list():
    ml = []
    for Pp in range(4):
        t0, t1 = 2 * Pp, 2 * Pp + 1
        for c in range(8):
            for b in range(t1, -1, -1):
                e = 8 * b - c
                ml.append((Pp, t1, e, 8 * (t1 - b) + c))
                if b <= t0: ml.append((Pp, t0, e, 8 * (t0 - b) + c))
    return ml

def gen_mfma_phase(A, vK, vU, vY, NC=46, NKR=4, NUR=6, LA=10, base=8):
    ml = mfma_list()
    ACC = base
    TMP = ACC + 16
    UR = TMP + 4
    KR = UR + 4 * NUR
    KC = KR + 4 * NKR
    top = KC + 4 * NC
    assert top <= 256, top
    loads = []; cur = {}
    uring = [None] * NUR; kring = [None] * NKR; ui = 0; ki = 0
    use = []
    for mi, (Pp, t, e, s) in enumerate(ml):
        ku = ('U', e, Pp)
        if ku not in cur:
            prev = uring[ui % NUR]
            rec = dict(kind='U', idx=e, reg=UR + 4 * (ui % NUR), first=mi, last=mi, prev=prev)
            if prev is not None: cur.pop(prev['key'], None)
            rec['key'] = ku; uring[ui % NUR] = rec; ui += 1; cur[ku] = rec; loads.append(rec)
        cur[ku]['last'] = mi
        if s < NC:
            kk = ('K', s)
            if kk not in cur:
                rec = dict(kind='K', idx=s, reg=KC + 4 * s, first=mi, last=mi, prev=None, key=kk)
                cur[kk] = rec; loads.append(rec)
        else:
            kk = ('K', s, Pp)
            if kk not in cur:
                prev = kring[ki % NKR]
                rec = dict(kind='K', idx=s, reg=KR + 4 * (ki % NKR), first=mi, last=mi, prev=prev, key=kk)
                if prev is not None: cur.pop(prev['key'], None)
                kring[ki % NKR] = rec; ki += 1; cur[kk] = rec; loads.append(rec)
        cur[kk]['last'] = mi
        use.append((cur[ku], cur[kk]))
    fifo = []
    def wait_for(recs):
        n = None
        for r in recs:
            if r in fifo_ids():
                pos = fifo_ids().index(r)
                k = len(fifo) - 1 - pos
                n = k if n is None else min(n, k)
        if n is not None:
            A(f's_waitcnt lgkmcnt({n})')
            del fifo[:len(fifo) - n]
    def fifo_ids(): return fifo
    li = 0
    started = set()
    pass_end = {}
    for mi, (Pp, t, e, s) in enumerate(ml): pass_end[Pp] = mi
    events = {}
    def ywrite(Pp):
        recs = []
        for t in (2 * Pp, 2 * Pp + 1):
            a = ACC + 4 * ((Pp & 1) * 2 + (t & 1))
            tm = TMP + 2 * (t & 1)
            A(f'v_cvt_pk_bf16_f32 v{tm}, v{a}, v{a+1}')
            A(f'v_cvt_pk_bf16_f32 v{tm+1}, v{a+2}, v{a+3}')
            A(f'ds_write_b32 v{vY}, v{tm} offset:{512*t}')
            r = object(); fifo.append(r); recs.append(r)
            A(f'ds_write_b32 v{vY}, v{tm+1} offset:{512*t+64}')
            r = object(); fifo.append(r); recs.append(r)
        return recs
    ywrecs = {}
    nl = 0
    for mi, (Pp, t, e, s) in enumerate(ml):
        if Pp > 0 and mi == pass_end[Pp - 1] + 4:
            while len(fifo) > 11:
                wait_for([fifo[len(fifo) - 12]])
            ywrecs[Pp - 1] = ywrite(Pp - 1)
        if Pp > 0 and mi == pass_end[Pp - 1] + 8:
            wait_for(ywrecs[Pp - 1]); A('s_barrier')
        issued = 0
        while li < len(loads):
            r = loads[li]
            if r['prev'] is not None and r['prev']['last'] >= mi: break
            must = r['first'] <= mi
            if not must and (r['first'] > mi + LA or issued >= 2 or len(fifo) >= 14): break
            if len(fifo) >= 15: wait_for([fifo[0]])
            if r['kind'] == 'U':
                A(f"ds_read_b128 {vr(r['reg'],4)}, v{vU} offset:{64*(56-r['idx'])}")
            else:
                A(f"ds_read_b128 {vr(r['reg'],4)}, v{vK} offset:{256*r['idx']}")
            fifo.append(r); li += 1; issued += 1; nl += 1
        ru, rk = use[mi]
        assert loads.index(ru) < li and loads.index(rk) < li, (mi,)
        wait_for([ru, rk])
        a = ACC + 4 * ((Pp & 1) * 2 + (t & 1))
        c = vr(a, 4) if t in started else '0'
        started.add(t)
        A(f"v_mfma_f32_16x16x32_bf16 {vr(a,4)}, {vr(ru['reg'],4)}, {vr(rk['reg'],4)}, {c}")
    recs = ywrite(3)
    wait_for(recs); A('s_barrier')
    print('mfma', len(ml), 'loads', nl, 'top reg', top)
    return top

def gen_epilogue(A, Pp, vP, vN, vO, DP, SP, R):
    Y = R
    U = R + 4
    G = R + 8
    A(f'ds_read2st64_b32 {vr(Y,2)}, v{vP} offset0:{(L_Y + 1024*Pp)//256} offset1:{(L_Y + 4096 + 1024*Pp)//256}') if False else None
    for cv in range(4):
        A(f'ds_read_b32 v{Y+cv}, v{vP+1} offset:{4096*cv + 1024*Pp}')
    for cv in range(4):
        off = L_UX + UXS * cv + UXC + 4092 - 1024 * Pp - 1024
        A(f'ds_read_b32 v{U+cv}, v{vN} offset:{off - L_UX}')
    A(f'ds_read_b32 v{G}, v{vP+1} offset:{16384 + 1024*Pp}')
    UP = R + 10
    KV = R + 14
    YA = R + 18
    YB = R + 22
    GG = R + 26
    OM = R + 28
    T1 = R + 30
    O = R + 34
    A('s_waitcnt lgkmcnt(0)')
    for ch in range(2):
        hi2f(A, UP + ch, U + 2 * ch); lo2f(A, UP + 2 + ch, U + 2 * ch)
        hi2f(A, KV + ch, U + 2 * ch + 1); lo2f(A, KV + 2 + ch, U + 2 * ch + 1)
        lo2f(A, YA + ch, Y + 2 * ch); hi2f(A, YA + 2 + ch, Y + 2 * ch)
        lo2f(A, YB + ch, Y + 2 * ch + 1); hi2f(A, YB + 2 + ch, Y + 2 * ch + 1)
    lo2f(A, GG, G); hi2f(A, GG + 1, G)
    A(f'v_sub_f32 v{OM}, 1.0, v{GG}')
    A(f'v_sub_f32 v{OM+1}, 1.0, v{GG+1}')
    rnd(A, OM, OM); rnd(A, OM + 1, OM + 1)
    def r4(x):
        for i in range(4): rnd(A, x + i, x + i)
    for a in range(2): A(f'v_pk_mul_f32 {vr(T1+2*a,2)}, {vr(UP+2*a,2)}, {vr(DP,2)}')
    for a in range(2): A(f'v_pk_mul_f32 {vr(KV+2*a,2)}, {vr(KV+2*a,2)}, {vr(SP,2)}')
    r4(T1); r4(KV)
    for a in range(2): A(f'v_pk_add_f32 {vr(YA+2*a,2)}, {vr(YA+2*a,2)}, {vr(T1+2*a,2)}')
    for a in range(2): A(f'v_pk_add_f32 {vr(YB+2*a,2)}, {vr(YB+2*a,2)}, {vr(KV+2*a,2)}')
    r4(YA); r4(YB)
    for a in range(2): A(f'v_pk_mul_f32 {vr(YB+2*a,2)}, {vr(YB+2*a,2)}, {vr(UP+2*a,2)}')
    for a in range(2): A(f'v_pk_mul_f32 {vr(YA+2*a,2)}, {vr(YA+2*a,2)}, {vr(GG,2)} op_sel:[0,{a}] op_sel_hi:[1,{a}]')
    r4(YB); r4(YA)
    for a in range(2): A(f'v_pk_mul_f32 {vr(YB+2*a,2)}, {vr(YB+2*a,2)}, {vr(OM,2)} op_sel:[0,{a}] op_sel_hi:[1,{a}]')
    r4(YB)
    for a in range(2): A(f'v_pk_add_f32 {vr(YA+2*a,2)}, {vr(YA+2*a,2)}, {vr(YB+2*a,2)}')
    for a in range(2): A(f'v_cvt_pk_bf16_f32 v{O+a}, v{YA+2*a}, v{YA+2*a+1}')
    A(f's_mov_b32 s60, {Pp * 512 * 1024}')
    A(f'buffer_store_dword v{O}, v{vO}, s[56:59], s60 offen')
    A(f'buffer_store_dword v{O+1}, v{vO}, s[56:59], s60 offen offset:1024')

def gen_k2(A, name='conv_kernel'):
    A.raw(f'.globl {name}\n.p2align 8\n.type {name},@function\n{name}:')
    A(f'''s_cmp_ge_u32 s2, 256
s_cbranch_scc1 L{name}_end''')
    load_ptrs(A)
    A(f'''v_lshrrev_b32 v1, 6, v0
v_readfirstlane_b32 s3, v1             ; wave
v_and_b32 v1, 63, v0                   ; lane
s_and_b32 s4, s2, 7
s_lshl_b32 s4, s4, 6
s_lshr_b32 s5, s2, 3
s_lshl_b32 s5, s5, 1
s_add_u32 s4, s4, s5                   ; d0
s_and_b32 s5, s3, 3                    ; cv
s_lshr_b32 s6, s5, 1                   ; ch
s_and_b32 s7, s5, 1                    ; br
s_add_u32 s6, s6, s4                   ; d
s_lshl_b32 s42, s6, 12                 ; d*4096
s_cmp_ge_u32 s3, 4
s_cbranch_scc1 L{name}_help''')
    A(f'''s_lshl_b32 s43, s7, 21
s_add_u32 s43, s43, s42
v_lshlrev_b32 v2, 4, v1                ; lane*16
s_mul_i32 s52, s5, {UXS}
s_add_u32 s52, s52, {L_UX}
v_add_u32 v3, s52, v2
v_mov_b32 v40, 0
v_mov_b32 v41, 0
v_mov_b32 v42, 0
v_mov_b32 v43, 0
s_waitcnt lgkmcnt(0)
s_add_u32 s44, s{P['ws']}, s43
s_addc_u32 s45, s{P['ws']+1}, 0
s_mov_b32 s46, 4096
s_mov_b32 s47, 0x00020000''')
    for r in (3, 2, 1, 0):
        A(f'buffer_load_dwordx4 {vr(8+8*r,4)}, v2, s[44:47], 0 offen offset:{1024*r}')
        A(f'buffer_load_dword v{12+8*r}, v2, s[44:47], 0 offen offset:{1024*r+16}')
    A(f'''v_cmp_gt_u32 vcc, 28, v1
s_and_saveexec_b64 s[50:51], vcc
ds_write_b128 v3, v[40:43] offset:4096
ds_write_b128 v3, v[40:43] offset:{4096+UXC}
s_mov_b64 exec, s[50:51]
v_and_b32 v44, 15, v1                  ; m / n
v_lshrrev_b32 v45, 4, v1               ; kg
s_mul_i32 s53, s5, {KXS}
s_add_u32 s53, s53, {L_KX + 16}
v_lshlrev_b32 v4, 4, v44
v_lshl_add_u32 v4, v45, 6, v4
v_add_u32 v4, s53, v4                  ; vK
v_and_b32 v46, 1, v44
v_mul_u32_u24 v5, {UXC}, v46
v_lshrrev_b32 v46, 1, v44
v_lshlrev_b32 v46, 6, v46
v_sub_u32 v5, v5, v46
v_lshl_add_u32 v5, v45, 4, v5
s_add_u32 s54, s52, 448
v_add_u32 v5, s54, v5                  ; vU
s_lshl_b32 s54, s5, 12
s_add_u32 s54, s54, {L_Y}
v_lshlrev_b32 v6, 2, v44
v_lshl_add_u32 v6, v45, 7, v6
v_add_u32 v6, s54, v6                  ; vY''')
    for k, r in enumerate((3, 2, 1, 0)):
        D = 8 + 8 * r
        A(f's_waitcnt vmcnt({6-2*k})')
        for i in range(4):
            A(f'v_alignbit_b32 v{48+4*(k&1)+i}, v{D+i+1}, v{D+i}, 16')
        A(f'ds_write_b128 v3, {vr(D,4)} offset:{UXC + 1024*r}')
        A(f'ds_write_b128 v3, {vr(48+4*(k&1),4)} offset:{1024*r}')
    A('''s_waitcnt lgkmcnt(0)
s_barrier''')
    top = gen_mfma_phase(A, 4, 5, 6)
    A('s_endpgm')
    A.win = []
    A.label(f'L{name}_help')
    A(f'''s_mul_i32 s53, s5, {KXS}
s_add_u32 s53, s53, {L_KX}
v_lshlrev_b32 v2, 2, v1                ; lane*4
v_lshrrev_b32 v3, 2, v1
v_and_b32 v4, 3, v1
v_add_u32 v3, v3, v4
v_lshlrev_b32 v3, 2, v3
v_subrev_u32 v3, 64, v3
v_lshlrev_b32 v4, 4, v1
s_lshl_b32 s61, s4, 1                  ; d0*2
s_waitcnt lgkmcnt(0)
s_add_u32 s48, s{P['ws']}, {WS_KA}
s_addc_u32 s49, s{P['ws']+1}, 0
s_cmp_eq_u32 s7, 0
s_cselect_b32 s44, s48, s{P['ssmk']}
s_cselect_b32 s45, s49, s{P['ssmk']+1}
s_add_u32 s44, s44, s42
s_addc_u32 s45, s45, 0
s_mov_b32 s46, 4096
s_mov_b32 s47, 0x00020000
s_load_dword s62, {ptr('Dskip')}, s61
s_load_dword s63, {ptr('ssmD')}, s61
s_mov_b32 m0, s53
buffer_load_dword v3, s[44:47], 0 offen lds''')
    for i in range(16):
        A(f'''s_add_u32 m0, s53, {256 + 1024*i}
s_mov_b32 s52, {256*i}
buffer_load_dwordx4 v2, s[44:47], s52 offen lds''')
    A(f'''s_add_u32 s48, s{P['ws']}, {WS_G}
s_addc_u32 s49, s{P['ws']+1}, 0
s_mov_b32 s50, 4096
s_mov_b32 s51, 0x00020000
s_lshl_b32 s52, s5, 10
s_add_u32 m0, s52, {L_G}
s_mov_b32 s56, s{P['out']}
buffer_load_dwordx4 v4, s[48:51], s52 offen lds
s_mov_b32 s57, s{P['out']+1}
s_mov_b32 s58, 0x200000
s_mov_b32 s59, 0x00020000
v_subrev_u32 v5, 0x100, v0             ; ht
v_lshlrev_b32 v6, 2, v5                ; 4 ht
v_add_u32 v7, {L_Y}, v6                ; vP+1
v_sub_u32 v8, {L_UX + 1024}, v6        ; vN
v_lshlrev_b32 v9, 11, v5
v_add_u32 v9, s61, v9                  ; vO
s_waitcnt lgkmcnt(0)
s_lshl_b32 s64, s62, 16
s_and_b32 s65, s62, 0xffff0000
s_lshl_b32 s66, s63, 16
s_and_b32 s67, s63, 0xffff0000
v_mov_b32 v10, s64
v_mov_b32 v11, s65
v_mov_b32 v12, s66
v_mov_b32 v13, s67
s_waitcnt vmcnt(0)
s_barrier''')
    for Pp in range(4):
        A('s_barrier')
        gen_epilogue(A, Pp, 6, 8, 9, 10, 12, 16 + 40 * (Pp & 1))
    A('s_endpgm')
    A.win = []
    A.label(f'L{name}_end')
    A('s_endpgm')
    return L_END, top
```

```python
import sys
from asmlib import *
import k1, k2
HDR = open('gated_mix__ssm_conv_s4d__ssm_conv_h3__prompt.s.ref').read().split('; Override launch')[0]
def build(path, stamps=False):
    A = Asm(); A.stamps = stamps
    l1 = k1.gen_k1(A)
    l2, top = k2.gen_k2(A)
    s = HDR
    s += f'; @launch kernel=prep_kernel grid=(256,1,1) block=(512,1,1) lds={l1}\n'
    s += f'; @launch kernel=conv_kernel grid=(256,1,1) block=(512,1,1) lds={l2}\n'
    s += '.amdgcn_target "amdgcn-amd-amdhsa--gfx950"\n.text\n'
    s += A.text()
    s += '.section .rodata,"a"\n' + kdesc('prep_kernel', 132) + kdesc('conv_kernel', 256)
    open(path, 'w').write(s)
    print('lds', l1, l2, 'nops', A.nops)
if __name__ == '__main__':
    if len(sys.argv) > 2: build(sys.argv[2], True)
    build(sys.argv[1] if len(sys.argv) > 1 else 'gated_mix__ssm_conv_s4d__ssm_conv_h3__prompt.s')
```

```python
import re

TRANS = ('v_exp_f32', 'v_log_f32', 'v_rcp_f32', 'v_rsq_f32', 'v_sqrt_f32', 'v_sin_f32', 'v_cos_f32')
NODST_S = ('s_cmp', 's_waitcnt', 's_barrier', 's_nop', 's_branch', 's_cbranch', 's_endpgm', 's_setprio', 's_sleep', 's_bitcmp')

def regs_of(tok):
    tok = tok.strip()
    tok = tok.lstrip('-')
    m = re.fullmatch(r'\|?abs\((.*)\)\|?', tok)
    if m: tok = m.group(1)
    tok = tok.strip('|')
    m = re.fullmatch(r'([vsa])(\d+)', tok)
    if m: return [(m.group(1), int(m.group(2)))]
    m = re.fullmatch(r'([vsa])\[(\d+):(\d+)\]', tok)
    if m: return [(m.group(1), i) for i in range(int(m.group(2)), int(m.group(3)) + 1)]
    if tok == 'vcc': return [('s', 106), ('s', 107)]
    if tok == 'vcc_lo': return [('s', 106)]
    if tok == 'vcc_hi': return [('s', 107)]
    if tok == 'exec': return [('s', 126), ('s', 127)]
    if tok == 'm0': return [('s', 124)]
    return []

class Ins:
    def __init__(self, text):
        self.text = text
        t = text.split(';')[0].strip()
        parts = t.split(None, 1)
        self.op = parts[0]
        rest = parts[1] if len(parts) > 1 else ''
        ops = []; cur = ''; depth = 0
        for ch in rest:
            if ch in '[(': depth += 1
            if ch in '])': depth -= 1
            if ch == ',' and depth == 0: ops.append(cur); cur = ''
            else: cur += ch
        if cur.strip(): ops.append(cur)
        mods = ''
        if ops:
            last = ops[-1].strip().split(None, 1)
            ops[-1] = last[0]
            mods = last[1] if len(last) > 1 else ''
        self.mods = mods
        ops = [o.strip() for o in ops]
        self.ops = ops
        op = self.op
        self.cls = 'other'
        d = []; s = []
        if op.startswith('v_mfma'):
            self.cls = 'sgemm' if op.endswith('_f32') and 'x4_f32' in op or op.endswith('x2_f32') else 'xdl'
            d = regs_of(ops[0]); self.srcA = regs_of(ops[1]); self.srcB = regs_of(ops[2]); self.srcC = regs_of(ops[3])
            s = self.srcA + self.srcB + self.srcC
            if '16x16x32' in op: self.passes = 4
            elif '32x32x16' in op: self.passes = 8
            elif '16x16x4_f32' in op: self.passes = 8
            elif '32x32x2_f32' in op: self.passes = 16
            else: raise Exception('unknown mfma ' + op)
        elif op.startswith('v_'):
            self.cls = 'valu'
            d = regs_of(ops[0])
            rs = ops[1:]
            if op.startswith(('v_add_co', 'v_sub_co', 'v_addc_co', 'v_subb_co', 'v_subrev_co', 'v_mad_u64', 'v_div_scale')):
                d += regs_of(ops[1]); rs = ops[2:]
            for o in rs: s += regs_of(o)
            if op.startswith(('v_fmac', 'v_pk_fmac', 'v_dot2c')) or 'dpp' in op or 'd16' in op or op.startswith('v_writelane'): s += regs_of(ops[0])
            if op.startswith('v_permlane') : d += regs_of(ops[1]); s += regs_of(ops[0])
            if op.startswith('v_cmpx'): d += regs_of('exec')
        elif op.startswith('ds_'):
            self.cls = 'ds'
            if op.startswith(('ds_read', 'ds_bpermute', 'ds_permute', 'ds_swizzle')) or '_rtn' in op:
                d = regs_of(ops[0])
                for o in ops[1:]: s += regs_of(o)
                if 'd16' in op: s += regs_of(ops[0])
            else:
                for o in ops: s += regs_of(o)
        elif op.startswith(('buffer_', 'global_')):
            self.cls = 'vmem'
            islds = re.search(r'\blds\b', mods) is not None or '_lds_' in op
            self.islds = islds
            if ('load' in op) and not islds:
                d = regs_of(ops[0])
                for o in ops[1:]: s += regs_of(o)
            else:
                for o in ops: s += regs_of(o)
                if 'atomic' in op and 'sc0' in mods: d = regs_of(ops[0])
            if islds: s += regs_of('m0')
        elif op.startswith(('s_load', 's_buffer_load', 's_memtime', 's_memrealtime')):
            self.cls = 'smem'
            d = regs_of(ops[0])
            for o in ops[1:]: s += regs_of(o)
        elif op.startswith('s_'):
            self.cls = 'salu'
            if op.startswith(NODST_S):
                for o in ops: s += regs_of(o)
            else:
                d = regs_of(ops[0])
                for o in ops[1:]: s += regs_of(o)
                if 'saveexec' in op: d += regs_of('exec')
        self.d = set(d); self.s = set(s)
        self.trans = op.replace('_e32', '').replace('_e64', '') in TRANS
        self.dpp = 'dpp' in op or 'row_' in mods or 'quad_perm' in mods
        self.states = 1
        if op == 's_nop': self.states = int(ops[0], 0) + 1

def need(p, c):
    n = 0
    pv = {r for r in p.d if r[0] in 'va'}; ps = {r for r in p.d if r[0] == 's'}
    if p.cls == 'valu':
        if c.cls in ('xdl', 'sgemm') and pv & c.s: n = max(n, 2)
        if c.cls in ('xdl', 'sgemm') and ('s', 126) in ps: n = max(n, 4)
        if p.trans and c.cls in ('valu',) and not c.trans and pv & (c.s | c.d): n = max(n, 1)
        if p.trans and c.cls in ('valu',) and c.trans and pv & (c.s): n = max(n, 1)
        if p.trans and c.cls in ('ds', 'vmem') and pv & c.s: n = max(n, 1)
        if c.cls == 'valu' and c.dpp and pv & c.s: n = max(n, 2)
        if c.cls == 'valu' and c.dpp and ('s', 126) in ps: n = max(n, 5)
        if c.cls == 'valu' and c.op.startswith('v_permlane') and pv & c.s: n = max(n, 2)
        if c.cls == 'valu' and c.op.startswith(('v_readlane', 'v_readfirstlane')) and pv & c.s: n = max(n, 1)
        if ps:
            if c.cls == 'vmem' and ps & c.s: n = max(n, 5)
            if c.cls == 'valu' and ps & c.s:
                n = max(n, 4 if c.op.startswith(('v_readlane', 'v_writelane')) else 2)
            if c.cls in ('salu', 'smem') and ps & c.s: n = max(n, 1)
            if ('s', 126) in ps and c.cls == 'valu' and c.op.startswith(('v_readlane', 'v_readfirstlane', 'v_writelane', 'v_permlane')): n = max(n, 4)
        if 'sdwa' in p.op or 'op_sel' in p.mods:
            if c.cls == 'valu' and pv & (c.s | c.d): n = max(n, 1)
    if p.cls == 'salu':
        if ('s', 124) in p.d and c.cls == 'vmem' and getattr(c, 'islds', False): n = max(n, 1)
    if p.cls == 'vmem' and 'store' in p.op and ('x4' in p.op or 'x3' in p.op):
        data = set(regs_of(p.ops[0])) if p.op.startswith('buffer') else set(regs_of(p.ops[1]))
        if data & c.d: n = max(n, 2)
    if p.cls in ('xdl', 'sgemm'):
        idx = {2: 0, 4: 1, 8: 2, 16: 3}[p.passes]
        if p.cls == 'xdl':
            if c.cls in ('xdl', 'sgemm'):
                if pv & set(c.srcA + c.srcB): n = max(n, [5, 8, 12, 20][idx])
                if pv & set(c.srcC):
                    if c.cls == 'xdl' and set(c.srcC) == pv and c.passes == p.passes: n = max(n, [2, 0, 0, 0][idx])
                    else: n = max(n, [4, 6, 10, 18][idx])
                elif pv & c.d: n = max(n, [5, 8, 12, 20][idx])
            elif pv & (c.s | c.d): n = max(n, [5, 8, 12, 20][idx])
            if c.cls == 'valu' and set(p.srcC) & c.d: n = max(n, [1, 3, 7, 15][idx])
        else:
            if c.cls in ('xdl', 'sgemm'):
                if pv & set(c.srcA + c.srcB): n = max(n, [4, 6, 10, 18][idx])
                if pv & set(c.srcC):
                    if c.cls == 'sgemm' and set(c.srcC) == pv: n = max(n, [2, 0, 0, 0][idx])
                    else: n = max(n, [2, 4, 8, 16][idx])
                elif pv & c.d: n = max(n, [4, 6, 10, 18][idx])
            elif pv & (c.s | c.d): n = max(n, [4, 6, 10, 18][idx])
    return n

class Asm:
    def __init__(self):
        self.lines = []
        self.win = []
        self.nops = 0
    def raw(self, text):
        self.lines.append(text)
    def label(self, name):
        self.lines.append(name + ':')
    def comment(self, t):
        self.lines.append('    ; ' + t)
    def fence(self):
        worst = 0; dist = 0
        for p in reversed(self.win):
            w = 0
            if p.cls == 'valu': w = 5
            if p.cls in ('xdl', 'sgemm'): w = {2: 5, 4: 8, 8: 12, 16: 20}[p.passes]
            if p.cls == 'vmem': w = 2
            if p.cls == 'salu': w = 1 if ('s', 124) in p.d else 0
            worst = max(worst, w - dist)
            dist += p.states
        while worst > 0:
            k = min(worst, 16)
            self('s_nop %d' % (k - 1))
            worst -= k
        self.win = []
    def __call__(self, text):
        for ln in text.strip().split('\n'):
            ln = ln.strip()
            if not ln: continue
            if ln.startswith(';'): self.lines.append('    ' + ln); continue
            if ln.endswith(':'): self.label(ln[:-1]); continue
            c = Ins(ln)
            req = 0; dist = 0
            for p in reversed(self.win):
                req = max(req, need(p, c) - dist)
                dist += p.states
                if dist > 24: break
            while req > 0:
                k = min(req, 16)
                nop = Ins('s_nop %d' % (k - 1))
                self.lines.append('    s_nop %d' % (k - 1)); self.win.append(nop); self.nops += 1
                req -= k
            self.lines.append('    ' + ln)
            self.win.append(c)
            if len(self.win) > 40: self.win = self.win[-30:]
    stamps = False
    def stamp(self, i):
        if self.stamps: self(f's_memrealtime s[{72+2*i}:{73+2*i}]')
    def stamp_init(self):
        if self.stamps:
            for i in range(8): self(f's_mov_b64 s[{72+2*i}:{73+2*i}], 0')
            self('s_mov_b32 s90, s2')
            self.stamp(0)
    def stamp_flush(self, ki, wave_sreg):
        if not self.stamps: return
        self('s_waitcnt vmcnt(0) lgkmcnt(0)')
        self.stamp(7)
        self('s_mov_b64 exec, 1')
        self('s_waitcnt lgkmcnt(0)')
        for i in range(8): self(f'v_mov_b32 v{8+i}, s{72+2*i}')
        self(f"""s_lshl_b32 s91, s90, 4
s_add_u32 s91, s91, s{wave_sreg}
s_lshl_b32 s91, s91, 5
s_add_u32 s91, s91, {0x8000000 + ki*0x100000}
v_mov_b32 v16, s91
global_store_dwordx4 v16, v[8:11], s[40:41]
global_store_dwordx4 v16, v[12:15], s[40:41] offset:16""")
    def text(self):
        return '\n'.join(self.lines) + '\n'

def vr(a, n=1):
    return 'v%d' % a if n == 1 else 'v[%d:%d]' % (a, a + n - 1)
def sr(a, n=1):
    return 's%d' % a if n == 1 else 's[%d:%d]' % (a, a + n - 1)

def kdesc(name, vgpr, sgpr=102, extra=''):
    acc = (vgpr + 3) // 4 * 4
    return f""".p2align 6
.amdhsa_kernel {name}
  .amdhsa_next_free_vgpr {vgpr}
  .amdhsa_next_free_sgpr {sgpr}
  .amdhsa_accum_offset {acc}
  .amdhsa_group_segment_fixed_size 0
  .amdhsa_kernarg_size 136
  .amdhsa_user_sgpr_count 2
  .amdhsa_user_sgpr_kernarg_segment_ptr 1
  .amdhsa_system_sgpr_workgroup_id_x 1
  .amdhsa_float_denorm_mode_32 3
{extra}.end_amdhsa_kernel
"""
```

```python
import struct
from asmlib import *

def f2u(x): return struct.unpack('<I', struct.pack('<f', x))[0]
L2E = 1.4426950408889634
L2E_HI = struct.unpack('<f', struct.pack('<I', 0x3FB8AA00))[0]
L2E_LO = L2E - L2E_HI
INV2PI = 0.15915494309189535

WS_UR = 0
WS_KVR = 2 << 20
WS_KA = 4 << 20
WS_G = 6 << 20

def load_ptrs(A):
    A('''s_load_dwordx16 s[8:23], s[0:1], 0
s_load_dwordx16 s[24:39], s[0:1], 64
s_load_dwordx2 s[40:41], s[0:1], 128''')
P = dict(u=8, logA=10, Aim=12, Cr=14, Ci=16, logdt=18, Dskip=20, q=22, k=24, v=26, shk=28, ssmk=30, ssmD=32, gw=34, out=36, dbg=38, ws=40)
def ptr(n): return sr(P[n], 2)

def rnd(A, d, s):
    A(f'v_cvt_pk_bf16_f32 {vr(d)}, 0, {vr(s)}')
def lo2f(A, d, s): A(f'v_lshlrev_b32 {vr(d)}, 16, {vr(s)}')
HIMASK = ['0xffff0000']
def hi2f(A, d, s): A(f'v_and_b32 {vr(d)}, {HIMASK[0]}, {vr(s)}')

def bfexp(A, d, x, t0, t1, sHI, sLO):
    A(f'''v_mul_f32 {vr(t0)}, {sr(sHI)}, {vr(x)}
v_rndne_f32 {vr(t1)}, {vr(t0)}
v_sub_f32 {vr(t0)}, {vr(t0)}, {vr(t1)}
v_fma_f32 {vr(t0)}, {vr(x)}, {sr(sLO)}, {vr(t0)}
v_exp_f32 {vr(t0)}, {vr(t0)}
v_cvt_i32_f32 {vr(t1)}, {vr(t1)}
v_ldexp_f32 {vr(t0)}, {vr(t0)}, {vr(t1)}''')
    rnd(A, d, t0)

def gen_T(A, lds_base):
    U0, U1, V0, V1 = 8, 12, 16, 20
    K = [24, 28, 32, 36, 40]
    SK = 44
    GU, GW = 60, 68
    vo, vk1, vk2, vk3, vsk, vg, vgw = 1, 2, 3, 4, 5, 6, 7
    T = 76
    A(f'''v_and_b32 v{T}, 63, v0
v_lshrrev_b32 v{T+1}, 1, v{T}          ; rp
v_and_b32 v{T+2}, 1, v{T}              ; h
s_and_b32 s4, s2, 7                    ; stripe
s_lshr_b32 s5, s2, 3                   ; j
s_lshl_b32 s6, s4, 7
s_lshl_b32 s7, s3, 5
s_add_u32 s6, s6, s7                   ; 128 s + 32 w
v_lshlrev_b32 v{T+3}, 4, v{T+2}
v_add_u32 v{T+3}, s6, v{T+3}           ; cb
v_lshlrev_b32 v{vsk}, 2, v{T+3}
s_lshl_b32 s7, s5, 16                  ; j*64*1024
v_lshlrev_b32 v{vo}, 11, v{T+1}
v_add3_u32 v{vo}, v{vo}, v{T+3}, s7    ; voff
v_subrev_u32 v{vk1}, 0x400, v{vo}
v_subrev_u32 v{vk2}, 0x800, v{vo}
v_subrev_u32 v{vk3}, 0xc00, v{vo}
v_and_b32 v{vgw}, 31, v0
v_lshlrev_b32 v{vgw}, 5, v{vgw}        ; ch16*32
v_lshrrev_b32 v{vg}, 5, v0
v_lshlrev_b32 v{vg}, 10, v{vg}
s_lshl_b32 s7, s2, 13                  ; 8 rows * 1024 * b
v_add3_u32 v{vg}, v{vg}, v{vgw}, s7
s_waitcnt lgkmcnt(0)
s_mov_b32 s44, s{P['k']}
s_mov_b32 s45, s{P['k']+1}
s_mov_b32 s46, 0x200000
s_mov_b32 s47, 0x00020000
buffer_load_dwordx4 {vr(K[0],4)}, v{vk3}, s[44:47], 0 offen
buffer_load_dwordx4 {vr(K[1],4)}, v{vk2}, s[44:47], 0 offen
buffer_load_dwordx4 {vr(K[2],4)}, v{vk1}, s[44:47], 0 offen
buffer_load_dwordx4 {vr(K[3],4)}, v{vo}, s[44:47], 0 offen
buffer_load_dwordx4 {vr(K[4],4)}, v{vo}, s[44:47], 0 offen offset:1024
global_load_dwordx4 {vr(SK,4)}, v{vsk}, {ptr('shk')}
global_load_dwordx4 {vr(SK+4,4)}, v{vsk}, {ptr('shk')} offset:16
global_load_dwordx4 {vr(SK+8,4)}, v{vsk}, {ptr('shk')} offset:32
global_load_dwordx4 {vr(SK+12,4)}, v{vsk}, {ptr('shk')} offset:48
global_load_dwordx4 {vr(V0,4)}, v{vo}, {ptr('v')}
global_load_dwordx4 {vr(V1,4)}, v{vo}, {ptr('v')} offset:1024
global_load_dwordx4 {vr(U0,4)}, v{vo}, {ptr('u')}
global_load_dwordx4 {vr(U1,4)}, v{vo}, {ptr('u')} offset:1024
global_load_dwordx4 {vr(GU,4)}, v{vg}, {ptr('u')}
global_load_dwordx4 {vr(GU+4,4)}, v{vg}, {ptr('u')} offset:16
global_load_dwordx4 {vr(GW,4)}, v{vgw}, {ptr('gw')}
global_load_dwordx4 {vr(GW+4,4)}, v{vgw}, {ptr('gw')} offset:16''')
    A(f'''s_mul_i32 s7, s3, 4224
s_add_u32 s7, s7, {lds_base}
v_mul_u32_u24 v2, 1088, v{T+2}
v_lshlrev_b32 v3, 2, v{T+1}
v_sub_u32 v2, v2, v3
v_add_u32 v2, 124, v2
v_add_u32 v2, s7, v2
v_lshlrev_b32 v3, 4, v{T}
v_add_u32 v3, s7, v3
v_lshrrev_b32 v4, 3, v{T}              ; ch
v_lshlrev_b32 v4, 12, v4
v_and_b32 v5, 7, v{T}
v_lshlrev_b32 v5, 4, v5
v_add_u32 v4, v4, v5
s_lshl_b32 s6, s6, 11                  ; (64 s + 16 w) * 4096
s_lshl_b32 s7, s5, 7
s_sub_u32 s7, 3968, s7                 ; (1984 - 64 j)*2
s_add_u32 s6, s6, s7
v_add_u32 v4, s6, v4
v_add_u32 v5, {WS_KVR}, v4
v_add_u32 v6, 0x8000, v4
v_add_u32 v7, 0x8000, v5
s_mov_b32 s48, 0x05040100
s_mov_b32 s49, 0x07060302''')
    W = T
    KP = T + 8
    VP = T + 18
    AC = T + 22
    PR = T + 26
    O = T + 30
    A.stamp(1)
    A('s_waitcnt vmcnt(6)')
    A.stamp(2)
    for c2 in range(4):
        for t in range(4):
            for ee in range(2):
                src = SK + 2 * (2 * c2 + ee) + (t >> 1)
                (hi2f if t & 1 else lo2f)(A, W + 2 * t + ee, src)
        for i in range(5):
            lo2f(A, KP + 2 * i, K[i] + c2); hi2f(A, KP + 2 * i + 1, K[i] + c2)
        lo2f(A, VP, V0 + c2); hi2f(A, VP + 1, V0 + c2); lo2f(A, VP + 2, V1 + c2); hi2f(A, VP + 3, V1 + c2)
        for a in range(2):
            A(f'v_pk_mul_f32 {vr(AC+2*a,2)}, {vr(KP+2*a,2)}, {vr(W+6,2)}')
        for a in range(2):
            rnd(A, AC + 2 * a, AC + 2 * a); rnd(A, AC + 2 * a + 1, AC + 2 * a + 1)
        for tp in range(1, 4):
            for a in range(2):
                A(f'v_pk_mul_f32 {vr(PR+2*a,2)}, {vr(KP+2*(a+tp),2)}, {vr(W+2*(3-tp),2)}')
            for a in range(2):
                rnd(A, PR + 2 * a, PR + 2 * a); rnd(A, PR + 2 * a + 1, PR + 2 * a + 1)
            for a in range(2):
                A(f'v_pk_add_f32 {vr(AC+2*a,2)}, {vr(AC+2*a,2)}, {vr(PR+2*a,2)}')
            for a in range(2):
                rnd(A, AC + 2 * a, AC + 2 * a); rnd(A, AC + 2 * a + 1, AC + 2 * a + 1)
        for a in range(2):
            A(f'v_pk_mul_f32 {vr(AC+2*a,2)}, {vr(AC+2*a,2)}, {vr(VP+2*a,2)}')
        A(f'''v_cvt_pk_bf16_f32 v{O+2*c2}, v{AC+2}, v{AC}
v_cvt_pk_bf16_f32 v{O+2*c2+1}, v{AC+3}, v{AC+1}
ds_write_b32 v2, v{O+2*c2} offset:{2112 + (2*c2)*128}
ds_write_b32 v2, v{O+2*c2+1} offset:{2112 + (2*c2+1)*128}''')
    A('s_waitcnt vmcnt(4) lgkmcnt(4)')
    O += 8
    for c2 in range(4):
        A(f'''v_perm_b32 v{O+2*c2}, v{U0+c2}, v{U1+c2}, s48
v_perm_b32 v{O+2*c2+1}, v{U0+c2}, v{U1+c2}, s49
ds_write_b32 v2, v{O+2*c2} offset:{(2*c2)*128}
ds_write_b32 v2, v{O+2*c2+1} offset:{(2*c2+1)*128}''')
    A.stamp(3)
    R = 8
    A(f'''s_waitcnt lgkmcnt(0)
ds_read_b128 {vr(R,4)}, v3 offset:2112
ds_read_b128 {vr(R+4,4)}, v3 offset:{2112+1088}
ds_read_b128 {vr(R+8,4)}, v3
ds_read_b128 {vr(R+12,4)}, v3 offset:1088
s_waitcnt lgkmcnt(3)
global_store_dwordx4 v5, {vr(R,4)}, {ptr('ws')}
s_waitcnt lgkmcnt(2)
global_store_dwordx4 v7, {vr(R+4,4)}, {ptr('ws')}
s_waitcnt lgkmcnt(1)
global_store_dwordx4 v4, {vr(R+8,4)}, {ptr('ws')}
s_waitcnt lgkmcnt(0)
global_store_dwordx4 v6, {vr(R+12,4)}, {ptr('ws')}''')
    A.stamp(4)
    A('s_waitcnt vmcnt(4)')
    X = 24; Y = 40
    for i in range(8):
        lo2f(A, X + 2 * i, GU + i); hi2f(A, X + 2 * i + 1, GU + i)
        lo2f(A, Y + 2 * i, GW + i); hi2f(A, Y + 2 * i + 1, GW + i)
    for i in range(8):
        A(f'v_pk_mul_f32 {vr(X+2*i,2)}, {vr(X+2*i,2)}, {vr(Y+2*i,2)}')
    for i in range(16): rnd(A, X + i, X + i)
    for st in (4, 2, 1):
        for i in range(st):
            A(f'v_pk_add_f32 {vr(X+2*i,2)}, {vr(X+2*i,2)}, {vr(X+2*(i+st),2)}')
    A(f'v_add_f32 v{X}, v{X}, v{X+1}')
    for sh in (1, 2, 4, 8):
        A(f'v_add_f32_dpp v{X}, v{X}, v{X} row_shr:{sh} row_mask:0xf bank_mask:0xf bound_ctrl:0')
    A(f'v_add_f32_dpp v{X}, v{X}, v{X} row_bcast:15 row_mask:0xa bank_mask:0xf')
    rnd(A, X, X)
    A(f'''v_mul_f32 v{X}, {f2u(-L2E):#x}, v{X}
v_exp_f32 v{X}, v{X}
v_add_f32 v{X}, 1.0, v{X}
v_rcp_f32 v{X}, v{X}
v_cvt_pk_bf16_f32 v{X}, v{X}, v{X}
v_lshrrev_b32 v1, 5, v0
v_lshlrev_b32 v1, 1, v1
s_lshl_b32 s7, s2, 4
s_add_u32 s7, s7, {WS_G}
v_add_u32 v1, s7, v1
v_and_b32 v2, 31, v0
v_cmp_eq_u32 vcc, 31, v2
s_and_saveexec_b64 s[50:51], vcc
global_store_short v1, v{X}, {ptr('ws')}''')
    A.stamp(5)
    A.stamp_flush(0, 3)
    A('s_endpgm')

def gen_K(A, lds_par, lds_kc):
    PR = 16
    A(f'''s_sub_u32 s4, s3, 4                    ; kw 0..3
s_lshr_b32 s5, s4, 1                   ; cc
s_and_b32 s6, s4, 1                    ; mh
s_lshl_b32 s7, s2, 1
s_add_u32 s7, s7, s5                   ; channel d
v_and_b32 v1, 63, v0                   ; lane
s_lshl_b32 s42, s7, 8                  ; d*256 bytes
s_lshl_b32 s43, s6, 7
s_add_u32 s42, s42, s43
v_lshlrev_b32 v2, 1, v1
v_add_u32 v2, s42, v2
s_lshl_b32 s43, s7, 1
v_mov_b32 v3, s43
s_waitcnt lgkmcnt(0)
global_load_ushort v4, v3, {ptr('logdt')}
global_load_ushort v5, v2, {ptr('logA')}
global_load_ushort v6, v2, {ptr('Aim')}
global_load_ushort v7, v2, {ptr('Cr')}
global_load_ushort v8, v2, {ptr('Ci')}
s_mov_b32 s44, {f2u(L2E_HI):#x}
s_mov_b32 s45, {f2u(L2E_LO):#x}
v_and_b32 v9, 15, v1                   ; idx
v_lshrrev_b32 v10, 4, v1               ; kq
v_lshlrev_b32 v11, 3, v9
v_cvt_f32_u32 v84, v11
v_and_b32 v11, 7, v9
v_and_b32 v12, 8, v9
v_lshl_or_b32 v11, v12, 4, v11
v_cvt_f32_u32 v85, v11                 ; pH0
v_and_b32 v11, 3, v9
v_lshlrev_b32 v11, 1, v11
v_and_b32 v12, 4, v9
v_lshl_or_b32 v11, v12, 5, v11
v_add_u32 v11, 0x100, v11              ; rows<8
v_and_b32 v12, 1, v9
v_lshlrev_b32 v12, 2, v12
v_and_b32 v13, 6, v9
v_lshl_or_b32 v12, v13, 6, v12
v_add_u32 v12, 0x200, v12              ; rows>=8
v_cmp_gt_u32 vcc, 8, v9
v_cndmask_b32 v11, v12, v11, vcc
v_cvt_f32_u32 v86, v11                 ; pH1
v_lshlrev_b32 v11, 7, v9
v_add_u32 v11, 0x400, v11
v_cvt_f32_u32 v87, v11                 ; pH2
s_lshl_b32 s46, s4, 10
s_add_u32 s46, s46, {lds_par}
v_lshlrev_b32 v11, 4, v1
v_add_u32 v11, s46, v11
v_lshlrev_b32 v12, 4, v10
v_add_u32 v12, s46, v12
s_waitcnt vmcnt(0)
v_lshlrev_b32 v4, 16, v4
v_lshlrev_b32 v5, 16, v5
v_lshlrev_b32 v6, 16, v6
v_lshlrev_b32 v7, 16, v7
v_lshlrev_b32 v8, 16, v8''')
    A.stamp(2)
    bfexp(A, 4, 4, 13, 14, 44, 45)
    bfexp(A, 5, 5, 13, 14, 44, 45)
    A(f'''v_mul_f32 v5, v5, v4
v_mul_f32 v80, {f2u(-L2E):#x}, v5
v_mul_f32 v6, v6, v4
v_mul_f32 v81, {f2u(INV2PI):#x}, v6    ; b'
v_add_f32 v4, v4, v4
v_mul_f32 v82, v7, v4                  ; cr
v_mul_f32 v83, v8, v4                  ; ci
ds_write_b128 v11, v[80:83]
s_waitcnt lgkmcnt(0)''')
    for kp in range(8):
        A(f'ds_read_b128 {vr(PR+4*kp,4)}, v12 offset:{64*kp}')
    A.stamp(3)
    ACC = [88, 92, 96]
    POS = [84, 85, 86, 87]
    M, TH, C, S = 100, 104, 108, 112
    OUT = [116, 124]
    pend = []
    def interleave(vlist):
        nonlocal pend
        n = len(vlist); k = len(pend)
        pos = [int((i + 0.5) * n / k) for i in range(k)] if k else []
        j = 0
        for i, ins in enumerate(vlist):
            while j < k and pos[j] == i:
                A(pend[j]); j += 1
            A(ins)
        while j < k: A(pend[j]); j += 1
        pend = []
    for kp in range(16):
        a_, b_, cr, ci = [PR + 4 * kp + i for i in range(4)]
        O = OUT[kp & 1]
        A(f's_waitcnt lgkmcnt({min(7, 15-kp)})')
        if kp < 8: A(f'ds_read_b128 {vr(PR+4*(kp+8),4)}, v12 offset:{64*(kp+8)}')
        vl = []
        for e in range(4): vl.append(f'v_mul_f32 v{TH+e}, v{b_}, v{POS[e]}')
        for e in range(4): vl.append(f'v_mul_f32 v{M+e}, v{a_}, v{POS[e]}')
        for e in range(4): vl.append(f'v_fract_f32 v{TH+e}, v{TH+e}')
        for e in range(4): vl.append(f'v_exp_f32 v{M+e}, v{M+e}')
        for e in range(4): vl.append(f'v_cos_f32 v{C+e}, v{TH+e}')
        for e in range(4): vl.append(f'v_sin_f32 v{S+e}, v{TH+e}')
        vl.append(f'v_mul_f32 v{C}, v{M}, v{C}')
        vl.append(f'v_mul_f32 v{S}, v{M}, v{S}')
        for e in range(1, 4):
            vl.append(f'v_mul_f32 v{O+2*(e-1)}, v{M+e}, v{C+e}')
            vl.append(f'v_mul_f32 v{O+2*(e-1)+1}, v{M+e}, v{S+e}')
        vl.append(f'v_mul_f32 v{O+6}, v{cr}, v{C}')
        vl.append(f'v_mul_f32 v{O+7}, v{cr}, v{S}')
        vl.append(f'v_fma_f32 v{O+6}, -v{ci}, v{S}, v{O+6}')
        vl.append(f'v_fma_f32 v{O+7}, -v{ci}, v{C}, -v{O+7}')
        interleave(vl)
        for tt in range(3):
            c0 = '0' if kp == 0 else vr(ACC[tt], 4)
            pend.append(f'v_mfma_f32_16x16x4_f32 {vr(ACC[tt],4)}, v{O+2*tt}, v{O+6}, {c0}')
        for tt in range(3):
            pend.append(f'v_mfma_f32_16x16x4_f32 {vr(ACC[tt],4)}, v{O+2*tt+1}, v{O+7}, {vr(ACC[tt],4)}')
    vl = [f's_mul_i32 s46, s4, 3072',
          f's_add_u32 s46, s46, {lds_kc}',
          'v_and_b32 v11, 1, v10', 'v_lshlrev_b32 v11, 4, v11', 'v_lshrrev_b32 v12, 1, v10', 'v_lshl_or_b32 v11, v12, 9, v11',
          'v_lshl_add_u32 v11, v9, 5, v11', 'v_add_u32 v11, s46, v11',
          'v_lshlrev_b32 v13, 8, v10', 'v_lshl_add_u32 v14, v9, 4, v13', 'v_lshl_add_u32 v15, v9, 3, v13',
          'v_cmp_gt_u32 vcc, 2, v10', 'v_cndmask_b32 v14, v15, v14, vcc', 'v_add_u32 v14, s46, v14',
          'v_mov_b32 v15, 0x80', 'v_cndmask_b32 v15, v15, 8, vcc', 'v_add_u32 v15, v14, v15',
          'v_lshl_add_u32 v13, v9, 2, v13', 'v_add_u32 v13, s46, v13']
    interleave(vl)
    A(f'''ds_write_b128 v11, {vr(ACC[0],4)}
ds_write_b64 v14, {vr(ACC[1],2)} offset:1024
ds_write_b64 v15, {vr(ACC[1]+2,2)} offset:1024
ds_write_b32 v13, v{ACC[2]} offset:2048
ds_write_b32 v13, v{ACC[2]+1} offset:2112
ds_write_b32 v13, v{ACC[2]+2} offset:2176
ds_write_b32 v13, v{ACC[2]+3} offset:2240''')
    A.stamp(4)
    CI = 16
    A(f'''v_subrev_u32 v1, 0x100, v0
v_lshlrev_b32 v2, 3, v1''')
    for i in range(8):
        A(f'''v_add_u32 v3, {i}, v2
v_cvt_f32_u32 v4, v3
v_cvt_pk_bf16_f32 v4, v4, 0
v_subrev_u32 v4, {133*128}, v4
v_cmp_gt_u32 vcc, 0x80, v3
v_cndmask_b32 v4, v4, v3, vcc
v_lshlrev_b32 v{CI+i}, 2, v4
v_add_u32 v{CI+i}, {lds_kc}, v{CI+i}''')
    A('''s_waitcnt lgkmcnt(0)
s_barrier''')
    A.stamp(5)
    RD = 32
    for i in range(8):
        A(f'ds_read2st64_b32 {vr(RD+4*i,2)}, v{CI+i} offset0:0 offset1:12')
        A(f'ds_read2st64_b32 {vr(RD+4*i+2,2)}, v{CI+i} offset0:24 offset1:36')
        if i == 3:
            A('s_waitcnt lgkmcnt(0)')
    A(f'''s_lshl_b32 s42, s2, 13
s_add_u32 s42, s42, {WS_KA}
v_lshlrev_b32 v2, 4, v1
v_add_u32 v2, s42, v2
v_add_u32 v3, 0x1000, v2
s_waitcnt lgkmcnt(0)''')
    for i in range(8):
        A(f'v_add_f32 v{RD+4*i}, v{RD+4*i}, v{RD+4*i+1}')
        A(f'v_add_f32 v{RD+4*i+2}, v{RD+4*i+2}, v{RD+4*i+3}')
    for i in range(4):
        A(f'v_cvt_pk_bf16_f32 v{64+i}, v{RD+8*i}, v{RD+8*i+4}')
        A(f'v_cvt_pk_bf16_f32 v{68+i}, v{RD+8*i+2}, v{RD+8*i+6}')
    A(f'''global_store_dwordx4 v2, v[64:67], {ptr('ws')}
global_store_dwordx4 v3, v[68:71], {ptr('ws')}''')
    A.stamp(6)
    A.stamp_flush(0, 3)
    A('s_endpgm')

def gen_k1(A, name='prep_kernel'):
    A.raw(f'.globl {name}\n.p2align 8\n.type {name},@function\n{name}:')
    A(f'''s_cmp_ge_u32 s2, 256
s_cbranch_scc1 L{name}_end''')
    A.stamp_init()
    load_ptrs(A)
    A(f'''v_lshrrev_b32 v1, 6, v0
v_readfirstlane_b32 s3, v1
s_cmp_ge_u32 s3, 4
s_cbranch_scc1 L{name}_kgen''')
    LDS_T = 0; LDS_PAR = 4 * 4224; LDS_KC = LDS_PAR + 4096
    gen_T(A, LDS_T)
    A.win = []
    A.label(f'L{name}_kgen')
    gen_K(A, LDS_PAR, LDS_KC)
    A.win = []
    A.label(f'L{name}_end')
    A('s_endpgm')
    return LDS_KC + 4 * 3072
```

```python
from asmlib import *
from k1 import *

KXS = 16640
UXC = 4576
UXS = 2 * UXC
L_KX = 0
L_UX = L_KX + 4 * KXS
L_Y = L_UX + 4 * UXS
L_G = L_Y + 4 * 4096
L_END = L_G + 4096

def mfma_list():
    ml = []
    for Pp in range(4):
        t0, t1 = 2 * Pp, 2 * Pp + 1
        for c in range(8):
            for b in range(t1, -1, -1):
                e = 8 * b - c
                ml.append((Pp, t1, e, 8 * (t1 - b) + c))
                if b <= t0: ml.append((Pp, t0, e, 8 * (t0 - b) + c))
    return ml

def gen_mfma_phase(A, vK, vU, vY, NC=46, NKR=4, NUR=6, LA=10, base=8):
    ml = mfma_list()
    ACC = base
    TMP = ACC + 16
    UR = TMP + 4
    KR = UR + 4 * NUR
    KC = KR + 4 * NKR
    top = KC + 4 * NC
    assert top <= 256, top
    loads = []; cur = {}
    uring = [None] * NUR; kring = [None] * NKR; ui = 0; ki = 0
    use = []
    for mi, (Pp, t, e, s) in enumerate(ml):
        ku = ('U', e, Pp)
        if ku not in cur:
            prev = uring[ui % NUR]
            rec = dict(kind='U', idx=e, reg=UR + 4 * (ui % NUR), first=mi, last=mi, prev=prev)
            if prev is not None: cur.pop(prev['key'], None)
            rec['key'] = ku; uring[ui % NUR] = rec; ui += 1; cur[ku] = rec; loads.append(rec)
        cur[ku]['last'] = mi
        if s < NC:
            kk = ('K', s)
            if kk not in cur:
                rec = dict(kind='K', idx=s, reg=KC + 4 * s, first=mi, last=mi, prev=None, key=kk)
                cur[kk] = rec; loads.append(rec)
        else:
            kk = ('K', s, Pp)
            if kk not in cur:
                prev = kring[ki % NKR]
                rec = dict(kind='K', idx=s, reg=KR + 4 * (ki % NKR), first=mi, last=mi, prev=prev, key=kk)
                if prev is not None: cur.pop(prev['key'], None)
                kring[ki % NKR] = rec; ki += 1; cur[kk] = rec; loads.append(rec)
        cur[kk]['last'] = mi
        use.append((cur[ku], cur[kk]))
    fifo = []
    def wait_for(recs):
        n = None
        for r in recs:
            if r in fifo_ids():
                pos = fifo_ids().index(r)
                k = len(fifo) - 1 - pos
                n = k if n is None else min(n, k)
        if n is not None:
            A(f's_waitcnt lgkmcnt({n})')
            del fifo[:len(fifo) - n]
    def fifo_ids(): return fifo
    li = 0
    started = set()
    pass_end = {}
    for mi, (Pp, t, e, s) in enumerate(ml): pass_end[Pp] = mi
    events = {}
    def ywrite(Pp):
        recs = []
        for t in (2 * Pp, 2 * Pp + 1):
            a = ACC + 4 * ((Pp & 1) * 2 + (t & 1))
            tm = TMP + 2 * (t & 1)
            A(f'v_cvt_pk_bf16_f32 v{tm}, v{a}, v{a+1}')
            A(f'v_cvt_pk_bf16_f32 v{tm+1}, v{a+2}, v{a+3}')
            A(f'ds_write_b32 v{vY}, v{tm} offset:{512*t}')
            r = object(); fifo.append(r); recs.append(r)
            A(f'ds_write_b32 v{vY}, v{tm+1} offset:{512*t+64}')
            r = object(); fifo.append(r); recs.append(r)
        return recs
    ywrecs = {}
    nl = 0
    for mi, (Pp, t, e, s) in enumerate(ml):
        if Pp > 0 and mi == pass_end[Pp - 1] + 4:
            while len(fifo) > 11:
                wait_for([fifo[len(fifo) - 12]])
            ywrecs[Pp - 1] = ywrite(Pp - 1)
        if Pp > 0 and mi == pass_end[Pp - 1] + 8:
            wait_for(ywrecs[Pp - 1]); A('s_barrier'); A.stamp(2 + Pp)
        issued = 0
        while li < len(loads):
            r = loads[li]
            if r['prev'] is not None and r['prev']['last'] >= mi: break
            must = r['first'] <= mi
            if not must and (r['first'] > mi + LA or issued >= 2 or len(fifo) >= 14): break
            if len(fifo) >= 15: wait_for([fifo[0]])
            if r['kind'] == 'U':
                A(f"ds_read_b128 {vr(r['reg'],4)}, v{vU} offset:{64*(56-r['idx'])}")
            else:
                A(f"ds_read_b128 {vr(r['reg'],4)}, v{vK} offset:{256*r['idx']}")
            fifo.append(r); li += 1; issued += 1; nl += 1
        ru, rk = use[mi]
        assert loads.index(ru) < li and loads.index(rk) < li, (mi,)
        wait_for([ru, rk])
        a = ACC + 4 * ((Pp & 1) * 2 + (t & 1))
        c = vr(a, 4) if t in started else '0'
        started.add(t)
        A(f"v_mfma_f32_16x16x32_bf16 {vr(a,4)}, {vr(ru['reg'],4)}, {vr(rk['reg'],4)}, {c}")
    A.stamp(6)
    recs = ywrite(3)
    wait_for(recs); A('s_barrier')
    print('mfma', len(ml), 'loads', nl, 'top reg', top)
    return top

def gen_epilogue(A, Pp, vP, vN, vO, DP, SP, R):
    Y = R
    U = R + 4
    G = R + 8
    A(f'ds_read2st64_b32 {vr(Y,2)}, v{vP} offset0:{(L_Y + 1024*Pp)//256} offset1:{(L_Y + 4096 + 1024*Pp)//256}') if False else None
    for cv in range(4):
        A(f'ds_read_b32 v{Y+cv}, v{vP+1} offset:{4096*cv + 1024*Pp}')
    for cv in range(4):
        off = L_UX + UXS * cv + UXC + 4092 - 1024 * Pp - 1024
        A(f'ds_read_b32 v{U+cv}, v{vN} offset:{off - L_UX}')
    A(f'ds_read_b32 v{G}, v{vP+1} offset:{16384 + 1024*Pp}')
    UP = R + 10
    KV = R + 14
    YA = R + 18
    YB = R + 22
    GG = R + 26
    OM = R + 28
    T1 = R + 30
    O = R + 34
    A('s_waitcnt lgkmcnt(0)')
    for ch in range(2):
        hi2f(A, UP + ch, U + 2 * ch); lo2f(A, UP + 2 + ch, U + 2 * ch)
        hi2f(A, KV + ch, U + 2 * ch + 1); lo2f(A, KV + 2 + ch, U + 2 * ch + 1)
        lo2f(A, YA + ch, Y + 2 * ch); hi2f(A, YA + 2 + ch, Y + 2 * ch)
        lo2f(A, YB + ch, Y + 2 * ch + 1); hi2f(A, YB + 2 + ch, Y + 2 * ch + 1)
    lo2f(A, GG, G); hi2f(A, GG + 1, G)
    A(f'v_sub_f32 v{OM}, 1.0, v{GG}')
    A(f'v_sub_f32 v{OM+1}, 1.0, v{GG+1}')
    rnd(A, OM, OM); rnd(A, OM + 1, OM + 1)
    def r4(x):
        for i in range(4): rnd(A, x + i, x + i)
    for a in range(2): A(f'v_pk_mul_f32 {vr(T1+2*a,2)}, {vr(UP+2*a,2)}, {vr(DP,2)}')
    for a in range(2): A(f'v_pk_mul_f32 {vr(KV+2*a,2)}, {vr(KV+2*a,2)}, {vr(SP,2)}')
    r4(T1); r4(KV)
    for a in range(2): A(f'v_pk_add_f32 {vr(YA+2*a,2)}, {vr(YA+2*a,2)}, {vr(T1+2*a,2)}')
    for a in range(2): A(f'v_pk_add_f32 {vr(YB+2*a,2)}, {vr(YB+2*a,2)}, {vr(KV+2*a,2)}')
    r4(YA); r4(YB)
    for a in range(2): A(f'v_pk_mul_f32 {vr(YB+2*a,2)}, {vr(YB+2*a,2)}, {vr(UP+2*a,2)}')
    for a in range(2):
        for ch in range(2): A(f'v_mul_f32 v{YA+2*a+ch}, v{YA+2*a+ch}, v{GG+a}')
    r4(YB); r4(YA)
    for a in range(2):
        for ch in range(2): A(f'v_mul_f32 v{YB+2*a+ch}, v{YB+2*a+ch}, v{OM+a}')
    r4(YB)
    for a in range(2): A(f'v_pk_add_f32 {vr(YA+2*a,2)}, {vr(YA+2*a,2)}, {vr(YB+2*a,2)}')
    for a in range(2): A(f'v_cvt_pk_bf16_f32 v{O+a}, v{YA+2*a}, v{YA+2*a+1}')
    A(f's_mov_b32 s60, {Pp * 512 * 1024}')
    A(f'buffer_store_dword v{O}, v{vO}, s[56:59], s60 offen')
    A(f'buffer_store_dword v{O+1}, v{vO}, s[56:59], s60 offen offset:1024')

def gen_k2(A, name='conv_kernel'):
    A.raw(f'.globl {name}\n.p2align 8\n.type {name},@function\n{name}:')
    A(f'''s_cmp_ge_u32 s2, 256
s_cbranch_scc1 L{name}_end''')
    A.stamp_init()
    load_ptrs(A)
    A(f'''v_lshrrev_b32 v1, 6, v0
v_readfirstlane_b32 s3, v1             ; wave
v_and_b32 v1, 63, v0                   ; lane
s_and_b32 s4, s2, 7
s_lshl_b32 s4, s4, 6
s_lshr_b32 s5, s2, 3
s_lshl_b32 s5, s5, 1
s_add_u32 s4, s4, s5                   ; d0
s_and_b32 s5, s3, 3                    ; cv
s_lshr_b32 s6, s5, 1                   ; ch
s_and_b32 s7, s5, 1                    ; br
s_add_u32 s6, s6, s4                   ; d
s_lshl_b32 s42, s6, 12                 ; d*4096
s_cmp_ge_u32 s3, 4
s_cbranch_scc1 L{name}_help''')
    A(f'''s_lshl_b32 s43, s7, 21
s_add_u32 s43, s43, s42
v_lshlrev_b32 v2, 4, v1                ; lane*16
s_mul_i32 s52, s5, {UXS}
s_add_u32 s52, s52, {L_UX}
v_add_u32 v3, s52, v2
v_mov_b32 v40, 0
v_mov_b32 v41, 0
v_mov_b32 v42, 0
v_mov_b32 v43, 0
s_waitcnt lgkmcnt(0)
s_add_u32 s44, s{P['ws']}, s43
s_addc_u32 s45, s{P['ws']+1}, 0
s_mov_b32 s46, 4096
s_mov_b32 s47, 0x00020000''')
    for r in (3, 2, 1, 0):
        A(f'buffer_load_dwordx4 {vr(8+8*r,4)}, v2, s[44:47], 0 offen offset:{1024*r}')
        A(f'buffer_load_dword v{12+8*r}, v2, s[44:47], 0 offen offset:{1024*r+16}')
    A(f'''v_cmp_gt_u32 vcc, 28, v1
s_and_saveexec_b64 s[50:51], vcc
ds_write_b128 v3, v[40:43] offset:4096
ds_write_b128 v3, v[40:43] offset:{4096+UXC}
s_mov_b64 exec, s[50:51]
v_and_b32 v44, 15, v1                  ; m / n
v_lshrrev_b32 v45, 4, v1               ; kg
s_mul_i32 s53, s5, {KXS}
s_add_u32 s53, s53, {L_KX + 16}
v_lshlrev_b32 v4, 4, v44
v_lshl_add_u32 v4, v45, 6, v4
v_add_u32 v4, s53, v4                  ; vK
v_and_b32 v46, 1, v44
v_mul_u32_u24 v5, {UXC}, v46
v_lshrrev_b32 v46, 1, v44
v_lshlrev_b32 v46, 6, v46
v_sub_u32 v5, v5, v46
v_lshl_add_u32 v5, v45, 4, v5
s_add_u32 s54, s52, 448
v_add_u32 v5, s54, v5                  ; vU
s_lshl_b32 s54, s5, 12
s_add_u32 s54, s54, {L_Y}
v_lshlrev_b32 v6, 2, v44
v_lshl_add_u32 v6, v45, 7, v6
v_add_u32 v6, s54, v6                  ; vY''')
    for k, r in enumerate((3, 2, 1, 0)):
        D = 8 + 8 * r
        A(f's_waitcnt vmcnt({6-2*k})')
        for i in range(4):
            A(f'v_alignbit_b32 v{48+4*(k&1)+i}, v{D+i+1}, v{D+i}, 16')
        A(f'ds_write_b128 v3, {vr(D,4)} offset:{UXC + 1024*r}')
        A(f'ds_write_b128 v3, {vr(48+4*(k&1),4)} offset:{1024*r}')
    A.stamp(1)
    A('''s_waitcnt lgkmcnt(0)
s_barrier''')
    A.stamp(2)
    top = gen_mfma_phase(A, 4, 5, 6)
    A.stamp_flush(1, 3)
    A('s_endpgm')
    A.win = []
    A.label(f'L{name}_help')
    A(f'''s_mul_i32 s53, s5, {KXS}
s_add_u32 s53, s53, {L_KX}
v_lshlrev_b32 v2, 2, v1                ; lane*4
v_lshrrev_b32 v3, 2, v1
v_and_b32 v4, 3, v1
v_add_u32 v3, v3, v4
v_lshlrev_b32 v3, 2, v3
v_subrev_u32 v3, 64, v3
v_lshlrev_b32 v4, 4, v1
s_lshl_b32 s61, s4, 1                  ; d0*2
s_waitcnt lgkmcnt(0)
s_add_u32 s48, s{P['ws']}, {WS_KA}
s_addc_u32 s49, s{P['ws']+1}, 0
s_cmp_eq_u32 s7, 0
s_cselect_b32 s44, s48, s{P['ssmk']}
s_cselect_b32 s45, s49, s{P['ssmk']+1}
s_add_u32 s44, s44, s42
s_addc_u32 s45, s45, 0
s_mov_b32 s46, 4096
s_mov_b32 s47, 0x00020000
s_load_dword s62, {ptr('Dskip')}, s61
s_load_dword s63, {ptr('ssmD')}, s61
s_mov_b32 m0, s53
buffer_load_dword v3, s[44:47], 0 offen lds''')
    for i in range(16):
        A(f'''s_add_u32 m0, s53, {256 + 1024*i}
s_mov_b32 s52, {256*i}
buffer_load_dwordx4 v2, s[44:47], s52 offen lds''')
    A(f'''s_add_u32 s48, s{P['ws']}, {WS_G}
s_addc_u32 s49, s{P['ws']+1}, 0
s_mov_b32 s50, 4096
s_mov_b32 s51, 0x00020000
s_lshl_b32 s52, s5, 10
s_add_u32 m0, s52, {L_G}
s_mov_b32 s56, s{P['out']}
buffer_load_dwordx4 v4, s[48:51], s52 offen lds
s_mov_b32 s57, s{P['out']+1}
s_mov_b32 s58, 0x200000
s_mov_b32 s59, 0x00020000
v_subrev_u32 v5, 0x100, v0             ; ht
v_lshlrev_b32 v6, 2, v5                ; 4 ht
v_add_u32 v7, {L_Y}, v6                ; vP+1
v_sub_u32 v8, {L_UX + 1024}, v6        ; vN
v_lshlrev_b32 v9, 11, v5
v_add_u32 v9, s61, v9                  ; vO
s_waitcnt lgkmcnt(0)
s_lshl_b32 s64, s62, 16
s_and_b32 s65, s62, 0xffff0000
s_lshl_b32 s66, s63, 16
s_and_b32 s67, s63, 0xffff0000
v_mov_b32 v10, s64
v_mov_b32 v11, s65
v_mov_b32 v12, s66
v_mov_b32 v13, s67
s_waitcnt vmcnt(0)''')
    A.stamp(1)
    A('s_barrier')
    for Pp in range(4):
        A('s_barrier')
        gen_epilogue(A, Pp, 6, 8, 9, 10, 12, 16 + 40 * (Pp & 1))
        A.stamp(3 + Pp)
    A.stamp_flush(1, 3)
    A('s_endpgm')
    A.win = []
    A.label(f'L{name}_end')
    A('s_endpgm')
    return L_END, top
```

```python
import sys, struct
from asmlib import *
from k1 import f2u, L2E, L2E_HI, L2E_LO, INV2PI, load_ptrs, P, ptr, rnd, lo2f, hi2f, bfexp
import k2
KN = 'gated_mix__ssm_conv_s4d__ssm_conv_h3__prompt_kernel'

WS_UR = 0; WS_KVR = 2 << 20; WS_IN = 4 << 20; WS_GT = WS_IN + 0x10000; WS_EP = WS_IN + 0x20000
KXS = 16640; UXC = 4576; UXS = 2 * UXC
L_KX = 0
L_UX = 4 * KXS
L_Y = L_UX + 4 * UXS
L_KC = L_Y
L_G = L_Y + 16384
L_TK = L_KC + 24576
L_TV = L_TK + 9 * 1040
L_TU = L_TV + 8 * 1040
L_PAR = L_TU + 8 * 1040
L_FLG = L_PAR + 4096
L_END = L_FLG + 64
L_KL = L_TK
KLS = 4096 + 128

class VM:
    def __init__(self, A): self.A = A; self.q = []
    def issue(self, text, tag=None):
        self.A(text); self.q.append(tag)
    def wait(self, *tags, extra=''):
        idx = max(i for i, t in enumerate(self.q) if t in tags)
        n = len(self.q) - 1 - idx
        self.A(f's_waitcnt vmcnt({n}){extra}')
        self.q = self.q[idx + 1:]
    def wait_all(self):
        self.A('s_waitcnt vmcnt(0)'); self.q = []

def gen(path, stamps=False, opts=None):
    o = dict(prefetch=True, prio=2)
    o.update(opts or {})
    A = Asm(); A.stamps = stamps
    V = VM(A)
    A.raw(f'.globl {KN}\n.p2align 8\n.type {KN},@function\n{KN}:')
    A('s_cmp_ge_u32 s2, 256\ns_cbranch_scc1 Lend')
    A.stamp_init()
    load_ptrs(A)
    LANE, IDX, KG = 1, 2, 3
    TAG = 4
    POS = [5, 6, 7, 8]
    VPAR = 9
    ACC = [12, 16, 20]
    FSC = 10
    SK = 24; GU = 28; GW = 32
    VST = 36
    VTA = 37; VTB = 38
    VFL = 39
    t0, t1, t2, t3, t4, t5, t6, t7 = 40, 41, 42, 43, 44, 45, 46, 47
    A(f'''s_getpc_b64 s[68:69]
v_lshrrev_b32 v{t0}, 6, v0
v_readfirstlane_b32 s3, v{t0}          ; wave
v_and_b32 v{LANE}, 63, v0
v_and_b32 v{IDX}, 15, v0
v_bfe_u32 v{KG}, v0, 4, 2
s_and_b32 s4, s2, 7                    ; s
s_lshr_b32 s5, s2, 3                   ; jq
s_lshl_b32 s6, s4, 6
s_lshl_b32 s7, s5, 1
s_add_u32 s6, s6, s7                   ; d0
s_lshr_b32 s42, s3, 2                  ; kch = w>>2
s_and_b32 s43, s3, 3                   ; wq = w&3
s_add_u32 s7, s6, s42
s_lshl_b32 s70, s7, 8
s_lshl_b32 s71, s43, 6
s_add_u32 s70, s70, s71
v_and_b32 v{t0}, 31, v0
v_lshlrev_b32 v{t1}, 1, v{t0}
v_add_u32 v{t1}, s70, v{t1}
s_lshl_b32 s70, s7, 1
v_mov_b32 v{t2}, s70
v_mov_b32 v{t3}, {WS_EP}
v_lshrrev_b32 v{t4}, 3, v{LANE}
v_lshlrev_b32 v{t4}, 10, v{t4}
v_and_b32 v{t5}, 7, v0
v_lshl_add_u32 v{t4}, v{t5}, 4, v{t4}
s_lshl_b32 s70, s5, 16
s_lshl_b32 s71, s4, 7
s_add_u32 s70, s70, s71                ; 64 j*1024 + 128 s
s_sub_u32 s71, s70, 0x2000
v_add_u32 v{t5}, s71, v{t4}
s_lshl_b32 s71, s3, 13
s_add_u32 s70, s70, s71
v_add_u32 v{t4}, s70, v{t4}
s_mul_i32 s70, s3, 1040                ; w*1040
s_lshl_b32 s71, s3, 3
s_lshl_b64 s[92:93], 0xff, s71
s_lshl_b32 s94, s4, 9
s_lshl_b32 s95, s3, 6
s_add_u32 s94, s94, s95
v_lshlrev_b32 v{t6}, 4, v{KG}
v_add_u32 v{t6}, s94, v{t6}
v_lshlrev_b32 v{t7}, 4, v{LANE}
s_lshl_b32 s94, s2, 13
s_lshl_b32 s95, s3, 10
s_add_u32 s94, s94, s95
v_add_u32 v48, s94, v{t7}
s_waitcnt lgkmcnt(0)''')
    PL = 52
    V.issue(f"global_load_ushort v{PL}, v{t2}, {ptr('logdt')}", 'par')
    V.issue(f"global_load_ushort v{PL+1}, v{t1}, {ptr('logA')}", 'par')
    V.issue(f"global_load_ushort v{PL+2}, v{t1}, {ptr('Aim')}", 'par')
    V.issue(f"global_load_ushort v{PL+3}, v{t1}, {ptr('Cr')}", 'par')
    V.issue(f"global_load_ushort v{PL+4}, v{t1}, {ptr('Ci')}", 'par')
    A(f'''s_mov_b32 s44, s{P['k']}
s_mov_b32 s45, s{P['k']+1}
s_mov_b32 s46, 0x200000
s_mov_b32 s47, 0x00020000
s_add_u32 m0, s70, {L_TK + 1040}''')
    V.issue(f'buffer_load_dwordx4 v{t4}, s[44:47], 0 offen lds', 'tile')
    A(f's_add_u32 m0, s70, {L_TV}')
    V.issue(f"global_load_lds_dwordx4 v{t4}, {ptr('v')}", 'tile')
    A(f's_add_u32 m0, s70, {L_TU}')
    V.issue(f"global_load_lds_dwordx4 v{t4}, {ptr('u')}", 'tile')
    A(f's_mov_b32 m0, {L_TK}\ns_mov_b64 exec, s[92:93]')
    V.issue(f'buffer_load_dwordx4 v{t5}, s[44:47], 0 offen lds', 'tile')
    A('s_mov_b64 exec, -1')
    V.issue(f"global_load_dwordx4 {vr(SK,4)}, v{t6}, {ptr('shk')}", 'tile')
    V.issue(f"global_load_dword v{TAG}, v{t3}, {ptr('ws')} sc1", 'tile')
    V.issue(f"global_load_dwordx4 {vr(GU,4)}, v48, {ptr('u')}", 'gate')
    V.issue(f"global_load_dwordx4 {vr(GW,4)}, v{t7}, {ptr('gw')}", 'gate')
    if o['prefetch']:
        A(f'''s_lshl_b32 s94, s3, 11
v_add_u32 v49, s94, v{t7}
v_min_u32 v49, Lend-{KN}-1040, v49
s_and_b32 s68, s68, 0xffffff00''')
        V.issue('global_load_dwordx4 v[60:63], v49, s[68:69]', 'pf')
        V.issue('global_load_dwordx4 v[60:63], v49, s[68:69] offset:1024', 'pf')
    A(f'''s_lshl_b32 s94, s7, 12
s_add_u32 s60, s{P['ssmk']}, s94
s_addc_u32 s61, s{P['ssmk']+1}, 0
s_mov_b32 s62, 4096
s_mov_b32 s63, 0x00020000
s_mul_i32 s94, s42, {2*KXS}
s_add_u32 s94, s94, {L_KX + KXS}
s_lshl_b32 s95, s43, 12
s_add_u32 s95, s95, s94                ; + wq*4096
s_lshl_b32 s96, s43, 10
v_lshlrev_b32 v{t4}, 2, v{LANE}
v_add_u32 v{t4}, s96, v{t4}
v_lshrrev_b32 v{t5}, 2, v{LANE}
v_and_b32 v{t6}, 3, v0
v_add_u32 v{t5}, v{t5}, v{t6}
v_lshlrev_b32 v{t5}, 2, v{t5}
v_subrev_u32 v{t5}, 64, v{t5}
s_lshl_b32 s96, s43, 4
s_lshl_b64 s[92:93], 0xffff, s96''')
    for i in range(4):
        A(f's_add_u32 m0, s95, {256 + 1024*i}\ns_movk_i32 s96, {256*i}')
        V.issue(f'buffer_load_dwordx4 v{t4}, s[60:63], s96 offen lds', 'ssmk')
    A('s_mov_b32 m0, s94\ns_mov_b64 exec, s[92:93]')
    V.issue(f'buffer_load_dword v{t5}, s[60:63], 0 offen lds', 'ssmk')
    A('s_mov_b64 exec, -1')
    A.stamp(1)
    A(f'''s_mov_b32 s48, {f2u(L2E_HI):#x}
s_mov_b32 s49, {f2u(L2E_LO):#x}
s_mov_b32 s50, {f2u(14.0):#x}
s_mov_b32 s52, 0x05040100
s_mov_b32 s53, 0x07060302
v_lshlrev_b32 v{t1}, 3, v{IDX}
v_cvt_f32_u32 v{POS[0]}, v{t1}
v_and_b32 v{t1}, 7, v{IDX}
v_and_b32 v{t2}, 8, v{IDX}
v_lshl_or_b32 v{t1}, v{t2}, 4, v{t1}
v_cvt_f32_u32 v{POS[1]}, v{t1}
v_and_b32 v{t1}, 3, v{IDX}
v_lshlrev_b32 v{t1}, 1, v{t1}
v_and_b32 v{t2}, 4, v{IDX}
v_lshl_or_b32 v{t1}, v{t2}, 5, v{t1}
v_add_u32 v{t1}, 0x100, v{t1}
v_and_b32 v{t2}, 1, v{IDX}
v_lshlrev_b32 v{t2}, 2, v{t2}
v_and_b32 v{t3}, 6, v{IDX}
v_lshl_or_b32 v{t2}, v{t3}, 6, v{t2}
v_add_u32 v{t2}, 0x200, v{t2}
v_cmp_gt_u32 vcc, 8, v{IDX}
v_cndmask_b32 v{t1}, v{t2}, v{t1}, vcc
v_cvt_f32_u32 v{POS[2]}, v{t1}
v_lshlrev_b32 v{t1}, 7, v{IDX}
v_add_u32 v{t1}, 0x400, v{t1}
v_cvt_f32_u32 v{POS[3]}, v{t1}
s_lshl_b32 s94, s3, 9
s_add_u32 s94, s94, {L_PAR}
v_lshlrev_b32 v{t1}, 4, v{t0}
v_add_u32 v{t1}, s94, v{t1}
v_lshlrev_b32 v{VPAR}, 6, v{KG}
v_add_u32 v{VPAR}, s94, v{VPAR}
v_lshrrev_b32 v{t2}, 1, v{IDX}
v_mul_u32_u24 v{VTA}, 1040, v{t2}
v_and_b32 v{t3}, 1, v{IDX}
v_lshl_add_u32 v{VTA}, v{t3}, 9, v{VTA}
v_lshl_add_u32 v{VTA}, v{KG}, 2, v{VTA}
s_lshl_b32 s94, s3, 4
s_add_u32 s94, s94, {L_TK}
v_add_u32 v{VTA}, s94, v{VTA}
v_lshl_add_u32 v{VTB}, v{t3}, 4, v{VTA}
v_add_u32 v{VTB}, {1040 - 528}, v{VTB}
v_lshl_add_u32 v{VST}, v{KG}, 1, v{t3}
v_lshlrev_b32 v{VST}, 12, v{VST}
v_lshlrev_b32 v{t2}, 4, v{t2}
v_sub_u32 v{VST}, v{VST}, v{t2}
s_lshl_b32 s94, s4, 18
s_lshl_b32 s95, s3, 15
s_add_u32 s94, s94, s95
s_lshl_b32 s95, s5, 7
s_sub_u32 s94, s94, s95
s_add_u32 s94, s94, {3968 + 112}
v_add_u32 v{VST}, s94, v{VST}
s_lshl_b32 s94, s3, 2
v_add_u32 v{VFL}, s94, v{LANE}
v_lshlrev_b32 v{VFL}, 10, v{VFL}
s_lshl_b32 s94, s4, 7
s_lshl_b32 s95, s5, 2
s_add_u32 s94, s94, s95
s_add_u32 s94, s94, {WS_IN}
v_add_u32 v{VFL}, s94, v{VFL}''')
    V.wait('par')
    A.stamp(2)
    for i in range(5): A(f'v_lshlrev_b32 v{PL+i}, 16, v{PL+i}')
    bfexp(A, PL, PL, t2, t3, 48, 49)
    bfexp(A, PL + 1, PL + 1, t2, t3, 48, 49)
    A(f'v_max_f32 v{t2}, |v{PL+3}|, |v{PL+4}|')
    for sh in (1, 2, 4, 8):
        A(f'v_max_f32_dpp v{t2}, v{t2}, v{t2} row_shr:{sh} row_mask:0xf bank_mask:0xf')
    A(f'v_max_f32_dpp v{t2}, v{t2}, v{t2} row_bcast:15 row_mask:0xa bank_mask:0xf')
    A(f'''v_mul_f32 v{PL+1}, v{PL+1}, v{PL}
v_mul_f32 v{PL+2}, v{PL+2}, v{PL}
v_readlane_b32 s94, v{t2}, 31
v_mul_f32 v64, {f2u(-L2E):#x}, v{PL+1}
v_mul_f32 v65, {f2u(INV2PI):#x}, v{PL+2}
s_lshr_b32 s94, s94, 23
s_max_u32 s94, s94, 13
s_sub_u32 s95, 267, s94
s_lshl_b32 s95, s95, 23
s_sub_i32 s94, s94, 153
v_mul_f32 v66, s95, v{PL+3}
v_mul_f32 v67, s95, v{PL+4}
v_ldexp_f32 v{FSC}, v{PL}, s94
ds_write_b128 v{t1}, v[64:67]
s_mov_b32 s51, 0                       ; k-step''')
    for a in ACC:
        for i in range(4): A(f'v_mov_b32 v{a+i}, 0')
    A('s_waitcnt lgkmcnt(0)')
    A.fence()
    A.label('Lkgen')
    PR = 64
    M, TH, C, S = 80, 84, 88, 92
    HA = [96, 100, 104]; FB = 108
    for j in range(4): A(f'ds_read_b128 {vr(PR+4*j,4)}, v{VPAR} offset:{16*j}')
    for j in range(4):
        a_, b_, cr, ci = [PR + 4 * j + i for i in range(4)]
        A(f's_waitcnt lgkmcnt({3-j})')
        for e in range(4): A(f'v_mul_f32 v{TH+e}, v{b_}, v{POS[e]}')
        A(f'v_mul_f32 v{M}, v{a_}, v{POS[0]}')
        for e in range(1, 4): A(f'v_fma_f32 v{M+e}, v{a_}, v{POS[e]}, s50')
        for e in range(4): A(f'v_fract_f32 v{TH+e}, v{TH+e}')
        for e in range(4): A(f'v_exp_f32 v{M+e}, v{M+e}')
        for e in range(4): A(f'v_cos_f32 v{C+e}, v{TH+e}')
        for e in range(4): A(f'v_sin_f32 v{S+e}, v{TH+e}')
        for e in range(4):
            A(f'v_mul_f32 v{C+e}, v{M+e}, v{C+e}')
            A(f'v_mul_f32 v{S+e}, v{M+e}, v{S+e}')
        A(f'''v_mul_f32 v{M}, v{cr}, v{C}
v_mul_f32 v{M+1}, v{cr}, v{S}''')
        for e in range(1, 4): A(f'v_cvt_pk_f16_f32 v{HA[e-1]+j}, v{C+e}, v{S+e}')
        A(f'''v_fma_f32 v{M}, -v{ci}, v{S}, v{M}
v_fma_f32 v{M+1}, v{ci}, v{C}, v{M+1}
v_cvt_pk_f16_f32 v{FB+j}, v{M}, -v{M+1}''')
    for tt in range(3):
        A(f'v_mfma_f32_16x16x32_f16 {vr(ACC[tt],4)}, {vr(HA[tt],4)}, {vr(FB,4)}, {vr(ACC[tt],4)}')
    A(f'''v_add_u32 v{VPAR}, 0x100, v{VPAR}
s_cmp_lg_u32 s51, 0
s_cbranch_scc1 Lkdone
s_mov_b32 s51, 1''')
    A.stamp(3)
    V.wait('tile')
    A('s_barrier')
    A.stamp(4)
    if stamps: A('s_waitcnt lgkmcnt(0)')
    KD = 64; VD = 71; UD = 75
    for i in range(3): A(f'ds_read_b32 v{KD+i}, v{VTB} offset:{128*(i+1)}')
    for i in range(4): A(f'ds_read_b32 v{KD+3+i}, v{VTA} offset:{1040 + 128*i}')
    for i in range(4): A(f'ds_read_b32 v{VD+i}, v{VTA} offset:{L_TV - L_TK + 128*i}')
    for i in range(4): A(f'ds_read_b32 v{UD+i}, v{VTA} offset:{L_TU - L_TK + 128*i}')
    W = 80; KP = 88; VP = 102; AC = 110; PRD = 118; O = 126; UN = 136
    for t in range(4):
        for ee in range(2):
            (hi2f if t & 1 else lo2f)(A, W + 2 * t + ee, SK + 2 * ee + (t >> 1))
    A(f'v_add_u32 v{TAG}, 1, v{TAG}')
    A(f'v_and_b32 v{t0}, 1, v0\nv_cmp_eq_u32 vcc, 1, v{t0}')
    A('s_waitcnt lgkmcnt(8)')
    for i in range(7): lo2f(A, KP + 2 * i, KD + i); hi2f(A, KP + 2 * i + 1, KD + i)
    for a in range(4): A(f'v_pk_mul_f32 {vr(AC+2*a,2)}, {vr(KP+2*a,2)}, {vr(W+6,2)}')
    for i in range(8): rnd(A, AC + i, AC + i)
    for tp in range(1, 4):
        for a in range(4): A(f'v_pk_mul_f32 {vr(PRD+2*a,2)}, {vr(KP+2*(a+tp),2)}, {vr(W+2*(3-tp),2)}')
        for i in range(8): rnd(A, PRD + i, PRD + i)
        for a in range(4): A(f'v_pk_add_f32 {vr(AC+2*a,2)}, {vr(AC+2*a,2)}, {vr(PRD+2*a,2)}')
        for i in range(8): rnd(A, AC + i, AC + i)
    A('s_waitcnt lgkmcnt(0)')
    for i in range(4): lo2f(A, VP + 2 * i, VD + i); hi2f(A, VP + 2 * i + 1, VD + i)
    for a in range(4): A(f'v_pk_mul_f32 {vr(AC+2*a,2)}, {vr(AC+2*a,2)}, {vr(VP+2*a,2)}')
    for ch in range(2):
        A(f'v_cvt_pk_bf16_f32 v{O+2*ch}, v{AC+6+ch}, v{AC+4+ch}')
        A(f'v_cvt_pk_bf16_f32 v{O+2*ch+1}, v{AC+2+ch}, v{AC+ch}')
        A(f'v_perm_b32 v{O+4+2*ch}, v{UD+2}, v{UD+3}, s{52+ch}')
        A(f'v_perm_b32 v{O+4+2*ch+1}, v{UD}, v{UD+1}, s{52+ch}')
    dpp = 'quad_perm:[1,0,3,2] row_mask:0xf bank_mask:0xf'
    for tn in range(2):
        for i in range(2):
            A(f'v_cndmask_b32_dpp v{UN+4*tn+i}, v{O+4*tn+i}, v{O+4*tn+2+i}, vcc {dpp}')
    A('s_not_b64 vcc, vcc')
    for tn in range(2):
        for i in range(2):
            A(f'v_cndmask_b32_dpp v{UN+4*tn+2+i}, v{O+4*tn+2+i}, v{O+4*tn+i}, vcc {dpp}')
    A(f'v_add_u32 v{t0}, {WS_KVR}, v{VST}')
    V.issue(f"global_store_dwordx4 v{t0}, {vr(UN,4)}, {ptr('ws')} sc1", 'st')
    V.issue(f"global_store_dwordx4 v{VST}, {vr(UN+4,4)}, {ptr('ws')} sc1", 'st')
    X = 64; Y = 72
    V.wait('gate')
    for i in range(4):
        lo2f(A, X + 2 * i, GU + i); hi2f(A, X + 2 * i + 1, GU + i)
        lo2f(A, Y + 2 * i, GW + i); hi2f(A, Y + 2 * i + 1, GW + i)
    for i in range(4): A(f'v_pk_mul_f32 {vr(X+2*i,2)}, {vr(X+2*i,2)}, {vr(Y+2*i,2)}')
    for i in range(8): rnd(A, X + i, X + i)
    for st in (2, 1):
        for i in range(st): A(f'v_pk_add_f32 {vr(X+2*i,2)}, {vr(X+2*i,2)}, {vr(X+2*(i+st),2)}')
    A(f'v_add_f32 v{X}, v{X}, v{X+1}')
    for sh in (1, 2, 4, 8):
        A(f'v_add_f32_dpp v{X}, v{X}, v{X} row_shr:{sh} row_mask:0xf bank_mask:0xf bound_ctrl:0')
    A(f'v_add_f32_dpp v{X}, v{X}, v{X} row_bcast:15 row_mask:0xa bank_mask:0xf')
    A(f'v_add_f32_dpp v{X}, v{X}, v{X} row_bcast:31 row_mask:0xc bank_mask:0xf')
    rnd(A, X, X)
    A(f'''v_mul_f32 v{X}, {f2u(-L2E):#x}, v{X}
v_exp_f32 v{X}, v{X}
s_lshl_b32 s94, s2, 6
s_lshl_b32 s95, s3, 3
v_add_f32 v{X}, 1.0, v{X}
v_rcp_f32 v{X}, v{X}
s_add_u32 s94, s94, s95
s_add_u32 s94, s94, {WS_GT}
v_mov_b32 v{t0}, s94
v_cvt_pk_bf16_f32 v144, v{X}, 0
v_mov_b32 v145, v{TAG}
s_mov_b32 exec_lo, 0
s_brev_b32 exec_hi, 1''')
    V.issue(f"global_store_dwordx2 v{t0}, v[144:145], {ptr('ws')} sc1", 'g')
    A('s_mov_b64 exec, -1')
    A.stamp(5)
    A.fence()
    A('s_branch Lkgen')
    A.win = []
    A.label('Lkdone')
    V.wait('st')
    A('s_mov_b64 exec, 15')
    V.issue(f"global_store_dword v{VFL}, v{TAG}, {ptr('ws')} sc1", 'fl')
    A('s_mov_b64 exec, -1')
    A(f'''s_mul_i32 s94, s3, 3072
s_add_u32 s94, s94, {L_KC}
v_and_b32 v{t1}, 1, v{KG}
v_lshlrev_b32 v{t1}, 4, v{t1}
v_lshrrev_b32 v{t2}, 1, v{KG}
v_lshl_or_b32 v{t1}, v{t2}, 9, v{t1}
v_lshl_add_u32 v{t1}, v{IDX}, 5, v{t1}
v_add_u32 v{t1}, s94, v{t1}
v_lshlrev_b32 v{t3}, 8, v{KG}
v_lshl_add_u32 v{t4}, v{IDX}, 4, v{t3}
v_lshl_add_u32 v{t5}, v{IDX}, 3, v{t3}
v_cmp_gt_u32 vcc, 2, v{KG}
v_cndmask_b32 v{t4}, v{t5}, v{t4}, vcc
v_add_u32 v{t4}, s94, v{t4}
v_mov_b32 v{t5}, 0x80
v_cndmask_b32 v{t5}, v{t5}, 8, vcc
v_add_u32 v{t5}, v{t4}, v{t5}
v_lshl_add_u32 v{t3}, v{IDX}, 2, v{t3}
v_add_u32 v{t3}, s94, v{t3}
s_nop 4''')
    for a in ACC:
        for i in range(4): A(f'v_mul_f32 v{a+i}, v{FSC}, v{a+i}')
    A(f'''ds_write_b128 v{t1}, {vr(ACC[0],4)}
ds_write_b64 v{t4}, {vr(ACC[1],2)} offset:1024
ds_write_b64 v{t5}, {vr(ACC[1]+2,2)} offset:1024
ds_write_b32 v{t3}, v{ACC[2]} offset:2048
ds_write_b32 v{t3}, v{ACC[2]+1} offset:2112
ds_write_b32 v{t3}, v{ACC[2]+2} offset:2176
ds_write_b32 v{t3}, v{ACC[2]+3} offset:2240''')
    CI = 64
    A(f'v_lshlrev_b32 v{t1}, 2, v0')
    for i in range(4):
        A(f'''v_add_u32 v{t2}, {i}, v{t1}
v_cvt_f32_u32 v{t3}, v{t2}
v_cvt_pk_bf16_f32 v{t3}, v{t3}, 0
v_subrev_u32 v{t3}, {133*128}, v{t3}
v_cmp_gt_u32 vcc, 0x80, v{t2}
v_cndmask_b32 v{t3}, v{t3}, v{t2}, vcc
v_lshlrev_b32 v{CI+i}, 2, v{t3}
v_add_u32 v{CI+i}, {L_KC}, v{CI+i}''')
    A('s_waitcnt lgkmcnt(0)\ns_barrier')
    RD = 72
    for half in range(2):
        for i in (2 * half, 2 * half + 1):
            for pp in range(4):
                A(f'ds_read2st64_b32 {vr(RD+8*i+2*pp,2)}, v{CI+i} offset0:{24*pp} offset1:{24*pp+12}')
        if half == 0: A('s_waitcnt lgkmcnt(4)')
    A(f'''v_lshlrev_b32 v{t1}, 3, v0
v_add_u32 v{t1}, {L_KL + 64}, v{t1}
v_mov_b32 v108, 0
v_mov_b32 v109, 0
v_mov_b32 v110, 0
v_mov_b32 v111, 0
s_waitcnt lgkmcnt(0)''')
    for i in range(4):
        for ch in range(2):
            b = RD + 8 * i + 4 * ch
            A(f'v_add_f32 v{b}, v{b}, v{b+1}\nv_add_f32 v{b+2}, v{b+2}, v{b+3}')
    for i in range(4):
        for ch in range(2):
            b = RD + 8 * i + 4 * ch
            A(f'v_add_f32 v{b}, v{b}, v{b+2}')
    for ch in range(2):
        A(f'v_cvt_pk_bf16_f32 v{104+2*ch}, v{RD+4*ch}, v{RD+8+4*ch}')
        A(f'v_cvt_pk_bf16_f32 v{105+2*ch}, v{RD+16+4*ch}, v{RD+24+4*ch}')
        A(f'ds_write_b64 v{t1}, {vr(104+2*ch,2)} offset:{KLS*ch}')
    A(f'''v_lshlrev_b32 v{t2}, 4, v{LANE}
s_and_b32 s94, s3, 3
s_mul_i32 s94, s94, {UXS}
s_lshr_b32 s95, s3, 2
s_mul_i32 s95, s95, {UXC}
s_add_u32 s94, s94, s95
s_add_u32 s94, s94, {L_UX + 4096}
v_add_u32 v{t3}, s94, v{t2}
s_mov_b32 exec_lo, 0x0fffffff
s_mov_b32 exec_hi, 0
ds_write_b128 v{t3}, v[108:111]
s_mov_b32 exec_lo, 15
v_add_u32 v{t3}, {L_KL}, v{t2}
ds_write_b128 v{t3}, v[108:111]
ds_write_b128 v{t3}, v[108:111] offset:{64 + 4096}
ds_write_b128 v{t3}, v[108:111] offset:{KLS}
ds_write_b128 v{t3}, v[108:111] offset:{KLS + 64 + 4096}
v_add_u32 v{t3}, {L_FLG}, v{t2}
ds_write_b128 v{t3}, v[108:111]
s_mov_b64 exec, -1
v_and_b32 v{t2}, 0xff, v0
s_mul_i32 s94, s42, {KLS}
s_add_u32 s94, s94, {L_KL}
v_lshlrev_b32 v{t3}, 2, v{t2}
v_add_u32 v{t3}, s94, v{t3}
s_mul_i32 s94, s42, {2*KXS}
v_lshlrev_b32 v{t4}, 4, v{t2}
v_add_u32 v{t4}, s94, v{t4}
s_waitcnt lgkmcnt(0)
s_barrier''')
    for k in range(5):
        if k: A(f'v_add_u32 v{t3}, 0x400, v{t3}')
        if k == 4: A(f'v_cmp_gt_u32 vcc, 16, v{t2}\ns_and_saveexec_b64 s[92:93], vcc')
        A(f'ds_read2_b32 {vr(64+4*k,2)}, v{t3} offset0:0 offset1:1')
        A(f'ds_read2_b32 {vr(66+4*k,2)}, v{t3} offset0:2 offset1:3')
    A(f's_waitcnt lgkmcnt(0)\nds_write_b128 v{t4}, v[80:83] offset:16384\ns_mov_b64 exec, -1')
    for k in range(4):
        A(f'ds_write_b128 v{t4}, {vr(64+4*k,4)} offset:{4096*k}')
    A(f'''s_and_b32 s54, s3, 3                    ; cv
s_lshr_b32 s94, s54, 1
s_add_u32 s94, s94, s6                 ; d
s_lshl_b32 s94, s94, 12
s_and_b32 s95, s54, 1
s_lshl_b32 s95, s95, 21
s_add_u32 s94, s94, s95
s_add_u32 s64, s{P['ws']}, s94
s_addc_u32 s65, s{P['ws']+1}, 0
s_mov_b32 s66, 4096
s_mov_b32 s67, 0x00020000
v_lshlrev_b32 v{t1}, 4, v{LANE}
s_lshl_b32 s94, s42, 11
v_add_u32 v{t1}, s94, v{t1}
s_mul_i32 s55, s54, {UXS}
s_add_u32 s55, s55, {L_UX}
v_add_u32 v{t2}, s55, v{t1}
v_and_b32 v{t3}, 31, v0
v_lshlrev_b32 v{t3}, 2, v{t3}
s_lshl_b32 s94, s2, 7
s_add_u32 s94, s94, {WS_IN}
v_add_u32 v{t3}, s94, v{t3}
s_cmp_lg_u32 s3, 0''')
    A.stamp(6)
    A('s_cbranch_scc1 Lpolled\ns_mov_b32 s94, 0')
    A.label('Lpoll')
    A(f'''global_load_dword v{t4}, v{t3}, {ptr('ws')} sc1
s_add_u32 s94, s94, 1
s_waitcnt vmcnt(0)
v_cmp_ne_u32 vcc, v{TAG}, v{t4}
s_cbranch_vccz Lpolled
s_cmp_lt_u32 s94, 0x200000
s_cbranch_scc1 Lpoll''')
    A.fence()
    A.label('Lpolled')
    A('s_barrier')
    if stamps: A.stamp(3)
    V.q = []
    for i in (1, 0):
        V.issue(f'buffer_load_dwordx4 {vr(64+8*i,4)}, v{t1}, s[64:67], 0 offen offset:{1024*i} sc1', f'u{i}')
        V.issue(f'buffer_load_dword v{68+8*i}, v{t1}, s[64:67], 0 offen offset:{1024*i+16} sc1', f'u{i}')
    A('s_cmp_ge_u32 s3, 4\ns_cbranch_scc1 Lhelp')
    qsave = list(V.q)
    def stage_u():
        for i in (1, 0):
            D = 64 + 8 * i
            V.wait(f'u{i}')
            for e in range(4): A(f'v_alignbit_b32 v{80+4*i+e}, v{D+e+1}, v{D+e}, 16')
            A(f'ds_write_b128 v{t2}, {vr(D,4)} offset:{UXC + 1024*i}')
            A(f'ds_write_b128 v{t2}, {vr(80+4*i,4)} offset:{1024*i}')
    A(f'''s_mul_i32 s94, s54, {KXS}
s_add_u32 s94, s94, {L_KX + 16}
v_lshlrev_b32 v4, 4, v{IDX}
v_lshl_add_u32 v4, v{KG}, 6, v4
v_add_u32 v4, s94, v4                  ; vK
v_and_b32 v{t4}, 1, v{IDX}
v_mul_u32_u24 v5, {UXC}, v{t4}
v_lshrrev_b32 v{t4}, 1, v{IDX}
v_lshlrev_b32 v{t4}, 6, v{t4}
v_sub_u32 v5, v5, v{t4}
v_lshl_add_u32 v5, v{KG}, 4, v5
s_add_u32 s94, s55, 448
v_add_u32 v5, s94, v5                  ; vU
s_lshl_b32 s94, s54, 12
s_add_u32 s94, s94, {L_Y}
v_lshlrev_b32 v6, 2, v{IDX}
v_lshl_add_u32 v6, v{KG}, 7, v6
v_add_u32 v6, s94, v6                  ; vY
s_lshl_b32 s94, s54, 2
s_add_u32 s94, s94, {L_FLG}
v_mov_b32 v7, s94
v_mov_b32 v1, 1''')
    stage_u()
    A('s_waitcnt lgkmcnt(0)\ns_barrier')
    if stamps: A.stamp(4); A('s_waitcnt lgkmcnt(0)')
    if o['prio']: A(f"s_setprio {o['prio']}")
    top = mfma_phase(A, 4, 5, 6, 7, 1)
    A.stamp_flush(0, 3)
    A('s_endpgm')
    A.win = []
    A.label('Lhelp')
    V.q = qsave
    GQ = 96
    A(f'''v_subrev_u32 v5, 0x100, v0             ; ht
v_lshlrev_b32 v6, 4, v5
v_add_u32 v6, {WS_GT}, v6
v_add_u32 v7, 0x2000, v6
s_lshl_b32 s94, s6, 1
s_load_dword s96, {ptr('Dskip')}, s94
s_load_dword s97, {ptr('ssmD')}, s94''')
    def gloads():
        for Pp in range(4):
            V.issue(f"global_load_dwordx4 {vr(GQ+4*Pp,4)}, v{6 + (Pp>>1)}, {ptr('ws')} offset:{(Pp&1)*4096 - 0} sc1" if (Pp & 1) == 0 else
                    f"global_load_dwordx4 {vr(GQ+4*Pp,4)}, v{8 + (Pp>>1)}, {ptr('ws')} sc1", 'gq')
    A('v_add_u32 v8, 0x1000, v6\nv_add_u32 v9, 0x1000, v7')
    gloads()
    stage_u()
    A(f'''s_mov_b32 s56, s{P['out']}
s_mov_b32 s57, s{P['out']+1}
s_mov_b32 s58, 0x200000
s_mov_b32 s59, 0x00020000
v_lshlrev_b32 v10, 2, v5
v_add_u32 v11, {L_Y}, v10              ; vP
v_sub_u32 v12, {L_UX + UXC + 4092}, v10 ; vN
v_lshlrev_b32 v13, 11, v5
v_add_u32 v13, s94, v13                ; vO
v_mov_b32 v18, {L_FLG}
s_waitcnt lgkmcnt(0)
s_barrier''')
    A(f'''s_lshl_b32 s98, s96, 16
s_and_b32 s99, s96, 0xffff0000
s_lshl_b32 s100, s97, 16
s_and_b32 s101, s97, 0xffff0000
v_mov_b32 v14, s98
v_mov_b32 v15, s99
v_mov_b32 v16, s100
v_mov_b32 v17, s101
s_mov_b32 s94, 0''')
    A.fence()
    A.label('Lgchk')
    A('s_waitcnt vmcnt(0)')
    A(f'v_xor_b32 v20, v{TAG}, v{GQ+1}')
    for i in range(1, 8):
        A(f'v_xor_b32 v21, v{TAG}, v{GQ+2*i+1}\nv_or_b32 v20, v20, v21')
    A(f'''v_cmp_ne_u32 vcc, 0, v20
s_cbranch_vccz Lgok
s_add_u32 s94, s94, 1
s_cmp_ge_u32 s94, 0x200000
s_cbranch_scc1 Lgok''')
    gloads()
    A('s_branch Lgchk')
    A.win = []
    A.label('Lgok')
    for Pp in range(4):
        A(f'v_lshl_or_b32 v{20+Pp}, v{GQ+4*Pp+2}, 16, v{GQ+4*Pp}')
        A(f'ds_write_b32 v11, v{20+Pp} offset:{16384 + 1024*Pp}')
    A('s_mov_b32 s60, 0')
    A.fence()
    A.label('Lepi')
    A(f'''ds_read_b128 v[20:23], v18
s_waitcnt lgkmcnt(0)
v_and_b32 v20, v20, v21
v_and_b32 v22, v22, v23
v_and_b32 v20, v20, v22
v_cmp_ne_u32 vcc, 0, v20
s_cbranch_vccnz Lgo
s_sleep 1
s_branch Lepi''')
    A.win = []
    A.label('Lgo')
    epilogue(A, 11, 12, 13, 14, 16, 24)
    A(f'''v_add_u32 v11, 0x400, v11
v_subrev_u32 v12, 0x400, v12
v_add_u32 v18, 16, v18
s_add_u32 s60, s60, 0x80000
s_cmp_lt_u32 s60, 0x200000''')
    A.fence()
    A('s_cbranch_scc1 Lepi')
    A(f'''s_cmp_lg_u32 s2, 0
s_cbranch_scc1 Lfin
s_barrier
s_cmp_lg_u32 s3, 4
s_cbranch_scc1 Lfin
v_mov_b32 v20, {WS_EP}
s_mov_b64 exec, 1
global_store_dword v20, v{TAG}, {ptr('ws')} sc1''')
    A.label('Lfin')
    A.stamp_flush(0, 3)
    A.label('Lend')
    A('s_endpgm')
    HDR = open('gated_mix__ssm_conv_s4d__ssm_conv_h3__prompt.s.ref').read().split('; Override launch')[0]
    s = HDR + f'; @launch grid=(256,1,1) block=(512,1,1) lds={L_END}\n.amdgcn_target "amdgcn-amd-amdhsa--gfx950"\n.text\n' + A.text()
    s += '.section .rodata,"a"\n' + kdesc(KN, 256)
    open(path, 'w').write(s)
    print('lds', L_END, 'nops', A.nops)

def epilogue(A, vP, vN, vO, DP, SP, R):
    Y = R; U = R + 4; G = R + 8
    for cv in range(4): A(f'ds_read_b32 v{Y+cv}, v{vP} offset:{4096*cv}')
    for cv in range(4): A(f'ds_read_b32 v{U+cv}, v{vN} offset:{UXS*cv}')
    A(f'ds_read_b32 v{G}, v{vP} offset:16384')
    UP = R + 10; KV = R + 14; YA = R + 18; YB = R + 22; GG = R + 26; OM = R + 28; T1 = R + 30; O = R + 34
    A('s_waitcnt lgkmcnt(0)')
    for ch in range(2):
        hi2f(A, UP + ch, U + 2 * ch); lo2f(A, UP + 2 + ch, U + 2 * ch)
        hi2f(A, KV + ch, U + 2 * ch + 1); lo2f(A, KV + 2 + ch, U + 2 * ch + 1)
        lo2f(A, YA + ch, Y + 2 * ch); hi2f(A, YA + 2 + ch, Y + 2 * ch)
        lo2f(A, YB + ch, Y + 2 * ch + 1); hi2f(A, YB + 2 + ch, Y + 2 * ch + 1)
    lo2f(A, GG, G); hi2f(A, GG + 1, G)
    A(f'v_sub_f32 v{OM}, 1.0, v{GG}\nv_sub_f32 v{OM+1}, 1.0, v{GG+1}')
    rnd(A, OM, OM); rnd(A, OM + 1, OM + 1)
    def r4(x):
        for i in range(4): rnd(A, x + i, x + i)
    for i in range(4): A(f'v_mul_f32 v{T1+i}, v{UP+i}, v{DP+(i&1)}')
    for i in range(4): A(f'v_mul_f32 v{KV+i}, v{KV+i}, v{SP+(i&1)}')
    r4(T1); r4(KV)
    for i in range(4): A(f'v_add_f32 v{YA+i}, v{YA+i}, v{T1+i}')
    for i in range(4): A(f'v_add_f32 v{YB+i}, v{YB+i}, v{KV+i}')
    r4(YA); r4(YB)
    for i in range(4): A(f'v_mul_f32 v{YB+i}, v{YB+i}, v{UP+i}')
    for i in range(4): A(f'v_mul_f32 v{YA+i}, v{YA+i}, v{GG+(i>>1)}')
    r4(YB); r4(YA)
    for i in range(4): A(f'v_mul_f32 v{YB+i}, v{YB+i}, v{OM+(i>>1)}')
    r4(YB)
    for i in range(4): A(f'v_add_f32 v{YA+i}, v{YA+i}, v{YB+i}')
    for a in range(2): A(f'v_cvt_pk_bf16_f32 v{O+a}, v{YA+2*a}, v{YA+2*a+1}')
    A(f'buffer_store_dword v{O}, v{vO}, s[56:59], s60 offen')
    A(f'buffer_store_dword v{O+1}, v{vO}, s[56:59], s60 offen offset:1024')

def mfma_phase(A, vK, vU, vY, vF, vOne, NC=46, NKR=4, NUR=6, LA=10, base=8):
    ml = k2.mfma_list()
    ACC = base; TMP = ACC + 16; UR = TMP + 4; KR = UR + 4 * NUR; KC = KR + 4 * NKR
    top = KC + 4 * NC
    assert top <= 256, top
    class R: pass
    loads = []; cur = {}
    uring = [None] * NUR; kring = [None] * NKR; ui = 0; ki = 0
    use = []
    def mk(kind, idx, reg, mi, prev, key):
        r = R(); r.kind = kind; r.idx = idx; r.reg = reg; r.first = mi; r.last = mi; r.prev = prev; r.key = key; r.n = len(loads)
        if prev is not None: cur.pop(prev.key, None)
        cur[key] = r; loads.append(r); return r
    for mi, (Pp, t, e, s) in enumerate(ml):
        ku = ('U', e, Pp)
        if ku not in cur:
            uring[ui % NUR] = mk('U', e, UR + 4 * (ui % NUR), mi, uring[ui % NUR], ku); ui += 1
        cur[ku].last = mi
        if s < NC:
            kk = ('K', s)
            if kk not in cur: mk('K', s, KC + 4 * s, mi, None, kk)
        else:
            kk = ('K', s, Pp)
            if kk not in cur:
                kring[ki % NKR] = mk('K', s, KR + 4 * (ki % NKR), mi, kring[ki % NKR], kk); ki += 1
        cur[kk].last = mi
        use.append((cur[ku], cur[kk]))
    fifo = []
    def wait_for(recs):
        n = None
        for r in recs:
            for pos, x in enumerate(fifo):
                if x is r:
                    k = len(fifo) - 1 - pos
                    n = k if n is None else min(n, k)
        if n is not None:
            A(f's_waitcnt lgkmcnt({n})')
            del fifo[:len(fifo) - n]
    li = 0; started = set(); pass_end = {}
    for mi, (Pp, t, e, s) in enumerate(ml): pass_end[Pp] = mi
    def ywrite(Pp):
        for t in (2 * Pp, 2 * Pp + 1):
            a = ACC + 4 * ((Pp & 1) * 2 + (t & 1)); tm = TMP + 2 * (t & 1)
            A(f'v_cvt_pk_bf16_f32 v{tm}, v{a}, v{a+1}\nv_cvt_pk_bf16_f32 v{tm+1}, v{a+2}, v{a+3}')
            A(f'ds_write_b32 v{vY}, v{tm} offset:{512*t}'); fifo.append(object())
            A(f'ds_write_b32 v{vY}, v{tm+1} offset:{512*t+64}'); fifo.append(object())
        A(f'ds_write_b32 v{vF}, v{vOne} offset:{16*Pp}'); fifo.append(object())
    for mi, (Pp, t, e, s) in enumerate(ml):
        if Pp > 0 and mi == pass_end[Pp - 1] + 4:
            lim = 8 if A.stamps else 10
            while len(fifo) > lim: wait_for([fifo[len(fifo) - lim - 1]])
            ywrite(Pp - 1)
            if A.stamps and Pp == 3: A.stamp(5)
        issued = 0
        while li < len(loads):
            r = loads[li]
            if r.prev is not None and r.prev.last >= mi: break
            must = r.first <= mi
            if not must and (r.first > mi + LA or issued >= 2 or len(fifo) >= 13): break
            if len(fifo) >= 13: wait_for([fifo[0]])
            if r.kind == 'U': A(f"ds_read_b128 {vr(r.reg,4)}, v{vU} offset:{64*(56-r.idx)}")
            else: A(f"ds_read_b128 {vr(r.reg,4)}, v{vK} offset:{256*r.idx}")
            fifo.append(r); li += 1; issued += 1
        ru, rk = use[mi]
        assert ru.n < li and rk.n < li
        wait_for([ru, rk])
        a = ACC + 4 * ((Pp & 1) * 2 + (t & 1))
        c = vr(a, 4) if t in started else '0'
        started.add(t)
        A(f"v_mfma_f32_16x16x32_bf16 {vr(a,4)}, {vr(ru.reg,4)}, {vr(rk.reg,4)}, {c}")
    ywrite(3)
    return top

if __name__ == '__main__':
    out = sys.argv[1]
    gen(out)
    if len(sys.argv) > 2: gen(sys.argv[2], True)
```

```python
import re

TRANS = ('v_exp_f32', 'v_log_f32', 'v_rcp_f32', 'v_rsq_f32', 'v_sqrt_f32', 'v_sin_f32', 'v_cos_f32')
NODST_S = ('s_cmp', 's_waitcnt', 's_barrier', 's_nop', 's_branch', 's_cbranch', 's_endpgm', 's_setprio', 's_sleep', 's_bitcmp')

def regs_of(tok):
    tok = tok.strip()
    tok = tok.lstrip('-')
    m = re.fullmatch(r'\|?abs\((.*)\)\|?', tok)
    if m: tok = m.group(1)
    tok = tok.strip('|')
    m = re.fullmatch(r'([vsa])(\d+)', tok)
    if m: return [(m.group(1), int(m.group(2)))]
    m = re.fullmatch(r'([vsa])\[(\d+):(\d+)\]', tok)
    if m: return [(m.group(1), i) for i in range(int(m.group(2)), int(m.group(3)) + 1)]
    if tok == 'vcc': return [('s', 106), ('s', 107)]
    if tok == 'vcc_lo': return [('s', 106)]
    if tok == 'vcc_hi': return [('s', 107)]
    if tok == 'exec': return [('s', 126), ('s', 127)]
    if tok == 'm0': return [('s', 124)]
    return []

class Ins:
    def __init__(self, text):
        self.text = text
        t = text.split(';')[0].strip()
        parts = t.split(None, 1)
        self.op = parts[0]
        rest = parts[1] if len(parts) > 1 else ''
        ops = []; cur = ''; depth = 0
        for ch in rest:
            if ch in '[(': depth += 1
            if ch in '])': depth -= 1
            if ch == ',' and depth == 0: ops.append(cur); cur = ''
            else: cur += ch
        if cur.strip(): ops.append(cur)
        mods = ''
        if ops:
            last = ops[-1].strip().split(None, 1)
            ops[-1] = last[0]
            mods = last[1] if len(last) > 1 else ''
        self.mods = mods
        ops = [o.strip() for o in ops]
        self.ops = ops
        op = self.op
        self.cls = 'other'
        d = []; s = []
        if op.startswith('v_mfma'):
            self.cls = 'sgemm' if op.endswith('_f32') and 'x4_f32' in op or op.endswith('x2_f32') else 'xdl'
            d = regs_of(ops[0]); self.srcA = regs_of(ops[1]); self.srcB = regs_of(ops[2]); self.srcC = regs_of(ops[3])
            s = self.srcA + self.srcB + self.srcC
            if '16x16x32' in op: self.passes = 4
            elif '32x32x16' in op: self.passes = 8
            elif '16x16x4_f32' in op: self.passes = 8
            elif '32x32x2_f32' in op: self.passes = 16
            else: raise Exception('unknown mfma ' + op)
        elif op.startswith('v_'):
            self.cls = 'valu'
            d = regs_of(ops[0])
            rs = ops[1:]
            if op.startswith(('v_add_co', 'v_sub_co', 'v_addc_co', 'v_subb_co', 'v_subrev_co', 'v_mad_u64', 'v_div_scale')):
                d += regs_of(ops[1]); rs = ops[2:]
            for o in rs: s += regs_of(o)
            if op.startswith(('v_fmac', 'v_pk_fmac', 'v_dot2c')) or 'dpp' in op or 'd16' in op or op.startswith('v_writelane'): s += regs_of(ops[0])
            if op.startswith('v_permlane') : d += regs_of(ops[1]); s += regs_of(ops[0])
            if op.startswith('v_cmpx'): d += regs_of('exec')
        elif op.startswith('ds_'):
            self.cls = 'ds'
            if op.startswith(('ds_read', 'ds_bpermute', 'ds_permute', 'ds_swizzle')) or '_rtn' in op:
                d = regs_of(ops[0])
                for o in ops[1:]: s += regs_of(o)
                if 'd16' in op: s += regs_of(ops[0])
            else:
                for o in ops: s += regs_of(o)
        elif op.startswith(('buffer_', 'global_')):
            self.cls = 'vmem'
            islds = re.search(r'\blds\b', mods) is not None or '_lds_' in op
            self.islds = islds
            if ('load' in op) and not islds:
                d = regs_of(ops[0])
                for o in ops[1:]: s += regs_of(o)
            else:
                for o in ops: s += regs_of(o)
                if 'atomic' in op and 'sc0' in mods: d = regs_of(ops[0])
            if islds: s += regs_of('m0')
        elif op.startswith(('s_load', 's_buffer_load', 's_memtime', 's_memrealtime')):
            self.cls = 'smem'
            d = regs_of(ops[0])
            for o in ops[1:]: s += regs_of(o)
        elif op.startswith('s_'):
            self.cls = 'salu'
            if op.startswith(NODST_S):
                for o in ops: s += regs_of(o)
            else:
                d = regs_of(ops[0])
                for o in ops[1:]: s += regs_of(o)
                if 'saveexec' in op: d += regs_of('exec')
        self.d = set(d); self.s = set(s)
        self.trans = op.replace('_e32', '').replace('_e64', '') in TRANS
        self.dpp = 'dpp' in op or 'row_' in mods or 'quad_perm' in mods
        self.states = 1
        if op == 's_nop': self.states = int(ops[0], 0) + 1

def need(p, c):
    n = 0
    pv = {r for r in p.d if r[0] in 'va'}; ps = {r for r in p.d if r[0] == 's'}
    if p.cls == 'valu':
        if c.cls in ('xdl', 'sgemm') and pv & c.s: n = max(n, 2)
        if c.cls in ('xdl', 'sgemm') and ('s', 126) in ps: n = max(n, 4)
        if p.trans and c.cls in ('valu',) and not c.trans and pv & (c.s | c.d): n = max(n, 1)
        if p.trans and c.cls in ('valu',) and c.trans and pv & (c.s): n = max(n, 1)
        if p.trans and c.cls in ('ds', 'vmem') and pv & c.s: n = max(n, 1)
        if c.cls == 'valu' and c.dpp and pv & c.s: n = max(n, 2)
        if c.cls == 'valu' and c.dpp and ('s', 126) in ps: n = max(n, 5)
        if c.cls == 'valu' and c.op.startswith('v_permlane') and pv & c.s: n = max(n, 2)
        if c.cls == 'valu' and c.op.startswith(('v_readlane', 'v_readfirstlane')) and pv & c.s: n = max(n, 1)
        if ps:
            if c.cls == 'vmem' and ps & c.s: n = max(n, 5)
            if c.cls == 'valu' and ps & c.s:
                n = max(n, 4 if c.op.startswith(('v_readlane', 'v_writelane')) else 2)
            if c.cls in ('salu', 'smem') and ps & c.s: n = max(n, 1)
            if ('s', 126) in ps and c.cls == 'valu' and c.op.startswith(('v_readlane', 'v_readfirstlane', 'v_writelane', 'v_permlane')): n = max(n, 4)
        if 'sdwa' in p.op or 'op_sel' in p.mods:
            if c.cls == 'valu' and pv & (c.s | c.d): n = max(n, 1)
    if p.cls == 'salu':
        if ('s', 124) in p.d and c.cls == 'vmem' and getattr(c, 'islds', False): n = max(n, 1)
    if p.cls == 'vmem' and 'store' in p.op and ('x4' in p.op or 'x3' in p.op):
        data = set(regs_of(p.ops[0])) if p.op.startswith('buffer') else set(regs_of(p.ops[1]))
        if data & c.d: n = max(n, 2)
    if p.cls in ('xdl', 'sgemm'):
        idx = {2: 0, 4: 1, 8: 2, 16: 3}[p.passes]
        if p.cls == 'xdl':
            if c.cls in ('xdl', 'sgemm'):
                if pv & set(c.srcA + c.srcB): n = max(n, [5, 8, 12, 20][idx])
                if pv & set(c.srcC):
                    if c.cls == 'xdl' and set(c.srcC) == pv and c.passes == p.passes: n = max(n, [2, 0, 0, 0][idx])
                    else: n = max(n, [4, 6, 10, 18][idx])
                elif pv & c.d: n = max(n, [5, 8, 12, 20][idx])
            elif pv & (c.s | c.d): n = max(n, [5, 8, 12, 20][idx])
            if c.cls == 'valu' and set(p.srcC) & c.d: n = max(n, [1, 3, 7, 15][idx])
        else:
            if c.cls in ('xdl', 'sgemm'):
                if pv & set(c.srcA + c.srcB): n = max(n, [4, 6, 10, 18][idx])
                if pv & set(c.srcC):
                    if c.cls == 'sgemm' and set(c.srcC) == pv: n = max(n, [2, 0, 0, 0][idx])
                    else: n = max(n, [2, 4, 8, 16][idx])
                elif pv & c.d: n = max(n, [4, 6, 10, 18][idx])
            elif pv & (c.s | c.d): n = max(n, [4, 6, 10, 18][idx])
    return n

class Asm:
    def __init__(self):
        self.lines = []
        self.win = []
        self.nops = 0
    def raw(self, text):
        self.lines.append(text)
    def label(self, name):
        self.lines.append(name + ':')
    def comment(self, t):
        self.lines.append('    ; ' + t)
    def fence(self):
        worst = 0; dist = 0
        for p in reversed(self.win):
            w = 0
            if p.cls == 'valu': w = 5
            if p.cls in ('xdl', 'sgemm'): w = {2: 5, 4: 8, 8: 12, 16: 20}[p.passes]
            if p.cls == 'vmem': w = 2
            if p.cls == 'salu': w = 1 if ('s', 124) in p.d else 0
            worst = max(worst, w - dist)
            dist += p.states
        while worst > 0:
            k = min(worst, 16)
            self('s_nop %d' % (k - 1))
            worst -= k
        self.win = []
    def __call__(self, text):
        for ln in text.strip().split('\n'):
            ln = ln.strip()
            if not ln: continue
            if ln.startswith(';'): self.lines.append('    ' + ln); continue
            if ln.endswith(':'): self.label(ln[:-1]); continue
            c = Ins(ln)
            req = 0; dist = 0
            for p in reversed(self.win):
                req = max(req, need(p, c) - dist)
                dist += p.states
                if dist > 24: break
            while req > 0:
                k = min(req, 16)
                nop = Ins('s_nop %d' % (k - 1))
                self.lines.append('    s_nop %d' % (k - 1)); self.win.append(nop); self.nops += 1
                req -= k
            self.lines.append('    ' + ln)
            self.win.append(c)
            if len(self.win) > 40: self.win = self.win[-30:]
    stamps = False
    stamp_op = 's_memrealtime'
    stamp_sel = None
    def stamp(self, i, wait=False):
        if not self.stamps: return
        if isinstance(i, str):
            if i not in self.stamp_sel: return
            i = 1 + self.stamp_sel.index(i)
        self(f'{self.stamp_op} s[{72+2*i}:{73+2*i}]')
        if wait: self('s_waitcnt lgkmcnt(0)')
    def stamp_init(self):
        if self.stamps:
            for i in range(8): self(f's_mov_b64 s[{72+2*i}:{73+2*i}], 0')
            self('s_mov_b32 s90, s2')
            self.stamp(0)
    def stamp_flush(self, ki, wave_sreg):
        if not self.stamps: return
        self('s_waitcnt vmcnt(0) lgkmcnt(0)')
        self.stamp(7)
        self('s_mov_b64 exec, 1')
        self('s_waitcnt lgkmcnt(0)')
        for i in range(8): self(f'v_mov_b32 v{8+i}, s{72+2*i}')
        self(f"""s_lshl_b32 s91, s90, 4
s_add_u32 s91, s91, s{wave_sreg}
s_lshl_b32 s91, s91, 5
s_add_u32 s91, s91, {0x8000000 + ki*0x100000}
v_mov_b32 v16, s91
global_store_dwordx4 v16, v[8:11], s[40:41]
global_store_dwordx4 v16, v[12:15], s[40:41] offset:16""")
    def text(self):
        return '\n'.join(self.lines) + '\n'

def vr(a, n=1):
    return 'v%d' % a if n == 1 else 'v[%d:%d]' % (a, a + n - 1)
def sr(a, n=1):
    return 's%d' % a if n == 1 else 's[%d:%d]' % (a, a + n - 1)

def kdesc(name, vgpr, sgpr=102, extra=''):
    acc = (vgpr + 3) // 4 * 4
    return f""".p2align 6
.amdhsa_kernel {name}
  .amdhsa_next_free_vgpr {vgpr}
  .amdhsa_next_free_sgpr {sgpr}
  .amdhsa_accum_offset {acc}
  .amdhsa_group_segment_fixed_size 0
  .amdhsa_kernarg_size 136
  .amdhsa_user_sgpr_count 2
  .amdhsa_user_sgpr_kernarg_segment_ptr 1
  .amdhsa_system_sgpr_workgroup_id_x 1
  .amdhsa_float_denorm_mode_32 3
{extra}.end_amdhsa_kernel
"""
```

```python
import sys, struct
from asmlib import *
from k1 import f2u, L2E, L2E_HI, L2E_LO, INV2PI, load_ptrs, P, ptr, rnd, lo2f, hi2f, bfexp
import k2
KN = 'gated_mix__ssm_conv_s4d__ssm_conv_h3__prompt_kernel'

WS_UR = 0; WS_KVR = 2 << 20; WS_IN = 4 << 20; WS_GT = WS_IN + 0x40000; WS_EP = WS_IN + 0x50000
KLC = 4224; KLS = 2 * KLC
UXC = 4576; UXS = 2 * UXC
L_KL = 0
L_UX = 4 * KLS
L_Y = L_UX + 4 * UXS
L_G = L_Y + 16384
L_RED = L_Y
L_KC = L_RED + 24576
L_TK = L_KC + 6144
L_TV = L_TK + 9 * 1040
L_TU = L_TV + 8 * 1040
L_PAR = L_TU + 8 * 1040
L_FLG = L_PAR + 4096 + 64
L_END = L_FLG + 128

class VM:
    def __init__(self, A): self.A = A; self.q = []
    def issue(self, text, tag=None):
        self.A(text); self.q.append(tag)
    def wait(self, *tags, extra=''):
        idx = max(i for i, t in enumerate(self.q) if t in tags)
        n = len(self.q) - 1 - idx
        self.A(f's_waitcnt vmcnt({n}){extra}')
        self.q = self.q[idx + 1:]

def gen(path, stamps=None, opts=None):
    o = dict(prefetch=True, prio=2, sleep=1)
    o.update(opts or {})
    A = Asm(); A.stamps = bool(stamps); A.stamp_sel = stamps
    if o.get('cyc'): A.stamp_op = 's_memtime'
    V = VM(A)
    A.raw(f'.globl {KN}\n.p2align 8\n.type {KN},@function\n{KN}:')
    A('s_cmp_ge_u32 s2, 256\ns_cbranch_scc1 Lend')
    A.stamp_init()
    load_ptrs(A)
    LANE, IDX, KG = 1, 2, 3
    TAG = 4
    POS = [5, 6, 7, 8]
    VPAR = 9
    FSC = 10
    ACC = [12, 16, 20]
    SK = 24; GU = 28; GW = 32
    VST = 36; VTA = 37; VTB = 38; VFL = 39
    t0, t1, t2, t3, t4, t5, t6, t7 = 40, 41, 42, 43, 44, 45, 46, 47
    if o['prefetch']:
        A(f'''s_getpc_b64 s[68:69]
v_lshlrev_b32 v49, 4, v0
v_add_u32 v50, 0x2000, v49
v_min_u32 v50, Lend-{KN}-16, v50
s_and_b32 s68, s68, 0xffffff00
global_load_dwordx4 v[56:59], v49, s[68:69]
global_load_dwordx4 v[60:63], v50, s[68:69]''')
    A(f'''v_lshrrev_b32 v{t0}, 6, v0
v_readfirstlane_b32 s3, v{t0}          ; wave
v_and_b32 v{LANE}, 63, v0
v_and_b32 v{IDX}, 15, v0
v_bfe_u32 v{KG}, v0, 4, 2
s_and_b32 s4, s2, 7                    ; s
s_lshr_b32 s5, s2, 3                   ; jq
s_lshl_b32 s6, s4, 6
s_lshl_b32 s7, s5, 1
s_add_u32 s6, s6, s7                   ; d0
s_lshr_b32 s42, s3, 2                  ; w>>2
s_and_b32 s43, s3, 3                   ; w&3
v_mov_b32 v{t3}, {WS_EP}
s_lshl_b32 s94, s4, 9
s_lshl_b32 s95, s3, 6
s_add_u32 s94, s94, s95
v_lshlrev_b32 v{t6}, 4, v{KG}
v_add_u32 v{t6}, s94, v{t6}
v_lshlrev_b32 v{t7}, 4, v{LANE}
s_lshl_b32 s94, s2, 13
s_lshl_b32 s95, s3, 10
s_add_u32 s94, s94, s95
v_add_u32 v48, s94, v{t7}
s_cmp_ge_u32 s3, 4
s_cbranch_scc1 Ltiles''')
    def common_loads():
        V.issue(f"global_load_dwordx4 {vr(SK,4)}, v{t6}, {ptr('shk')}", 'tile')
        V.issue(f"global_load_dword v{TAG}, v{t3}, {ptr('ws')} sc1", 'tile')
        V.issue(f"global_load_dwordx4 {vr(GU,4)}, v48, {ptr('u')}", 'gate')
        V.issue(f"global_load_dwordx4 {vr(GW,4)}, v{t7}, {ptr('gw')}", 'gate')
    PL = 51
    A(f'''s_lshl_b32 s70, s6, 8
v_lshlrev_b32 v{t1}, 1, v0
v_add_u32 v{t1}, s70, v{t1}
s_lshr_b32 s71, s3, 1
s_add_u32 s71, s71, s6
s_lshl_b32 s71, s71, 1
v_mov_b32 v{t2}, s71
s_mov_b32 s48, {f2u(L2E_HI):#x}
s_mov_b32 s49, {f2u(L2E_LO):#x}
s_waitcnt lgkmcnt(0)''')
    V.issue(f"global_load_ushort v{PL}, v{t2}, {ptr('logdt')}", 'par')
    V.issue(f"global_load_ushort v{PL+1}, v{t1}, {ptr('logA')}", 'par')
    V.issue(f"global_load_ushort v{PL+2}, v{t1}, {ptr('Aim')}", 'par')
    V.issue(f"global_load_ushort v{PL+3}, v{t1}, {ptr('Cr')}", 'par')
    V.issue(f"global_load_ushort v{PL+4}, v{t1}, {ptr('Ci')}", 'par')
    common_loads()
    A.stamp('issued')
    A(f'''v_lshlrev_b32 v{t1}, 4, v0
v_add_u32 v{t1}, {L_PAR}, v{t1}
s_lshl_b32 s94, s3, 2
s_add_u32 s94, s94, {L_PAR + 4096}
v_mov_b32 v{t4}, s94''')
    V.wait('par')
    A.stamp('par')
    for i in range(5): A(f'v_lshlrev_b32 v{PL+i}, 16, v{PL+i}')
    A(f'v_max_f32 v{t5}, |v{PL+3}|, |v{PL+4}|')
    bfexp(A, PL, PL, t2, t3, 48, 49)
    for sh in (1, 2): A(f'v_max_f32_dpp v{t5}, v{t5}, v{t5} row_shr:{sh} row_mask:0xf bank_mask:0xf')
    bfexp(A, PL + 1, PL + 1, t2, t3, 48, 49)
    for sh in (4, 8): A(f'v_max_f32_dpp v{t5}, v{t5}, v{t5} row_shr:{sh} row_mask:0xf bank_mask:0xf')
    A(f'''v_mul_f32 v{PL+1}, v{PL+1}, v{PL}
v_mul_f32 v{PL+2}, v{PL+2}, v{PL}
v_max_f32_dpp v{t5}, v{t5}, v{t5} row_bcast:15 row_mask:0xa bank_mask:0xf
v_mul_f32 v64, {f2u(-L2E):#x}, v{PL+1}
v_mul_f32 v65, {f2u(INV2PI):#x}, v{PL+2}
v_max_f32_dpp v{t5}, v{t5}, v{t5} row_bcast:31 row_mask:0xc bank_mask:0xf
v_readlane_b32 s94, v{t5}, 63
s_lshr_b32 s94, s94, 23
s_max_u32 s94, s94, 13
s_sub_u32 s95, 267, s94
s_lshl_b32 s95, s95, 23
s_sub_i32 s94, s94, 153
v_mul_f32 v66, s95, v{PL+3}
v_mul_f32 v67, s95, v{PL+4}
v_ldexp_f32 v{t5}, v{PL}, s94
ds_write_b128 v{t1}, v[64:67]
ds_write_b32 v{t4}, v{t5}''')
    A.fence()
    A('s_branch Ljoin')
    A.win = []
    qjoin = list(V.q)
    A.label('Ltiles')
    V.q = []
    A(f'''v_lshrrev_b32 v{t4}, 3, v{LANE}
v_lshlrev_b32 v{t4}, 10, v{t4}
v_and_b32 v{t5}, 7, v0
v_lshl_add_u32 v{t4}, v{t5}, 4, v{t4}
s_lshl_b32 s70, s5, 16
s_lshl_b32 s71, s4, 7
s_add_u32 s70, s70, s71                ; 64 j*1024 + 128 s
s_sub_u32 s71, s70, 0x2000
v_add_u32 v{t5}, s71, v{t4}
s_lshl_b32 s71, s43, 14
s_add_u32 s70, s70, s71
v_add_u32 v{t4}, s70, v{t4}
v_add_u32 v{t1}, 0x2000, v{t4}
s_mul_i32 s70, s43, 2080
s_lshl_b32 s71, s43, 4
s_lshl_b64 s[92:93], 0xffff, s71
s_waitcnt lgkmcnt(0)
s_mov_b32 s44, s{P['k']}
s_mov_b32 s45, s{P['k']+1}
s_mov_b32 s46, 0x200000
s_mov_b32 s47, 0x00020000''')
    for g, va in ((0, t4), (1, t1)):
        A(f's_add_u32 m0, s70, {L_TK + 1040 + 1040*g}')
        V.issue(f"global_load_lds_dwordx4 v{va}, {ptr('k')}", 'tile')
        A(f's_add_u32 m0, s70, {L_TV + 1040*g}')
        V.issue(f"global_load_lds_dwordx4 v{va}, {ptr('v')}", 'tile')
        A(f's_add_u32 m0, s70, {L_TU + 1040*g}')
        V.issue(f"global_load_lds_dwordx4 v{va}, {ptr('u')}", 'tile')
    A(f's_mov_b32 m0, {L_TK}\ns_mov_b64 exec, s[92:93]')
    V.issue(f'buffer_load_dwordx4 v{t5}, s[44:47], 0 offen lds', 'tile')
    A('s_mov_b64 exec, -1')
    common_loads()
    A.stamp('issued')
    A.fence()
    A.label('Ljoin')
    V.q = ['tile', 'tile', 'gate', 'gate']
    A(f'''s_mov_b32 s50, {f2u(14.0):#x}
s_mov_b32 s52, 0x05040100
s_mov_b32 s53, 0x07060302
v_lshlrev_b32 v{t1}, 3, v{IDX}
v_cvt_f32_u32 v{POS[0]}, v{t1}
v_and_b32 v{t1}, 7, v{IDX}
v_and_b32 v{t2}, 8, v{IDX}
v_lshl_or_b32 v{t1}, v{t2}, 4, v{t1}
v_cvt_f32_u32 v{POS[1]}, v{t1}
v_and_b32 v{t1}, 3, v{IDX}
v_lshlrev_b32 v{t1}, 1, v{t1}
v_and_b32 v{t2}, 4, v{IDX}
v_lshl_or_b32 v{t1}, v{t2}, 5, v{t1}
v_add_u32 v{t1}, 0x100, v{t1}
v_and_b32 v{t2}, 1, v{IDX}
v_lshlrev_b32 v{t2}, 2, v{t2}
v_and_b32 v{t3}, 6, v{IDX}
v_lshl_or_b32 v{t2}, v{t3}, 6, v{t2}
v_add_u32 v{t2}, 0x200, v{t2}
v_cmp_gt_u32 vcc, 8, v{IDX}
v_cndmask_b32 v{t1}, v{t2}, v{t1}, vcc
v_cvt_f32_u32 v{POS[2]}, v{t1}
v_lshlrev_b32 v{t1}, 7, v{IDX}
v_add_u32 v{t1}, 0x400, v{t1}
v_cvt_f32_u32 v{POS[3]}, v{t1}
s_lshl_b32 s94, s3, 9
s_add_u32 s94, s94, {L_PAR}
v_lshlrev_b32 v{VPAR}, 6, v{KG}
v_add_u32 v{VPAR}, s94, v{VPAR}
s_lshr_b32 s94, s3, 1
s_lshl_b32 s94, s94, 2
s_add_u32 s94, s94, {L_PAR + 4096}
v_mov_b32 v{t1}, s94
s_mov_b32 s51, 0''')
    for a in ACC:
        for i in range(4): A(f'v_mov_b32 v{a+i}, 0')
    A(f's_waitcnt lgkmcnt(0)\ns_barrier\nds_read_b32 v{FSC}, v{t1}')
    A.stamp('bar0', True)
    A.fence()
    A.label('Lkgen')
    PR = 64
    M, TH, C, S = 80, 84, 88, 92
    HA = [96, 100, 104]; FB = 108
    for j in range(4): A(f'ds_read_b128 {vr(PR+4*j,4)}, v{VPAR} offset:{16*j}')
    for j in range(4):
        a_, b_, cr, ci = [PR + 4 * j + i for i in range(4)]
        A(f's_waitcnt lgkmcnt({3-j})')
        for e in range(4): A(f'v_mul_f32 v{TH+e}, v{b_}, v{POS[e]}')
        A(f'v_mul_f32 v{M}, v{a_}, v{POS[0]}')
        for e in range(1, 4): A(f'v_fma_f32 v{M+e}, v{a_}, v{POS[e]}, s50')
        for e in range(4): A(f'v_fract_f32 v{TH+e}, v{TH+e}')
        for e in range(4): A(f'v_exp_f32 v{M+e}, v{M+e}')
        for e in range(4): A(f'v_cos_f32 v{C+e}, v{TH+e}')
        for e in range(4): A(f'v_sin_f32 v{S+e}, v{TH+e}')
        for e in range(4):
            A(f'v_mul_f32 v{C+e}, v{M+e}, v{C+e}')
            A(f'v_mul_f32 v{S+e}, v{M+e}, v{S+e}')
        A(f'v_mul_f32 v{M}, v{cr}, v{C}\nv_mul_f32 v{M+1}, v{cr}, v{S}')
        for e in range(1, 4): A(f'v_cvt_pk_f16_f32 v{HA[e-1]+j}, v{C+e}, v{S+e}')
        A(f'''v_fma_f32 v{M}, -v{ci}, v{S}, v{M}
v_fma_f32 v{M+1}, v{ci}, v{C}, v{M+1}
v_cvt_pk_f16_f32 v{FB+j}, v{M}, -v{M+1}''')
    for tt in range(3):
        A(f'v_mfma_f32_16x16x32_f16 {vr(ACC[tt],4)}, {vr(HA[tt],4)}, {vr(FB,4)}, {vr(ACC[tt],4)}')
    A(f'''v_add_u32 v{VPAR}, 0x100, v{VPAR}
s_cmp_lg_u32 s51, 0
s_cbranch_scc1 Lkdone
s_mov_b32 s51, 1''')
    A.stamp('k0')
    A(f'''v_lshrrev_b32 v{t2}, 1, v{IDX}
v_mul_u32_u24 v{VTA}, 1040, v{t2}
v_and_b32 v{t3}, 1, v{IDX}
v_lshl_add_u32 v{VTA}, v{t3}, 9, v{VTA}
v_lshl_add_u32 v{VTA}, v{KG}, 2, v{VTA}
s_lshl_b32 s94, s3, 4
s_add_u32 s94, s94, {L_TK}
v_add_u32 v{VTA}, s94, v{VTA}
v_lshl_add_u32 v{VTB}, v{t3}, 4, v{VTA}
v_lshl_add_u32 v{VST}, v{KG}, 1, v{t3}
v_lshlrev_b32 v{VST}, 12, v{VST}
v_lshlrev_b32 v{t2}, 4, v{t2}
v_sub_u32 v{VST}, v{VST}, v{t2}
s_lshl_b32 s94, s4, 18
s_lshl_b32 s95, s3, 15
s_add_u32 s94, s94, s95
s_lshl_b32 s95, s5, 7
s_sub_u32 s94, s94, s95
s_add_u32 s94, s94, {3968 + 112}
v_add_u32 v{VST}, s94, v{VST}
v_add_u32 v{t0}, {WS_KVR}, v{VST}
v_cmp_eq_u32 vcc, 1, v{t3}''')
    V.wait('tile')
    A.stamp('tile')
    A('s_barrier')
    A.stamp('bar1', True)
    KD = 64; VD = 71; UD = 75
    for i in range(3): A(f'ds_read_b32 v{KD+i}, v{VTB} offset:{512 + 128*(i+1)}')
    for i in range(4): A(f'ds_read_b32 v{KD+3+i}, v{VTA} offset:{1040 + 128*i}')
    for i in range(4): A(f'ds_read_b32 v{VD+i}, v{VTA} offset:{L_TV - L_TK + 128*i}')
    for i in range(4): A(f'ds_read_b32 v{UD+i}, v{VTA} offset:{L_TU - L_TK + 128*i}')
    W = 80; KP = 88; VP = 102; AC = 110; O = 126; UN = 136
    for t in range(4):
        for ee in range(2):
            (hi2f if t & 1 else lo2f)(A, W + 2 * t + ee, SK + 2 * ee + (t >> 1))
    A(f'v_add_u32 v{TAG}, 1, v{TAG}')
    A('s_waitcnt lgkmcnt(8)')
    for i in range(7): lo2f(A, KP + 2 * i, KD + i); hi2f(A, KP + 2 * i + 1, KD + i)
    for a in range(4): A(f'v_pk_mul_f32 {vr(AC+2*a,2)}, {vr(KP+2*a,2)}, {vr(W+6,2)}')
    for tp in range(1, 4):
        for a in range(4): A(f'v_pk_fma_f32 {vr(AC+2*a,2)}, {vr(KP+2*(a+tp),2)}, {vr(W+2*(3-tp),2)}, {vr(AC+2*a,2)}')
    A('s_waitcnt lgkmcnt(0)')
    for i in range(4): lo2f(A, VP + 2 * i, VD + i); hi2f(A, VP + 2 * i + 1, VD + i)
    for ch in range(2):
        A(f'v_perm_b32 v{O+4+2*ch}, v{UD+2}, v{UD+3}, s{52+ch}')
        A(f'v_perm_b32 v{O+4+2*ch+1}, v{UD}, v{UD+1}, s{52+ch}')
    for a in range(4): A(f'v_pk_mul_f32 {vr(AC+2*a,2)}, {vr(AC+2*a,2)}, {vr(VP+2*a,2)}')
    for ch in range(2):
        A(f'v_cvt_pk_bf16_f32 v{O+2*ch}, v{AC+6+ch}, v{AC+4+ch}')
        A(f'v_cvt_pk_bf16_f32 v{O+2*ch+1}, v{AC+2+ch}, v{AC+ch}')
    dpp = 'quad_perm:[1,0,3,2] row_mask:0xf bank_mask:0xf'
    for tn in (1, 0):
        for i in range(2):
            A(f'v_cndmask_b32_dpp v{UN+4*tn+i}, v{O+4*tn+i}, v{O+4*tn+2+i}, vcc {dpp}')
    A('s_not_b64 vcc, vcc')
    for tn in (1, 0):
        for i in range(2):
            A(f'v_cndmask_b32_dpp v{UN+4*tn+2+i}, v{O+4*tn+2+i}, v{O+4*tn+i}, vcc {dpp}')
    A.stamp('tcomp')
    V.issue(f"global_store_dwordx4 v{VST}, {vr(UN+4,4)}, {ptr('ws')} sc1", 'st')
    V.issue(f"global_store_dwordx4 v{t0}, {vr(UN,4)}, {ptr('ws')} sc1", 'st')
    A.stamp('tst')
    X = 64
    V.wait('gate')
    A(f'''v_dot2_f32_bf16 v{X}, v{GU}, v{GW}, 0
v_dot2_f32_bf16 v{X+1}, v{GU+1}, v{GW+1}, 0
v_dot2_f32_bf16 v{X}, v{GU+2}, v{GW+2}, v{X}
v_dot2_f32_bf16 v{X+1}, v{GU+3}, v{GW+3}, v{X+1}
s_lshl_b32 s94, s3, 2
v_and_b32 v{t2}, 3, v0
v_add_u32 v{VFL}, s94, v{t2}
v_add_f32 v{X}, v{X}, v{X+1}
v_lshlrev_b32 v{VFL}, 12, v{VFL}
s_lshl_b32 s94, s4, 9''')
    extra = [f's_lshr_b32 s95, s5, 3\ns_lshl_b32 s95, s95, 7', f's_add_u32 s94, s94, s95\ns_and_b32 s95, s5, 7',
             f's_lshl_b32 s96, s95, 2\ns_add_u32 s94, s94, s96', f's_add_u32 s94, s94, {WS_IN}\nv_add_u32 v{VFL}, s94, v{VFL}']
    for n, sh in enumerate((1, 2, 4, 8)):
        A(f'v_add_f32_dpp v{X}, v{X}, v{X} row_shr:{sh} row_mask:0xf bank_mask:0xf bound_ctrl:0')
        A(extra[n])
    A(f'''v_add_f32_dpp v{X}, v{X}, v{X} row_bcast:15 row_mask:0xa bank_mask:0xf
v_bfe_u32 v{t2}, v0, 2, 1
v_mul_u32_u24 v{t2}, 132, v{t2}
v_add_f32_dpp v{X}, v{X}, v{X} row_bcast:31 row_mask:0xc bank_mask:0xf
v_add_u32 v{VFL}, v{VFL}, v{t2}
s_cmp_eq_u32 s95, 7
s_cselect_b32 s70, 0xff, 15
s_cmp_eq_u32 s5, 31
s_cselect_b32 s70, 15, s70''')
    rnd(A, X, X)
    A(f'''v_mul_f32 v{X}, {f2u(-L2E):#x}, v{X}
v_exp_f32 v{X}, v{X}
s_lshl_b32 s94, s2, 6
s_lshl_b32 s95, s3, 3
v_add_f32 v{X}, 1.0, v{X}
v_rcp_f32 v{X}, v{X}
s_add_u32 s94, s94, s95
s_add_u32 s94, s94, {WS_GT}
v_mov_b32 v{t0}, s94
v_cvt_pk_bf16_f32 v144, v{X}, 0
v_mov_b32 v145, v{TAG}
s_mov_b32 exec_lo, 0
s_brev_b32 exec_hi, 1''')
    V.issue(f"global_store_dwordx2 v{t0}, v[144:145], {ptr('ws')} sc1", 'g')
    A('s_mov_b64 exec, -1')
    A.stamp('gate')
    A(f'''s_add_u32 s94, s6, s42
s_lshl_b32 s94, s94, 12
s_add_u32 s60, s{P['ssmk']}, s94
s_addc_u32 s61, s{P['ssmk']+1}, 0
s_mov_b32 s62, 4096
s_mov_b32 s63, 0x00020000
s_bfe_u32 s95, s3, 0x10001             ; copy
s_and_b32 s96, s3, 1                   ; half
s_mul_i32 s94, s42, {2*KLS}
s_mul_i32 s97, s95, {KLC}
s_add_u32 s94, s94, s97
s_add_u32 s94, s94, {L_KL + KLS}
s_lshl_b32 s96, s96, 11
s_lshl_b32 s95, s95, 2
s_add_u32 s97, s96, s95
v_lshlrev_b32 v{t4}, 4, v{LANE}
v_lshlrev_b32 v{t5}, 2, v{LANE}
s_sub_u32 s95, s95, 64
v_add_u32 v{t5}, s95, v{t5}
s_add_u32 s96, s96, s94
s_add_u32 m0, s96, 64''')
    V.issue(f'buffer_load_dwordx4 v{t4}, s[60:63], s97 offen lds', 'ssmk')
    V.issue(f'buffer_load_dwordx4 v{t4}, s[60:63], s97 offen offset:1024 lds', 'ssmk')
    A('s_mov_b32 m0, s94\ns_mov_b64 exec, 0xffff')
    V.issue(f'buffer_load_dword v{t5}, s[60:63], 0 offen lds', 'ssmk')
    A('s_mov_b64 exec, -1')
    A.stamp('ssmk', True)
    if o.get('earlyflag', True):
        V.wait('st')
        A('s_mov_b32 exec_lo, s70\ns_mov_b32 exec_hi, 0')
        V.issue(f"global_store_dword v{VFL}, v{TAG}, {ptr('ws')} sc1", 'fl')
        A('s_mov_b64 exec, -1')
        A.stamp('drain', True)
    A.fence()
    A('s_branch Lkgen')
    A.win = []
    A.label('Lkdone')
    A.stamp('k1')
    if not o.get('earlyflag', True):
        V.wait('st')
        A('s_mov_b32 exec_lo, s70\ns_mov_b32 exec_hi, 0')
        V.issue(f"global_store_dword v{VFL}, v{TAG}, {ptr('ws')} sc1", 'fl')
        A('s_mov_b64 exec, -1')
        A.stamp('drain', True)
    A(f'''s_mul_i32 s94, s3, 3072
s_add_u32 s94, s94, {L_RED}
v_lshlrev_b32 v{t0}, 4, v{LANE}
v_add_u32 v{t1}, s94, v{t0}
s_min_u32 s95, s43, 2
s_mul_i32 s94, s42, 12288
s_lshl_b32 s96, s95, 10
s_add_u32 s94, s94, s96
s_add_u32 s94, s94, {L_RED}
v_add_u32 v{t2}, s94, v{t0}
s_nop 2''')
    for a in ACC:
        for i in range(4): A(f'v_mul_f32 v{a+i}, v{FSC}, v{a+i}')
    for tt in range(3): A(f'ds_write_b128 v{t1}, {vr(ACC[tt],4)} offset:{1024*tt}')
    A(f'''v_and_b32 v{t3}, 1, v{KG}
v_lshlrev_b32 v{t3}, 4, v{t3}
v_lshrrev_b32 v{t4}, 1, v{KG}
v_lshl_or_b32 v{t3}, v{t4}, 9, v{t3}
v_lshl_add_u32 v{t3}, v{IDX}, 5, v{t3}
v_lshlrev_b32 v{t4}, 8, v{KG}
v_lshl_add_u32 v{t5}, v{IDX}, 4, v{t4}
v_lshl_add_u32 v{t6}, v{IDX}, 3, v{t4}
v_cmp_gt_u32 vcc, 2, v{KG}
v_cndmask_b32 v{t5}, v{t6}, v{t5}, vcc
v_add_u32 v{t5}, 0x400, v{t5}
v_mov_b32 v{t6}, 0x80
v_cndmask_b32 v{t6}, v{t6}, 8, vcc
v_lshl_add_u32 v{t4}, v{IDX}, 2, v{t4}
v_add_u32 v{t4}, 0x800, v{t4}
s_cmp_eq_u32 s95, 0
s_cselect_b64 vcc, -1, 0
v_cndmask_b32 v{t5}, v{t5}, v{t3}, vcc
v_cndmask_b32 v{t6}, v{t6}, 8, vcc
s_cmp_eq_u32 s95, 2
s_cselect_b64 vcc, -1, 0
s_cselect_b32 s96, 64, 4
v_cndmask_b32 v{t5}, v{t5}, v{t4}, vcc
v_mov_b32 v{t3}, 0x80
v_cndmask_b32 v{t6}, v{t6}, v{t3}, vcc
s_mul_i32 s94, s42, 3072
s_add_u32 s94, s94, {L_KC}
v_add_u32 v{t3}, s94, v{t5}                      ; r0
v_add_u32 v{t4}, s96, v{t3}                      ; r1
v_add_u32 v{t5}, v{t6}, v{t3}                    ; r2
v_add_u32 v{t6}, v{t6}, v{t4}                    ; r3''')
    A.stamp('prebar2')
    A('s_waitcnt lgkmcnt(0)\ns_barrier')
    A.stamp('bar2', True)
    for pp in range(4): A(f'ds_read_b128 {vr(64+4*pp,4)}, v{t2} offset:{3072*pp}')
    CI = 80
    A(f'v_lshlrev_b32 v{t1}, 2, v0')
    for i in range(4):
        A(f'''v_add_u32 v{t7}, {i}, v{t1}
v_cvt_f32_u32 v84, v{t7}
v_cvt_pk_bf16_f32 v84, v84, 0
v_subrev_u32 v84, {133*128}, v84
v_cmp_gt_u32 vcc, 0x80, v{t7}
v_cndmask_b32 v84, v84, v{t7}, vcc
v_lshlrev_b32 v{CI+i}, 2, v84
v_add_u32 v{CI+i}, {L_KC}, v{CI+i}''')
        if i == 0:
            A('s_waitcnt lgkmcnt(0)')
            for r in range(4):
                A(f'v_add_f32 v{64+r}, v{64+r}, v{68+r}\nv_add_f32 v{72+r}, v{72+r}, v{76+r}')
            for r in range(4): A(f'v_add_f32 v{64+r}, v{64+r}, v{72+r}')
            for r in range(4): A(f'ds_write_b32 v{t3+r}, v{64+r}')
    A(f'''v_lshlrev_b32 v{t1}, 3, v0
v_add_u32 v{t1}, {L_KL + 64}, v{t1}
v_add_u32 v{t2}, {KLC - 4}, v{t1}
v_mov_b32 v108, 0
v_mov_b32 v109, 0
v_mov_b32 v110, 0
v_mov_b32 v111, 0
s_waitcnt lgkmcnt(0)
s_barrier''')
    A.stamp('bar2b', True)
    RD = 64
    for i in range(4): A(f'ds_read2st64_b32 {vr(RD+2*i,2)}, v{CI+i} offset0:0 offset1:12')
    A(f'''s_mul_i32 s94, s43, {UXS}
s_mul_i32 s95, s42, {UXC}
s_add_u32 s94, s94, s95
s_add_u32 s94, s94, {L_UX + 4096}
v_add_u32 v{t3}, s94, v{t0}
s_mov_b32 exec_lo, 0x0fffffff
s_mov_b32 exec_hi, 0
ds_write_b128 v{t3}, v[108:111]
s_mov_b32 exec_lo, 0xff
v_add_u32 v{t3}, {L_FLG}, v{t0}
ds_write_b128 v{t3}, v[108:111]
s_mov_b32 exec_lo, 15
ds_write_b128 v{t0}, v[108:111] offset:{L_KL}
ds_write_b128 v{t0}, v[108:111] offset:{L_KL + 2*KLS}
s_mov_b32 exec_lo, 0x7fff
v_lshlrev_b32 v{t3}, 2, v{LANE}
ds_write_b32 v{t3}, v108 offset:{L_KL + KLC}
ds_write_b32 v{t3}, v108 offset:{L_KL + 2*KLS + KLC}
s_mov_b64 exec, -1
s_waitcnt lgkmcnt(6)''')
    for ch in range(2):
        A(f'v_cvt_pk_bf16_f32 v{104+2*ch}, v{RD+ch}, v{RD+2+ch}')
        A(f'v_cvt_pk_bf16_f32 v{105+2*ch}, v{RD+4+ch}, v{RD+6+ch}')
        A(f'ds_write_b64 v{t1}, {vr(104+2*ch,2)} offset:{2*KLS*ch}')
        A(f'ds_write_b32 v{t2}, v{104+2*ch} offset:{2*KLS*ch}')
        A(f'ds_write_b32 v{t2}, v{105+2*ch} offset:{2*KLS*ch + 4}')
    V.wait('ssmk', extra=' lgkmcnt(0)')
    A('s_barrier\ns_cmp_ge_u32 s3, 4')
    A.stamp('bar3', True)
    A('s_cbranch_scc1 Lhelp')
    A(f'''s_mul_i32 s94, s3, {KLS}
s_add_u32 s94, s94, {L_KL}
v_lshl_add_u32 v4, v{KG}, 2, v{IDX}
v_lshlrev_b32 v4, 2, v4                ; 4 (n + 4 kg)
v_and_b32 v{t4}, 1, v{IDX}
v_mov_b32 v{t5}, {KLC}
v_cmp_eq_u32 vcc, 1, v{t4}
v_cndmask_b32 v{t5}, v{t5}, 4, vcc
v_add3_u32 v4, v4, v{t5}, s94          ; vK
v_mul_u32_u24 v5, {UXC}, v{t4}
v_lshrrev_b32 v{t4}, 1, v{IDX}
v_lshlrev_b32 v{t4}, 6, v{t4}
v_sub_u32 v5, v5, v{t4}
v_lshl_add_u32 v5, v{KG}, 4, v5
s_mul_i32 s94, s3, {UXS}
s_add_u32 s94, s94, {L_UX + 448}
v_add_u32 v5, s94, v5                  ; vU
s_lshl_b32 s94, s3, 12
s_add_u32 s94, s94, {L_Y}
v_lshlrev_b32 v6, 2, v{IDX}
v_lshl_add_u32 v6, v{KG}, 7, v6
v_add_u32 v6, s94, v6                  ; vY
s_lshl_b32 s94, s3, 2
s_add_u32 s94, s94, {L_FLG}
v_mov_b32 v7, s94
v_mov_b32 v1, 1
v_mov_b32 v2, {L_FLG + 64}''')
    if o['prio']: A(f"s_setprio {o['prio']}")
    mfma_phase(A, 4, 5, 6, 7, 1, 2, o)
    A.stamp_flush(0, 3)
    A('s_endpgm')
    A.win = []
    A.label('Lhelp')
    GQ = 96; H = 120; SD = 8
    A(f'''v_subrev_u32 v5, 0x100, v0             ; ht
v_lshlrev_b32 v{H+8}, 4, v5
v_add_u32 v{H+8}, {WS_GT}, v{H+8}
v_add_u32 v{H+9}, 0x1000, v{H+8}
v_add_u32 v{H+10}, 0x2000, v{H+8}
v_add_u32 v{H+11}, 0x3000, v{H+8}
s_lshl_b32 s95, s6, 1
s_load_dword s96, {ptr('Dskip')}, s95
s_load_dword s97, {ptr('ssmD')}, s95
s_mov_b32 s56, s{P['out']}
s_mov_b32 s57, s{P['out']+1}
s_mov_b32 s58, 0x200000
s_mov_b32 s59, 0x00020000
v_lshlrev_b32 v6, 2, v5
v_add_u32 v{H}, {L_Y}, v6              ; vP
v_sub_u32 v{H+1}, {L_UX + UXC + 4092}, v6 ; vN
v_lshlrev_b32 v{H+2}, 11, v5
v_add_u32 v{H+2}, s95, v{H+2}          ; vO
v_mov_b32 v{H+3}, {L_FLG}
s_cmp_eq_u32 s43, 0
s_cselect_b32 s94, 7, 8
v_min_u32 v{t3}, s94, v{LANE}
v_lshlrev_b32 v{t3}, 2, v{t3}
s_lshl_b32 s94, s2, 9
s_lshl_b32 s95, s43, 7
s_add_u32 s94, s94, s95
s_add_u32 s94, s94, {WS_IN}
v_add_u32 v{t3}, s94, v{t3}
s_lshl_b32 s94, s6, 12
s_add_u32 s64, s{P['ws']}, s94
s_addc_u32 s65, s{P['ws']+1}, 0
s_lshl_b32 s94, s43, 10
s_sub_u32 s94, 3072, s94
v_add_u32 v{t1}, s94, v{t0}
v_add_u32 v{t2}, {L_UX}, v{t1}
v_add_u32 v{t4}, 0x1000, v{t1}
v_add_u32 v{t5}, {WS_KVR}, v{t1}
v_add_u32 v{t6}, {WS_KVR + 0x1000}, v{t1}
s_movk_i32 s94, 0xff0
v_cmp_eq_u32 s[92:93], s94, v{t1}
s_mov_b32 s94, 0''')
    A.fence()
    A.label('Lpoll')
    A(f'''global_load_dword v{t7}, v{t3}, {ptr('ws')} sc1
s_add_u32 s94, s94, 1
s_waitcnt vmcnt(0)
v_cmp_ne_u32 vcc, v{TAG}, v{t7}
s_cbranch_vccz Lpolled
s_cmp_lt_u32 s94, 0x200000
s_cbranch_scc1 Lpoll''')
    A.fence()
    A.label('Lpolled')
    A.stamp('polled', True)
    V.q = []
    src = [t1, t5, t4, t6]
    for cv in range(4):
        V.issue(f'global_load_dwordx4 {vr(SD+8*cv,4)}, v{src[cv]}, s[64:65] sc1', f'u{cv}')
        V.issue(f'global_load_dword v{SD+4+8*cv}, v{src[cv]}, s[64:65] offset:16 sc1', f'u{cv}')
    def gloads():
        for Pp in range(4):
            V.issue(f"global_load_dwordx4 {vr(GQ+4*Pp,4)}, v{H+8+Pp}, {ptr('ws')} sc1", 'gq')
    gloads()
    for cv in range(4):
        D = SD + 8 * cv; E = 64 + 4 * cv
        V.wait(f'u{cv}')
        A(f'v_cndmask_b32 v{D+4}, v{D+4}, 0, s[92:93]')
        A(f'ds_write_b128 v{t2}, {vr(D,4)} offset:{UXS*cv + UXC}')
        for e in range(4): A(f'v_alignbit_b32 v{E+e}, v{D+e+1}, v{D+e}, 16')
        A(f'ds_write_b128 v{t2}, {vr(E,4)} offset:{UXS*cv}')
    A(f'''s_lshl_b32 s94, s43, 2
s_add_u32 s94, s94, {L_FLG + 64}
v_mov_b32 v{t1}, s94
v_mov_b32 v{t3}, 1
ds_write_b32 v{t1}, v{t3}''')
    A.stamp('staged')
    A(f'''s_waitcnt lgkmcnt(0)
s_lshl_b32 s98, s96, 16
s_and_b32 s99, s96, 0xffff0000
s_lshl_b32 s100, s97, 16
s_and_b32 s101, s97, 0xffff0000
v_mov_b32 v{H+4}, s98
v_mov_b32 v{H+5}, s99
v_mov_b32 v{H+6}, s100
v_mov_b32 v{H+7}, s101
s_mov_b32 s94, 0''')
    A.fence()
    A.label('Lgchk')
    A('s_waitcnt vmcnt(0)')
    A(f'v_xor_b32 v20, v{TAG}, v{GQ+1}')
    for i in range(1, 8):
        A(f'v_xor_b32 v21, v{TAG}, v{GQ+2*i+1}\nv_or_b32 v20, v20, v21')
    A(f'''v_cmp_ne_u32 vcc, 0, v20
s_cbranch_vccz Lgok
s_add_u32 s94, s94, 1
s_cmp_ge_u32 s94, 0x200000
s_cbranch_scc1 Lgok''')
    gloads()
    A('s_branch Lgchk')
    A.win = []
    A.label('Lgok')
    A.stamp('gok')
    for Pp in range(4):
        A(f'v_lshl_or_b32 v{20+Pp}, v{GQ+4*Pp+2}, 16, v{GQ+4*Pp}')
        A(f'ds_write_b32 v{H}, v{20+Pp} offset:{16384 + 1024*Pp}')
    A('s_mov_b32 s60, 0')
    A.fence()
    A.label('Lepi')
    A(f'''ds_read_b128 v[20:23], v{H+3}
s_waitcnt lgkmcnt(0)
v_and_b32 v20, v20, v21
v_and_b32 v22, v22, v23
v_and_b32 v20, v20, v22
v_cmp_ne_u32 vcc, 0, v20
s_cbranch_vccnz Lgo
s_sleep {o['sleep']}
s_branch Lepi''')
    A.win = []
    A.label('Lgo')
    epilogue(A, H, H + 1, H + 2, H + 4, H + 6, 24)
    A(f'''v_add_u32 v{H}, 0x400, v{H}
v_subrev_u32 v{H+1}, 0x400, v{H+1}
v_add_u32 v{H+3}, 16, v{H+3}
s_add_u32 s60, s60, 0x80000
s_cmp_lt_u32 s60, 0x200000''')
    A.fence()
    A('s_cbranch_scc1 Lepi')
    A(f'''s_cmp_lg_u32 s2, 0
s_cbranch_scc1 Lfin
s_barrier
s_cmp_lg_u32 s3, 4
s_cbranch_scc1 Lfin
v_mov_b32 v20, {WS_EP}
s_mov_b64 exec, 1
global_store_dword v20, v{TAG}, {ptr('ws')} sc1''')
    A.label('Lfin')
    A.stamp_flush(0, 3)
    A.label('Lend')
    A('s_endpgm')
    HDR = open('gated_mix__ssm_conv_s4d__ssm_conv_h3__prompt.s.ref').read().split('; Override launch')[0]
    s = HDR + f'; @launch grid=(256,1,1) block=(512,1,1) lds={L_END}\n.amdgcn_target "amdgcn-amd-amdhsa--gfx950"\n.text\n' + A.text()
    s += '.section .rodata,"a"\n' + kdesc(KN, 256)
    open(path, 'w').write(s)
    return L_END, A.nops

def epilogue(A, vP, vN, vO, DP, SP, R):
    Y = R; U = R + 4; G = R + 8
    for cv in range(4): A(f'ds_read_b32 v{Y+cv}, v{vP} offset:{4096*cv}')
    for cv in range(4): A(f'ds_read_b32 v{U+cv}, v{vN} offset:{UXS*cv}')
    A(f'ds_read_b32 v{G}, v{vP} offset:16384')
    UP = R + 10; KV = R + 14; YA = R + 18; YB = R + 22; GG = R + 26; O = R + 34
    A('s_waitcnt lgkmcnt(0)')
    for ch in range(2):
        hi2f(A, UP + ch, U + 2 * ch); lo2f(A, UP + 2 + ch, U + 2 * ch)
        hi2f(A, KV + ch, U + 2 * ch + 1); lo2f(A, KV + 2 + ch, U + 2 * ch + 1)
        lo2f(A, YA + ch, Y + 2 * ch); hi2f(A, YA + 2 + ch, Y + 2 * ch)
        lo2f(A, YB + ch, Y + 2 * ch + 1); hi2f(A, YB + 2 + ch, Y + 2 * ch + 1)
    lo2f(A, GG, G); hi2f(A, GG + 1, G)
    for i in range(4): A(f'v_fmac_f32 v{YA+i}, v{UP+i}, v{DP+(i&1)}')
    for i in range(4): A(f'v_fmac_f32 v{YB+i}, v{KV+i}, v{SP+(i&1)}')
    for i in range(4): A(f'v_mul_f32 v{YB+i}, v{YB+i}, v{UP+i}')
    for i in range(4): A(f'v_sub_f32 v{YA+i}, v{YA+i}, v{YB+i}')
    for i in range(4): A(f'v_fma_f32 v{YA+i}, v{YA+i}, v{GG+(i>>1)}, v{YB+i}')
    for a in range(2): A(f'v_cvt_pk_bf16_f32 v{O+a}, v{YA+2*a}, v{YA+2*a+1}')
    A(f'buffer_store_dword v{O}, v{vO}, s[56:59], s60 offen')
    A(f'buffer_store_dword v{O+1}, v{vO}, s[56:59], s60 offen offset:1024')

def mfma_phase(A, vK, vU, vY, vF, vOne, vUF, o, NC=46, NKR=4, NUR=6, LA=10, base=8):
    ml = k2.mfma_list()
    ACC = base; TMP = ACC + 16; UR = TMP + 4; KR = UR + 4 * NUR; KC = KR + 4 * NKR
    top = KC + 4 * NC
    assert top <= 252, top
    FR = 252
    class R: pass
    loads = []; cur = {}
    uring = [None] * NUR; kring = [None] * NKR; ui = 0; ki = 0
    use = []
    def mk(kind, idx, reg, mi, prev, key):
        r = R(); r.kind = kind; r.idx = idx; r.reg = reg; r.first = mi; r.last = mi; r.prev = prev; r.key = key; r.n = len(loads)
        if prev is not None: cur.pop(prev.key, None)
        cur[key] = r; loads.append(r); return r
    for mi, (Pp, t, e, s) in enumerate(ml):
        ku = ('U', e, Pp)
        if ku not in cur:
            uring[ui % NUR] = mk('U', e, UR + 4 * (ui % NUR), mi, uring[ui % NUR], ku); ui += 1
        cur[ku].last = mi
        if s < NC:
            kk = ('K', s)
            if kk not in cur:
                mk('K', s, KC + 4 * s, mi, None, kk); loads.pop(); cur[kk].n = -1
        else:
            kk = ('K', s, Pp)
            if kk not in cur:
                kring[ki % NKR] = mk('K', s, KR + 4 * (ki % NKR), mi, kring[ki % NKR], kk); ki += 1
        cur[kk].last = mi
        use.append((cur[ku], cur[kk]))
    for sg in range(NC):
        A(f'ds_read_b64 {vr(KC+4*sg,2)}, v{vK} offset:{64*sg}')
        A(f'ds_read_b64 {vr(KC+4*sg+2,2)}, v{vK} offset:{64*sg+8}')
        if sg % 3 == 2 and sg > 3: A('s_waitcnt lgkmcnt(8)')
    A.stamp('kpre')
    fifo = []
    def wait_for(recs):
        n = None
        for r in recs:
            for pos, x in enumerate(fifo):
                if x is r:
                    k = len(fifo) - 1 - pos
                    n = k if n is None else min(n, k)
        if n is not None:
            A(f's_waitcnt lgkmcnt({n})')
            del fifo[:len(fifo) - n]
    ngate = [0]
    def gate(g):
        del fifo[:]
        A.fence()
        A.label(f'Lug{g}')
        A(f'''ds_read_b32 v{FR}, v{vUF} offset:{4*g}
s_waitcnt lgkmcnt(0)
v_cmp_ne_u32 vcc, 0, v{FR}
s_cbranch_vccz Lug{g}''')
        A.stamp(f'ug{g}', True)
    have = -1
    li = 0; started = set(); pass_end = {}
    for mi, (Pp, t, e, s) in enumerate(ml): pass_end[Pp] = mi
    def ywrite(Pp):
        for t in (2 * Pp, 2 * Pp + 1):
            a = ACC + 4 * ((Pp & 1) * 2 + (t & 1)); tm = TMP + 2 * (t & 1)
            A(f'v_cvt_pk_bf16_f32 v{tm}, v{a}, v{a+1}\nv_cvt_pk_bf16_f32 v{tm+1}, v{a+2}, v{a+3}')
            A(f'ds_write_b32 v{vY}, v{tm} offset:{512*t}'); fifo.append(object())
            A(f'ds_write_b32 v{vY}, v{tm+1} offset:{512*t+64}'); fifo.append(object())
        A(f'ds_write_b32 v{vF}, v{vOne} offset:{16*Pp}'); fifo.append(object())
    for mi, (Pp, t, e, s) in enumerate(ml):
        if Pp > 0 and mi == pass_end[Pp - 1] + 4:
            lim = 8 if A.stamps else 10
            while len(fifo) > lim: wait_for([fifo[len(fifo) - lim - 1]])
            ywrite(Pp - 1)
            A.stamp(f'pass{Pp-1}')
        issued = 0
        while li < len(loads):
            r = loads[li]
            if r.prev is not None and r.prev.last >= mi: break
            must = r.first <= mi
            if not must and (r.first > mi + LA or issued >= 2 or len(fifo) >= 12): break
            if r.kind == 'U':
                g = max(0, (r.idx + 7) // 16)
                while have < g:
                    have += 1; gate(have)
            while len(fifo) >= 12: wait_for([fifo[0]])
            if r.kind == 'U':
                A(f"ds_read_b128 {vr(r.reg,4)}, v{vU} offset:{64*(56-r.idx)}"); fifo.append(r)
            else:
                A(f"ds_read_b64 {vr(r.reg,2)}, v{vK} offset:{64*r.idx}"); fifo.append(object())
                A(f"ds_read_b64 {vr(r.reg+2,2)}, v{vK} offset:{64*r.idx+8}"); fifo.append(r)
            li += 1; issued += 1
        ru, rk = use[mi]
        assert ru.n < li and rk.n < li
        wait_for([ru, rk])
        a = ACC + 4 * ((Pp & 1) * 2 + (t & 1))
        c = vr(a, 4) if t in started else '0'
        started.add(t)
        A(f"v_mfma_f32_16x16x32_bf16 {vr(a,4)}, {vr(ru.reg,4)}, {vr(rk.reg,4)}, {c}")
    ywrite(3)

SETS = dict(a=['issued', 'par', 'bar0', 'k0', 'tile', 'bar1'], b=['tcomp', 'tst', 'gate', 'ssmk', 'drain', 'k1'],
            c=['prebar2', 'bar2', 'bar2b', 'bar3', 'kpre', 'polled'], d=['ug0', 'ug1', 'ug2', 'ug3', 'staged', 'gok'],
            e=['ug0', 'pass0', 'pass1', 'pass2', 'polled', 'staged'])
if __name__ == '__main__':
    out = sys.argv[1]
    print(gen(out))
    if len(sys.argv) > 2:
        for k, v in SETS.items(): gen(out.replace('.s', f'_{k}.s'), v)
```

```python
import sys, struct
from asmlib import *
from k1 import f2u, L2E, L2E_HI, L2E_LO, INV2PI, load_ptrs, P, ptr, rnd, lo2f, hi2f, bfexp
import k2
from fused4 import VM, epilogue, mfma_phase
KN = 'gated_mix__ssm_conv_s4d__ssm_conv_h3__prompt_kernel'

WS_UR = 0; WS_KVR = 2 << 20; WS_IN = 4 << 20; WS_GT = WS_IN + 1024; WS_EP = WS_IN + (1 << 20)
KLC = 4224; KLS = 2 * KLC
UXC = 4576; UXS = 2 * UXC
L_KL = 0
L_UX = 4 * KLS
L_Y = L_UX + 4 * UXS
L_G = L_Y + 16384
L_RED = L_G + 4096
L_KC = L_RED + 8192
L_TK = L_KC + 6144
L_TV = L_TK + 9 * 1040
L_TU = L_TV + 8 * 1040
L_PAR = L_TU + 8 * 1040
L_PARW = L_PAR + 4096
L_FLG = L_PARW + 2048
L_END = L_FLG + 256
F_U = 64; F_T = 80; F_K = 96; F_S = 144
assert all(x % 16 == 0 for x in (L_UX, L_Y, L_RED, L_KC, L_TK, L_TV, L_TU, L_PAR, L_PARW, L_FLG))

def gen(path, stamps=None, opts=None):
    o = dict(prefetch=True, prio=2, sleep=1, tprio=3)
    o.update(opts or {})
    A = Asm(); A.stamps = bool(stamps); A.stamp_sel = stamps
    if o.get('cyc'): A.stamp_op = 's_memtime'
    V = VM(A)
    A.raw(f'.globl {KN}\n.p2align 8\n.type {KN},@function\n{KN}:')
    A('s_cmp_ge_u32 s2, 256\ns_cbranch_scc1 Lend')
    A.stamp_init()
    load_ptrs(A)
    LANE, IDX, KG = 1, 2, 3
    t0, t1, t2, t3, t4, t5, t6, t7 = 40, 41, 42, 43, 44, 45, 46, 47
    if o['prefetch']:
        A(f'''s_cmp_ge_u32 s2, {o.get('pfwg', 256)}
s_cbranch_scc1 Lnopf
s_getpc_b64 s[68:69]
v_lshlrev_b32 v49, 4, v0
v_add_u32 v50, 0x2000, v49
v_min_u32 v50, Lend-{KN}-16, v50
s_and_b32 s68, s68, 0xffffff00
global_load_dwordx4 v[56:59], v49, s[68:69]
global_load_dwordx4 v[60:63], v50, s[68:69]
Lnopf:''')
    A(f'''v_lshrrev_b32 v{t0}, 6, v0
v_readfirstlane_b32 s3, v{t0}          ; wave
v_and_b32 v{LANE}, 63, v0
v_and_b32 v{IDX}, 15, v0
v_bfe_u32 v{KG}, v0, 4, 2
v_lshlrev_b32 v{t0}, 4, v{LANE}        ; lane*16
s_and_b32 s4, s2, 7                    ; s
s_lshr_b32 s5, s2, 3                   ; jq
s_lshl_b32 s6, s4, 6
s_lshl_b32 s7, s5, 1
s_add_u32 s6, s6, s7                   ; d0
s_and_b32 s43, s3, 3                   ; w&3
s_cmp_ge_u32 s3, 4
s_cbranch_scc1 Ltw''')
    PL = 51
    A(f'''s_lshl_b32 s70, s6, 8
v_lshlrev_b32 v{t1}, 1, v0
v_add_u32 v{t1}, s70, v{t1}
s_lshr_b32 s42, s3, 1                  ; ch
s_add_u32 s7, s42, s6                  ; d
s_lshl_b32 s71, s7, 1
v_mov_b32 v{t2}, s71
s_mov_b32 s48, {f2u(L2E_HI):#x}
s_mov_b32 s49, {f2u(L2E_LO):#x}
s_waitcnt lgkmcnt(0)''')
    V.issue(f"global_load_ushort v{PL}, v{t2}, {ptr('logdt')}", 'par')
    V.issue(f"global_load_ushort v{PL+1}, v{t1}, {ptr('logA')}", 'par')
    V.issue(f"global_load_ushort v{PL+2}, v{t1}, {ptr('Aim')}", 'par')
    V.issue(f"global_load_ushort v{PL+3}, v{t1}, {ptr('Cr')}", 'par')
    V.issue(f"global_load_ushort v{PL+4}, v{t1}, {ptr('Ci')}", 'par')
    A('s_branch Lkw')
    A.win = []
    A.label('Ltw')

    nsync = [0]
    def sync(off, n, vaddr_w, vaddr_r, vone, tmp):
        k = nsync[0]; nsync[0] += 1
        if vaddr_w is not None: A(f'ds_write_b32 v{vaddr_w}, v{vone} offset:{off}')
        A.fence()
        A.label(f'Lsy{k}')
        if n == 2:
            A(f'ds_read_b64 {vr(tmp,2)}, v{vaddr_r} offset:{off}\ns_waitcnt lgkmcnt(0)\nv_and_b32 v{tmp}, v{tmp}, v{tmp+1}')
        else:
            A(f'ds_read_b128 {vr(tmp,4)}, v{vaddr_r} offset:{off}\ns_waitcnt lgkmcnt(0)\nv_and_b32 v{tmp}, v{tmp}, v{tmp+1}\nv_and_b32 v{tmp+2}, v{tmp+2}, v{tmp+3}\nv_and_b32 v{tmp}, v{tmp}, v{tmp+2}')
        A(f'v_cmp_ne_u32 vcc, 0, v{tmp}\ns_cbranch_vccz Lsy{k}')
    V.q = []
    TAG = 4
    SK = 8; GU = 16; GW = 24
    VST = 36; VTA = 37; VTB = 38; VFL = 39
    VSW = 28; VSR = 29; ONE = 30
    if o['tprio']: A(f"s_setprio {o['tprio']}")
    A(f'''v_lshrrev_b32 v{t4}, 3, v{LANE}
v_lshlrev_b32 v{t4}, 10, v{t4}
v_and_b32 v{t5}, 7, v0
v_lshl_add_u32 v{t4}, v{t5}, 4, v{t4}
s_lshl_b32 s70, s5, 16
s_lshl_b32 s71, s4, 7
s_add_u32 s70, s70, s71
s_sub_u32 s71, s70, 0x2000
v_add_u32 v{t5}, s71, v{t4}
s_lshl_b32 s71, s43, 14
s_add_u32 s70, s70, s71
v_add_u32 v{t4}, s70, v{t4}
v_add_u32 v{t1}, 0x2000, v{t4}
s_mul_i32 s70, s43, 2080
s_lshl_b32 s71, s43, 4
s_lshl_b64 s[92:93], 0xffff, s71
v_mov_b32 v{t3}, {WS_EP}
s_lshl_b32 s94, s4, 9
s_lshl_b32 s95, s43, 7
s_add_u32 s94, s94, s95
v_lshlrev_b32 v{t6}, 4, v{KG}
v_add_u32 v{t6}, s94, v{t6}
s_lshl_b32 s94, s2, 13
s_lshl_b32 s95, s43, 11
s_add_u32 s94, s94, s95
v_add_u32 v{t7}, s94, v{t0}
v_mov_b32 v108, 0
v_mov_b32 v109, 0
v_mov_b32 v110, 0
v_mov_b32 v111, 0
v_add_u32 v{t2}, {L_FLG}, v{t0}
s_mov_b64 exec, 0xffff
ds_write_b128 v{t2}, v[108:111]
s_mov_b64 exec, -1
s_waitcnt lgkmcnt(0)
s_mov_b32 s44, s{P['k']}
s_mov_b32 s45, s{P['k']+1}
s_mov_b32 s46, 0x200000
s_mov_b32 s47, 0x00020000''')
    V.issue(f"global_load_dwordx4 {vr(SK,4)}, v{t6}, {ptr('shk')}", 'sk')
    V.issue(f"global_load_dwordx4 {vr(SK+4,4)}, v{t6}, {ptr('shk')} offset:64", 'sk')
    V.issue(f"global_load_dword v{TAG}, v{t3}, {ptr('ws')}", 'sk')
    for g, va in ((0, t4), (1, t1)):
        A(f's_add_u32 m0, s70, {L_TK + 1040 + 1040*g}')
        V.issue(f"global_load_lds_dwordx4 v{va}, {ptr('k')}", 'tile')
        A(f's_add_u32 m0, s70, {L_TV + 1040*g}')
        V.issue(f"global_load_lds_dwordx4 v{va}, {ptr('v')}", 'tile')
        A(f's_add_u32 m0, s70, {L_TU + 1040*g}')
        V.issue(f"global_load_lds_dwordx4 v{va}, {ptr('u')}", 'tile')
    A(f's_mov_b32 m0, {L_TK}\ns_mov_b64 exec, s[92:93]')
    V.issue(f'buffer_load_dwordx4 v{t5}, s[44:47], 0 offen lds', 'tile')
    A('s_mov_b64 exec, -1')
    A('s_barrier')
    V.issue(f"global_load_dwordx4 {vr(GU,4)}, v{t7}, {ptr('u')}", 'gate')
    V.issue(f"global_load_dwordx4 {vr(GU+4,4)}, v{t7}, {ptr('u')} offset:1024", 'gate')
    V.issue(f"global_load_dwordx4 {vr(GW,4)}, v{t0}, {ptr('gw')}", 'gate')
    A(f'''s_lshl_b32 s94, s2, 12
s_lshl_b32 s95, s43, 7
s_add_u32 s94, s94, s95
s_add_u32 s94, s94, {WS_IN}
v_and_b32 v7, 3, v0
v_lshlrev_b32 v7, 10, v7
v_add_u32 v7, s94, v7''')
    V.issue(f"global_load_dword v7, v7, {ptr('ws')} sc1", 'gate')
    A(f'''s_lshr_b32 s94, s43, 1
s_add_u32 s95, s94, s6
s_lshl_b32 s95, s95, 12
s_add_u32 s60, s{P['ssmk']}, s95
s_addc_u32 s61, s{P['ssmk']+1}, 0
s_mov_b32 s62, 4096
s_mov_b32 s63, 0x00020000
s_mul_i32 s94, s94, {2*KLS}
s_and_b32 s95, s43, 1
s_mul_i32 s97, s95, {KLC}
s_add_u32 s94, s94, s97
s_add_u32 s94, s94, {L_KL + KLS}
s_lshl_b32 s95, s95, 2
v_lshlrev_b32 v{t5}, 2, v{LANE}
s_sub_u32 s96, s95, 64
v_add_u32 v{t5}, s96, v{t5}
s_add_u32 m0, s94, 64''')
    for i in range(4):
        V.issue(f'buffer_load_dwordx4 v{t0}, s[60:63], s95 offen offset:{1024*i} lds', 'ssmk')
    A('s_mov_b32 m0, s94\ns_mov_b64 exec, 0xffff')
    V.issue(f'buffer_load_dword v{t5}, s[60:63], 0 offen lds', 'ssmk')
    A('s_mov_b64 exec, -1')
    A.stamp('issued')
    c1, c2 = 5, 6
    H = 120; GQ = 96; SD = 64
    A(f'''s_mov_b32 s52, 0x05040100
s_mov_b32 s53, 0x07060302
v_and_b32 v31, 7, v{IDX}
v_sub_u32 v{c1}, 7, v31                ; grp
v_mul_u32_u24 v{VTA}, 1040, v{c1}
v_lshrrev_b32 v{c2}, 3, v{IDX}         ; par
v_lshl_add_u32 v{VTA}, v{c2}, 9, v{VTA}
v_lshl_add_u32 v{VTA}, v{KG}, 2, v{VTA}
s_lshl_b32 s94, s43, 5
s_add_u32 s94, s94, {L_TK}
v_add_u32 v{VTA}, s94, v{VTA}
v_lshl_add_u32 v{VTB}, v{c2}, 4, v{VTA}
v_lshl_add_u32 v{VST}, v{KG}, 1, v{c2}
v_lshlrev_b32 v{VST}, 12, v{VST}
v_lshlrev_b32 v{c1}, 4, v{c1}
v_sub_u32 v{VST}, v{VST}, v{c1}
s_lshl_b32 s94, s4, 18
s_lshl_b32 s95, s43, 16
s_add_u32 s94, s94, s95
s_lshl_b32 s95, s5, 7
s_sub_u32 s94, s94, s95
s_add_u32 s94, s94, {3968 + 112}
v_add_u32 v{VST}, s94, v{VST}
v_cmp_eq_u32 s[54:55], 1, v{c2}
s_lshl_b32 s94, s43, 3
v_and_b32 v{c1}, 7, v0
v_add_u32 v{VFL}, s94, v{c1}
v_lshlrev_b32 v{VFL}, 15, v{VFL}
s_lshl_b32 s94, s4, 12
s_lshr_b32 s95, s5, 3
s_lshl_b32 s95, s95, 7
s_add_u32 s94, s94, s95
s_and_b32 s95, s5, 7
s_lshl_b32 s96, s95, 2
s_add_u32 s94, s94, s96
s_add_u32 s94, s94, {WS_IN}
v_bfe_u32 v{c1}, v0, 3, 1
v_mul_u32_u24 v{c1}, 132, v{c1}
v_add3_u32 v{VFL}, v{VFL}, v{c1}, s94
s_cmp_eq_u32 s95, 7
s_movk_i32 s70, 0xff
s_cselect_b32 s70, 0xffff, s70
s_cmp_eq_u32 s5, 31
s_cselect_b32 s70, 0xff, s70
s_lshl_b32 s94, s43, 2
s_add_u32 s94, s94, {L_FLG}
v_mov_b32 v{VSW}, s94
v_mov_b32 v{VSR}, {L_FLG}
v_mov_b32 v{ONE}, 1
s_mul_i32 s94, s43, {UXS}
s_add_u32 s94, s94, {L_UX + 4096}
v_add_u32 v{c1}, s94, v{t0}
s_mov_b32 exec_lo, 0x0fffffff
s_mov_b32 exec_hi, 0
ds_write_b128 v{c1}, v[108:111]
ds_write_b128 v{c1}, v[108:111] offset:{UXC}
s_mov_b64 exec, -1
v_subrev_u32 v5, 0x100, v0             ; ht
v_lshrrev_b32 v{H+8}, 2, v5
v_lshlrev_b32 v{H+8}, 12, v{H+8}
v_and_b32 v6, 3, v5
v_lshl_add_u32 v{H+8}, v6, 4, v{H+8}
v_add_u32 v{H+8}, {WS_GT}, v{H+8}
v_add_u32 v{H+9}, 0x40000, v{H+8}
v_add_u32 v{H+10}, 0x80000, v{H+8}
v_add_u32 v{H+11}, 0xc0000, v{H+8}
s_lshl_b32 s95, s6, 1
s_load_dword s98, {ptr('Dskip')}, s95
s_load_dword s99, {ptr('ssmD')}, s95
s_mov_b32 s56, s{P['out']}
s_mov_b32 s57, s{P['out']+1}
s_mov_b32 s58, 0x200000
s_mov_b32 s59, 0x00020000
v_lshlrev_b32 v6, 2, v5
v_add_u32 v{H}, {L_Y}, v6              ; vP
v_sub_u32 v{H+1}, {L_UX + UXC + 4092}, v6 ; vN
v_lshlrev_b32 v{H+2}, 11, v5
v_add_u32 v{H+2}, s95, v{H+2}          ; vO
v_mov_b32 v{H+3}, {L_FLG}
s_cmp_eq_u32 s43, 0
s_cselect_b32 s94, 7, 8
v_min_u32 v{t3}, s94, v{LANE}
v_lshlrev_b32 v{t3}, 2, v{t3}
s_lshl_b32 s94, s2, 12
s_lshl_b32 s95, s43, 7
s_add_u32 s94, s94, s95
s_add_u32 s94, s94, {WS_IN}
v_add_u32 v{t3}, s94, v{t3}
s_lshl_b32 s94, s6, 12
s_add_u32 s64, s{P['ws']}, s94
s_addc_u32 s65, s{P['ws']+1}, 0
s_lshl_b32 s94, s43, 10
s_sub_u32 s94, 3072, s94
v_add_u32 v{t1}, s94, v{t0}
v_add_u32 v{t2}, {L_UX}, v{t1}
v_add_u32 v{t4}, 0x1000, v{t1}
v_add_u32 v{t5}, {WS_KVR}, v{t1}
v_add_u32 v{t6}, {WS_KVR + 0x1000}, v{t1}
s_movk_i32 s94, 0xff0
v_cmp_eq_u32 s[92:93], s94, v{t1}
s_waitcnt lgkmcnt(0)
s_lshl_b32 s100, s98, 16
s_and_b32 s101, s98, 0xffff0000
v_mov_b32 v{H+4}, s100
v_mov_b32 v{H+5}, s101
s_lshl_b32 s100, s99, 16
s_and_b32 s101, s99, 0xffff0000
v_mov_b32 v{H+6}, s100
v_mov_b32 v{H+7}, s101''')
    WS2 = [188, 196]
    V.wait('sk')
    for i in range(2):
        for t in range(4):
            for ee in range(2):
                (hi2f if t & 1 else lo2f)(A, WS2[i] + 2 * t + ee, SK + 4 * i + 2 * ee + (t >> 1))
    A(f'v_add_u32 v{TAG}, 1, v{TAG}')
    V.wait('tile')
    A.stamp('tile')
    sync(F_T, 4, VSW, VSR, ONE, 32)
    A.stamp('bar1', True)
    dpp = 'row_ror:8 row_mask:0xf bank_mask:0xf'
    KD = [140, 156]
    def tread(i):
        k = KD[i]
        for r in range(3): A(f'ds_read_b32 v{k+r}, v{VTB} offset:{512 + 128*(r+1) + 16*i}')
        for r in range(4): A(f'ds_read_b32 v{k+3+r}, v{VTA} offset:{1040 + 128*r + 16*i}')
        for r in range(4): A(f'ds_read_b32 v{k+7+r}, v{VTA} offset:{L_TV - L_TK + 128*r + 16*i}')
        for r in range(4): A(f'ds_read_b32 v{k+11+r}, v{VTA} offset:{L_TU - L_TK + 128*r + 16*i}')
    W = 64; KP = 72; VP = 86; AC = 94; O = 102; UNS = [172, 180]
    tread(0)
    for i in range(2):
        k = KD[i]; VD = k + 7; UD = k + 11; UN = UNS[i]
        W = WS2[i]
        A('s_waitcnt lgkmcnt(0)')
        if i == 0: tread(1)
        for r in range(7): lo2f(A, KP + 2 * r, k + r); hi2f(A, KP + 2 * r + 1, k + r)
        for a in range(4): A(f'v_pk_mul_f32 {vr(AC+2*a,2)}, {vr(KP+2*a,2)}, {vr(W+6,2)}')
        for r in range(4): lo2f(A, VP + 2 * r, VD + r); hi2f(A, VP + 2 * r + 1, VD + r)
        for tp in range(1, 4):
            for a in range(4): A(f'v_pk_fma_f32 {vr(AC+2*a,2)}, {vr(KP+2*(a+tp),2)}, {vr(W+2*(3-tp),2)}, {vr(AC+2*a,2)}')
        for ch in range(2):
            A(f'v_perm_b32 v{O+4+2*ch}, v{UD+2}, v{UD+3}, s{52+ch}')
            A(f'v_perm_b32 v{O+4+2*ch+1}, v{UD}, v{UD+1}, s{52+ch}')
        for a in range(4): A(f'v_pk_mul_f32 {vr(AC+2*a,2)}, {vr(AC+2*a,2)}, {vr(VP+2*a,2)}')
        A('s_mov_b64 vcc, s[54:55]')
        for ch in range(2):
            A(f'v_cvt_pk_bf16_f32 v{O+2*ch}, v{AC+6+ch}, v{AC+4+ch}')
            A(f'v_cvt_pk_bf16_f32 v{O+2*ch+1}, v{AC+2+ch}, v{AC+ch}')
        for tn in (1, 0):
            for e in range(2):
                A(f'v_cndmask_b32_dpp v{UN+4*tn+e}, v{O+4*tn+e}, v{O+4*tn+2+e}, vcc {dpp}')
        A('s_not_b64 vcc, vcc')
        for tn in (1, 0):
            for e in range(2):
                A(f'v_cndmask_b32_dpp v{UN+4*tn+2+e}, v{O+4*tn+2+e}, v{O+4*tn+e}, vcc {dpp}')
        A(f'v_add_u32 v{t7}, {WS_KVR}, v{VST}')
        V.issue(f"global_store_dwordx4 v{VST}, {vr(UN+4,4)}, {ptr('ws')} {o.get('sflag','sc1')}", 'st')
        V.issue(f"global_store_dwordx4 v{t7}, {vr(UN,4)}, {ptr('ws')} {o.get('sflag','sc1')}", 'st')
        if i == 0: A(f'v_add_u32 v{VST}, 0x8000, v{VST}')
    A.stamp('tst')
    X = 64
    V.wait('gate')
    for r in range(2):
        A(f'v_dot2_f32_bf16 v{X+2*r}, v{GU+4*r}, v{GW}, 0\nv_dot2_f32_bf16 v{X+2*r+1}, v{GU+4*r+1}, v{GW+1}, 0')
    for r in range(2):
        A(f'v_dot2_f32_bf16 v{X+2*r}, v{GU+4*r+2}, v{GW+2}, v{X+2*r}\nv_dot2_f32_bf16 v{X+2*r+1}, v{GU+4*r+3}, v{GW+3}, v{X+2*r+1}')
    A(f'''s_lshl_b32 s94, s2, 12
s_lshl_b32 s95, s43, 4
s_add_u32 s94, s94, s95
s_add_u32 s94, s94, {WS_GT}
v_add_f32 v{X}, v{X}, v{X+1}
v_add_f32 v{X+2}, v{X+2}, v{X+3}
v_mov_b32 v{t7}, s94''')
    for sh in ('row_shr:1 row_mask:0xf bank_mask:0xf bound_ctrl:0', 'row_shr:2 row_mask:0xf bank_mask:0xf bound_ctrl:0', 'row_shr:4 row_mask:0xf bank_mask:0xf bound_ctrl:0',
               'row_shr:8 row_mask:0xf bank_mask:0xf bound_ctrl:0', 'row_bcast:15 row_mask:0xa bank_mask:0xf', 'row_bcast:31 row_mask:0xc bank_mask:0xf'):
        for r in range(2): A(f'v_add_f32_dpp v{X+2*r}, v{X+2*r}, v{X+2*r} {sh}')
    for r in range(2): rnd(A, X + 2 * r, X + 2 * r)
    for r in range(2): A(f'v_mul_f32 v{X+2*r}, {f2u(-L2E):#x}, v{X+2*r}')
    for r in range(2): A(f'v_exp_f32 v{X+2*r}, v{X+2*r}')
    for r in range(2): A(f'v_add_f32 v{X+2*r}, 1.0, v{X+2*r}')
    for r in range(2): A(f'v_rcp_f32 v{X+2*r}, v{X+2*r}')
    for r in range(2): A(f'v_mov_b32 v{X+2*r+1}, v{TAG}')
    for r in range(2): A(f'v_cvt_pk_bf16_f32 v{X+2*r}, v{X+2*r}, 0')
    A('s_mov_b32 exec_lo, 0\ns_brev_b32 exec_hi, 1')
    V.issue(f"global_store_dwordx4 v{t7}, {vr(X,4)}, {ptr('ws')} sc1", 'g')
    A('s_mov_b32 exec_lo, s70\ns_mov_b32 exec_hi, 0')
    V.wait('st')
    V.issue(f"global_store_dword v{VFL}, v{TAG}, {ptr('ws')}", 'fl')
    A(f's_mov_b64 exec, -1\ns_mov_b32 s94, 0\ns_mov_b64 s[66:67], -1\nds_write_b32 v{VSW}, v{ONE} offset:{F_S}')
    A.stamp('drain', True)
    A.fence()
    A.label('Lpoll')
    A(f'''global_load_dword v{t7}, v{t3}, {ptr('ws')} sc1
s_add_u32 s94, s94, 1
s_waitcnt vmcnt(0)
v_cmp_ne_u32 vcc, v{TAG}, v{t7}
s_and_b64 s[66:67], s[66:67], vcc
s_cbranch_scc0 Lpolled
s_and_b32 s95, s94, 7
s_cbranch_scc1 Lpoll
s_mov_b32 exec_lo, s70
s_mov_b32 exec_hi, 0
global_store_dword v{VFL}, v{TAG}, {ptr('ws')} offset:2048 sc1
s_mov_b64 exec, -1
global_load_dword v{t7}, v{t3}, {ptr('ws')} offset:2048 sc1
s_waitcnt vmcnt(0)
v_cmp_ne_u32 vcc, v{TAG}, v{t7}
s_and_b64 s[66:67], s[66:67], vcc
s_cbranch_scc0 Lpolled
s_cmp_lt_u32 s94, 0x800000
s_cbranch_scc1 Lpoll''')
    A.fence()
    A.label('Lpolled')
    A.stamp('polled', True)
    V.q = []
    src = [t1, t5, t4, t6]
    for cv in range(4):
        V.issue(f'global_load_dwordx4 {vr(SD+8*cv,4)}, v{src[cv]}, s[64:65] {o.get("lflag","sc1")}', f'u{cv}')
        V.issue(f'global_load_dword v{SD+4+8*cv}, v{src[cv]}, s[64:65] offset:16 {o.get("lflag","sc1")}', f'u{cv}')
    def gloads():
        for Pp in range(4):
            V.issue(f"global_load_dwordx4 {vr(GQ+4*Pp,4)}, v{H+8+Pp}, {ptr('ws')} sc1", 'gq')
    for cv in range(4):
        D = SD + 8 * cv; E = 8 + 4 * cv
        V.wait(f'u{cv}')
        A(f'v_cndmask_b32 v{D+4}, v{D+4}, 0, s[92:93]')
        A(f'ds_write_b128 v{t2}, {vr(D,4)} offset:{UXS*cv + UXC}')
        for e in range(4): A(f'v_alignbit_b32 v{E+e}, v{D+e+1}, v{D+e}, 16')
        A(f'ds_write_b128 v{t2}, {vr(E,4)} offset:{UXS*cv}')
    A(f'ds_write_b32 v{VSW}, v{ONE} offset:{F_U}')
    A.stamp('staged')
    A(f'''s_mov_b32 exec_lo, s70
s_mov_b32 exec_hi, 0
global_store_dword v{VFL}, v{TAG}, {ptr('ws')} offset:2048 sc1
s_mov_b64 exec, -1
''')
    A('s_setprio 0\ns_mov_b32 s94, 0')
    A.fence()
    A.label('Lgld')
    gloads()
    A('s_waitcnt vmcnt(0)')
    A(f'v_xor_b32 v20, v{TAG}, v{GQ+1}')
    for i in range(1, 8):
        A(f'v_xor_b32 v21, v{TAG}, v{GQ+2*i+1}\nv_or_b32 v20, v20, v21')
    A(f'''v_cmp_ne_u32 vcc, 0, v20
s_cbranch_vccz Lgok
s_add_u32 s94, s94, 1
s_cmp_lt_u32 s94, 0x200000
s_cbranch_scc1 Lgld''')
    A.fence()
    A.label('Lgok')
    A.stamp('gok')
    for Pp in range(4):
        A(f'v_lshl_or_b32 v{20+Pp}, v{GQ+4*Pp+2}, 16, v{GQ+4*Pp}')
        A(f'ds_write_b32 v{H}, v{20+Pp} offset:{16384 + 1024*Pp}')
    A('s_mov_b32 s60, 0')
    A.fence()
    A.label('Lepi')
    A(f'''ds_read_b128 v[20:23], v{H+3}
s_waitcnt lgkmcnt(0)
v_and_b32 v20, v20, v21
v_and_b32 v22, v22, v23
v_and_b32 v20, v20, v22
v_cmp_ne_u32 vcc, 0, v20
s_cbranch_vccnz Lgo
s_sleep {o['sleep']}
s_branch Lepi''')
    A.win = []
    A.label('Lgo')
    epilogue(A, H, H + 1, H + 2, H + 4, H + 6, 24)
    A(f'''v_add_u32 v{H}, 0x400, v{H}
v_subrev_u32 v{H+1}, 0x400, v{H+1}
v_add_u32 v{H+3}, 16, v{H+3}
s_add_u32 s60, s60, 0x80000
s_cmp_lt_u32 s60, 0x200000''')
    A.fence()
    A('s_cbranch_scc1 Lepi')
    A(f'''s_cmp_lg_u32 s2, 0
s_cbranch_scc1 Lfin
s_barrier
s_cmp_lg_u32 s3, 4
s_cbranch_scc1 Lfin
v_mov_b32 v20, {WS_EP}
s_mov_b64 exec, 1
global_store_dword v20, v{TAG}, {ptr('ws')} sc1''')
    A.label('Lfin')
    A.stamp_flush(0, 3)
    A('s_endpgm')
    A.win = []
    A.label('Lkw')
    V.q = []
    POS = [5, 6]; VPAR = 7; VPW = 8; FSC = 9
    ACC = [148, 152, 156, 160]
    CA = 12
    GI = 20
    VSW = 26; VSR = 27; ONE = 28
    PL = 51
    V.q = ['par'] * 5
    A.stamp('issued')
    A('s_barrier')
    c1, c2, c3 = 10, 11, 29
    A(f'''s_and_b32 s44, s3, 1                   ; hw = w&1
v_lshrrev_b32 v{t1}, 1, v0
v_lshlrev_b32 v{t1}, 4, v{t1}
v_and_b32 v{t6}, 1, v0
v_lshl_add_u32 v{t1}, v{t6}, 2, v{t1}
v_add_u32 v{t1}, {L_PAR}, v{t1}
s_mov_b32 s50, {f2u(14.0):#x}
v_lshlrev_b32 v{c1}, 3, v{IDX}
v_cvt_f32_u32 v{POS[0]}, v{c1}         ; pL = 8 j
v_subrev_u32 v{c1}, 8, v{IDX}
v_lshlrev_b32 v{c2}, 9, v{c1}
v_lshlrev_b32 v{c1}, 2, v{c1}
v_add_u32 v{c1}, 0x200, v{c1}
v_cmp_gt_u32 vcc, 10, v{IDX}
v_cndmask_b32 v{c1}, v{c2}, v{c1}, vcc
v_cmp_gt_u32 vcc, 8, v{IDX}
v_cndmask_b32 v{c1}, v{c1}, v{IDX}, vcc
v_cvt_f32_u32 v{POS[1]}, v{c1}         ; pR
s_lshl_b32 s94, s3, 9
s_add_u32 s94, s94, {L_PAR}
v_lshlrev_b32 v{VPAR}, 5, v{KG}
v_add_u32 v{VPAR}, s94, v{VPAR}
v_mov_b32 v33, v{POS[0]}
v_mov_b32 v32, v{POS[0]}
v_mov_b32 v34, v{POS[1]}
v_mov_b32 v35, v{POS[1]}
v_mov_b32 v36, s50
v_mov_b32 v37, s50
s_mov_b32 s51, 0
s_lshl_b32 s94, s3, 2
s_add_u32 s94, s94, {L_FLG}
v_mov_b32 v{VSW}, s94
s_lshl_b32 s94, s42, 3
s_add_u32 s94, s94, {L_FLG}
v_mov_b32 v{VSR}, s94
v_mov_b32 v{ONE}, 1''')
    for a in ACC:
        for i in range(4): A(f'v_mov_b32 v{a+i}, 0')
    A(f'''s_mul_i32 s45, s42, 3072
s_add_u32 s45, s45, {L_KC}
s_cmp_eq_u32 s44, 0
s_cselect_b32 s94, 5, 4
s_cselect_b32 s95, 4, 3
s_cselect_b32 s96, 0, 1024
s_movk_i32 s97, 0x100
s_cselect_b32 s97, 512, s97
s_cselect_b32 s98, 8, 4                ; r2 - r0 (bytes)
v_lshlrev_b32 v{c1}, s94, v{IDX}
v_lshlrev_b32 v{c2}, s95, v{KG}
v_add3_u32 v{c1}, v{c1}, v{c2}, s96
v_lshlrev_b32 v{c3}, 2, v{LANE}
v_add_u32 v{c3}, {704*4}, v{c3}        ; dummy
s_cselect_b64 s[92:93], -1, 0
v_add_u32 v{t2}, 4, v{c1}
v_cndmask_b32 v{CA+1}, v{c3}, v{t2}, s[92:93]
v_add_u32 v{t2}, 12, v{c1}
v_cndmask_b32 v{CA+3}, v{c3}, v{t2}, s[92:93]
v_mov_b32 v{CA}, v{c1}
v_add_u32 v{CA+2}, s98, v{c1}
v_mov_b32 v{t2}, s97
v_cndmask_b32 v{t3}, 0, v{t2}, s[92:93]
v_add_u32 v{CA+4}, v{CA}, v{t2}
v_add_u32 v{CA+5}, v{CA+1}, v{t3}
v_add_u32 v{CA+6}, v{CA+2}, v{t2}
v_add_u32 v{CA+7}, v{CA+3}, v{t3}
s_lshl_b32 s94, s44, 8                 ; 32*2hw*4
s_lshl_b32 s95, s44, 7                 ; 16*2hw*4
v_lshlrev_b32 v{c1}, 3, v{IDX}
v_add_u32 v{c1}, s94, v{c1}
v_add_u32 v{c1}, {384*4}, v{c1}        ; kq2 r0
v_lshlrev_b32 v{c2}, 2, v{IDX}
v_add_u32 v{c2}, s95, v{c2}
v_add_u32 v{c2}, {512*4}, v{c2}        ; kq2 r2
v_cmp_eq_u32 vcc, 2, v{KG}''')
    for x in range(2):
        for r, (bs, off) in enumerate(((c1, 128 * x), (c1, 128 * x + 4), (c2, 64 * x), (c2, 64 * x + 256))):
            A(f'v_add_u32 v{t2}, {off}, v{bs}\nv_cndmask_b32 v{CA+4*x+r}, v{CA+4*x+r}, v{t2}, vcc')
    A(f'v_cmp_eq_u32 vcc, 3, v{KG}')
    for x in range(2):
        A(f'v_add_u32 v{t2}, {64*x + 512}, v{c2}\nv_cndmask_b32 v{CA+4*x}, v{CA+4*x}, v{t2}, vcc')
        for r in range(1, 4): A(f'v_cndmask_b32 v{CA+4*x+r}, v{CA+4*x+r}, v{c3}, vcc')
    for i in range(8): A(f'v_add_u32 v{CA+i}, s45, v{CA+i}')
    A(f'v_and_b32 v{c1}, 0x7f, v0\nv_lshlrev_b32 v{c1}, 1, v{c1}\ns_sub_u32 s94, s45, {133*128*4}')
    for n, m in enumerate((1, 2, 4)):
        for e in range(2):
            g = GI + 2 * n + e
            A(f'''v_add_u32 v{g}, {256*m+e}, v{c1}
v_cvt_f32_u32 v{g}, v{g}
v_cvt_pk_bf16_f32 v{g}, v{g}, 0
v_lshl_add_u32 v{g}, v{g}, 2, s94''')
    V.wait('par')
    A.stamp('par')
    for i in range(5): A(f'v_lshlrev_b32 v{PL+i}, 16, v{PL+i}')
    A(f'v_max_f32 v{t5}, |v{PL+3}|, |v{PL+4}|')
    bfexp(A, PL, PL, t2, t3, 48, 49)
    for sh in (1, 2): A(f'v_max_f32_dpp v{t5}, v{t5}, v{t5} row_shr:{sh} row_mask:0xf bank_mask:0xf')
    bfexp(A, PL + 1, PL + 1, t2, t3, 48, 49)
    for sh in (4, 8): A(f'v_max_f32_dpp v{t5}, v{t5}, v{t5} row_shr:{sh} row_mask:0xf bank_mask:0xf')
    A(f'''v_mul_f32 v{PL+1}, v{PL+1}, v{PL}
v_mul_f32 v{PL+2}, v{PL+2}, v{PL}
v_max_f32_dpp v{t5}, v{t5}, v{t5} row_bcast:15 row_mask:0xa bank_mask:0xf
v_mul_f32 v64, {f2u(-L2E):#x}, v{PL+1}
v_mul_f32 v65, {f2u(INV2PI):#x}, v{PL+2}
v_max_f32_dpp v{t5}, v{t5}, v{t5} row_bcast:31 row_mask:0xc bank_mask:0xf
v_mul_f32 v68, 0x43000000, v65
v_mul_f32 v69, 0x43000000, v64
v_readlane_b32 s94, v{t5}, 63
v_fract_f32 v68, v68
v_exp_f32 v69, v69
v_cos_f32 v70, v68
v_sin_f32 v71, v68
s_lshr_b32 s94, s94, 23
s_max_u32 s94, s94, 13
s_sub_u32 s95, 267, s94
s_lshl_b32 s95, s95, 23
s_sub_i32 s94, s94, 153
v_mul_f32 v66, s95, v{PL+3}
v_mul_f32 v67, s95, v{PL+4}
v_ldexp_f32 v{FSC}, v{PL}, s94
v_mul_f32 v70, v69, v70
v_mul_f32 v71, v69, v71
ds_write2_b32 v{t1}, v64, v65 offset0:0 offset1:2
v_add_u32 v{t6}, 0x800, v{t1}
ds_write2_b32 v{t6}, v66, v67 offset0:0 offset1:2
v_add_u32 v{t6}, 0x1000, v{t1}
ds_write2_b32 v{t6}, v70, v71 offset0:0 offset1:2''')
    A('s_waitcnt lgkmcnt(0)')
    A.stamp('kstart', True)
    A.fence()
    A.label('Lkgen')
    PR = 64
    XA = 88; LB = [92, 96, 100, 104]
    T = 108
    for jp in range(2):
        for pl in range(3): A(f'ds_read_b128 {vr(PR+12*jp+4*pl,4)}, v{VPAR} offset:{2048*pl + 16*jp}')
    def two(fmt, fmt1=None):
        for jp in range(2):
            t = T + 20 * jp; p_ = PR + 12 * jp
            names = dict(a=p_, b=p_+2, cr=p_+4, ci=p_+6, wr=p_+8, wi=p_+10, thL=t, thR=t+2, mL=t+4, mR=t+6, cL=t+8, sL=t+10, cR=t+12, sR=t+14, p=t+16, q=t+18, x=t, y=t+2)
            if fmt1 is None:
                A(fmt.format(**{k: vr(v, 2) for k, v in names.items()}))
            else:
                for e in range(2):
                    A(fmt1.format(j=2*jp+e, **{k: f'v{v+e}' for k, v in names.items()}))
    one = lambda f: two(None, f)
    A('s_waitcnt lgkmcnt(2)')
    two('v_pk_mul_f32 {thL}, {b}, v[32:33]'); two('v_pk_mul_f32 {thR}, {b}, v[34:35]')
    two('v_pk_fma_f32 {mL}, {a}, v[32:33], v[36:37]'); two('v_pk_mul_f32 {mR}, {a}, v[34:35]')
    one('v_fract_f32 {thL}, {thL}'); one('v_fract_f32 {thR}, {thR}')
    one('v_exp_f32 {mL}, {mL}'); one('v_cos_f32 {cL}, {thL}'); one('v_sin_f32 {sL}, {thL}')
    A('s_waitcnt lgkmcnt(0)')
    one('v_cos_f32 {cR}, {thR}')
    two('v_pk_mul_f32 {cL}, {mL}, {cL}'); two('v_pk_mul_f32 {sL}, {mL}, {sL}')
    one('v_sin_f32 {sR}, {thR}')
    two('v_pk_mul_f32 {p}, {cL}, {wr}'); two('v_pk_mul_f32 {q}, {cL}, {wi}')
    one('v_exp_f32 {mR}, {mR}')
    two('v_pk_fma_f32 {p}, {sL}, {wi}, {p} neg_lo:[1,0,0] neg_hi:[1,0,0]'); two('v_pk_fma_f32 {q}, {sL}, {wr}, {q}')
    for k in range(4): A(f'v_cvt_pk_f16_f32 v{LB[0]+k}, v{T+20*(k>>1)+8+(k&1)}, v{T+20*(k>>1)+10+(k&1)}')
    two('v_pk_mul_f32 {x}, {cr}, {cR}'); two('v_pk_mul_f32 {y}, {cr}, {sR}')
    two('v_pk_mul_f32 {cL}, {p}, {wr}'); two('v_pk_mul_f32 {sL}, {p}, {wi}')
    two('v_pk_fma_f32 {x}, {ci}, {sR}, {x} neg_lo:[1,0,0] neg_hi:[1,0,0]'); two('v_pk_fma_f32 {y}, {ci}, {cR}, {y}')
    two('v_pk_fma_f32 {cL}, {q}, {wi}, {cL} neg_lo:[1,0,0] neg_hi:[1,0,0]'); two('v_pk_fma_f32 {sL}, {q}, {wr}, {sL}')
    for k in range(4): A(f'v_cvt_pk_f16_f32 v{LB[1]+k}, v{T+20*(k>>1)+16+(k&1)}, v{T+20*(k>>1)+18+(k&1)}')
    two('v_pk_mul_f32 {x}, {mR}, {x}'); two('v_pk_mul_f32 {y}, {mR}, {y}')
    two('v_pk_mul_f32 {p}, {cL}, {wr}'); two('v_pk_mul_f32 {q}, {cL}, {wi}')
    for k in range(4): A(f'v_cvt_pk_f16_f32 v{XA+k}, v{T+20*(k>>1)+(k&1)}, -v{T+20*(k>>1)+2+(k&1)}')
    two('v_pk_fma_f32 {p}, {sL}, {wi}, {p} neg_lo:[1,0,0] neg_hi:[1,0,0]'); two('v_pk_fma_f32 {q}, {sL}, {wr}, {q}')
    for k in range(4): A(f'v_cvt_pk_f16_f32 v{LB[2]+k}, v{T+20*(k>>1)+8+(k&1)}, v{T+20*(k>>1)+10+(k&1)}')
    for k in range(4): A(f'v_cvt_pk_f16_f32 v{LB[3]+k}, v{T+20*(k>>1)+16+(k&1)}, v{T+20*(k>>1)+18+(k&1)}')
    A(f'v_add_u32 v{VPAR}, 0x80, v{VPAR}\ns_add_u32 s51, s51, 1\ns_cmp_lt_u32 s51, 4')
    for tt in range(4):
        A(f'v_mfma_f32_16x16x32_f16 {vr(ACC[tt],4)}, {vr(XA,4)}, {vr(LB[tt],4)}, {vr(ACC[tt],4)}')
    A('s_cbranch_scc1 Lkgen')
    A.stamp('k1')
    A(f'''s_lshl_b32 s94, s3, 11
s_add_u32 s94, s94, {L_RED}
v_add_u32 v{t1}, s94, v{t0}
s_xor_b32 s94, s3, 1
s_lshl_b32 s94, s94, 11
s_add_u32 s94, s94, {L_RED}
v_add_u32 v{t2}, s94, v{t0}
v_and_b32 v{t3}, 0x7f, v0
v_lshlrev_b32 v{t3}, 2, v{t3}
s_mul_i32 s94, s42, {2*KLS}
s_add_u32 s94, s94, {L_KL + 64}
v_add_u32 v{t4}, s94, v{t3}
v_add_u32 v{t5}, {KLC - 4}, v{t4}
v_lshl_add_u32 v{t3}, v{t3}, 1, s45''')
    for a in ACC:
        for i in range(4): A(f'v_mul_f32 v{a+i}, v{FSC}, v{a+i}')
    for i in range(8):
        A(f'v_cndmask_b32 v{64+i}, v{148+i}, v{156+i}, s[92:93]')
        A(f'v_cndmask_b32 v{72+i}, v{156+i}, v{148+i}, s[92:93]')
    A(f'ds_write_b128 v{t1}, v[64:67]\nds_write_b128 v{t1}, v[68:71] offset:1024')
    sync(F_K, 2, VSW, VSR, ONE, 30)
    A(f'ds_read_b128 v[64:67], v{t2}\nds_read_b128 v[68:71], v{t2} offset:1024')
    A(f'''v_mov_b32 v80, 0
s_sub_u32 s94, s94, 64
v_lshlrev_b32 v81, 2, v{LANE}
v_add_u32 v81, s94, v81
s_mov_b64 exec, 0xffff
ds_write_b32 v81, v80
s_mov_b64 exec, 0x7fff
ds_write_b32 v81, v80 offset:{KLC}
s_mov_b64 exec, -1
s_waitcnt lgkmcnt(2)''')
    for i in range(8): A(f'v_add_f32 v{72+i}, v{72+i}, v{64+i}')
    for i in range(8): A(f'ds_write_b32 v{CA+i}, v{72+i}')
    sync(F_K + 16, 2, VSW, VSR, ONE, 30)
    A.stamp('kred', True)
    RD = 64
    A(f'ds_read_b64 v[64:65], v{t3}')
    srcs = {1: (GI, 0), 2: (GI + 2, 0), 3: (GI + 2, 256), 4: (GI + 4, 0), 5: (GI + 4, 128), 6: (GI + 4, 256), 7: (GI + 4, 384)}
    for m in range(1, 8):
        g, off = srcs[m]
        A(f'ds_read_b32 v{RD+2*m}, v{g} offset:{off}\nds_read_b32 v{RD+2*m+1}, v{g+1} offset:{off}')
    for m in range(8):
        if m in (0, 4): A(f's_waitcnt lgkmcnt({8 if m == 0 else 0})')
        A(f'v_cvt_pk_bf16_f32 v{80+m}, v{RD+2*m}, v{RD+2*m+1}')
        if m == 3: A('s_waitcnt lgkmcnt(0)')
    for m in range(8):
        A(f'ds_write_b32 v{t4}, v{80+m} offset:{512*m}\nds_write_b32 v{t5}, v{80+m} offset:{512*m}')
        if m == 5: A('s_waitcnt lgkmcnt(4)')
    sync(F_K + 32, 2, VSW, VSR, ONE, 30)
    sync(F_S, 2, None, VSR, ONE, 30)
    A.stamp('kdone', True)
    A(f'''s_mul_i32 s94, s3, {KLS}
s_add_u32 s94, s94, {L_KL}
v_lshl_add_u32 v4, v{KG}, 2, v{IDX}
v_lshlrev_b32 v4, 2, v4
v_and_b32 v{t4}, 1, v{IDX}
v_mov_b32 v{t5}, {KLC}
v_cmp_eq_u32 vcc, 1, v{t4}
v_cndmask_b32 v{t5}, v{t5}, 4, vcc
v_add3_u32 v4, v4, v{t5}, s94          ; vK
v_mul_u32_u24 v5, {UXC}, v{t4}
v_lshrrev_b32 v{t4}, 1, v{IDX}
v_lshlrev_b32 v{t4}, 6, v{t4}
v_sub_u32 v5, v5, v{t4}
v_lshl_add_u32 v5, v{KG}, 4, v5
s_mul_i32 s94, s3, {UXS}
s_add_u32 s94, s94, {L_UX + 448}
v_add_u32 v5, s94, v5                  ; vU
s_lshl_b32 s94, s3, 12
s_add_u32 s94, s94, {L_Y}
v_lshlrev_b32 v6, 2, v{IDX}
v_lshl_add_u32 v6, v{KG}, 7, v6
v_add_u32 v6, s94, v6                  ; vY
v_mov_b32 v7, v{VSW}
v_mov_b32 v1, 1
v_mov_b32 v2, {L_FLG + F_U}''')
    if o['prio']: A(f"s_setprio {o['prio']}")
    mfma_phase(A, 4, 5, 6, 7, 1, 2, o)
    A.stamp_flush(0, 3)
    A.label('Lend')
    A('s_endpgm')
    HDR = open('gated_mix__ssm_conv_s4d__ssm_conv_h3__prompt.s.ref').read().split('; Override launch')[0]
    s = HDR + f'; @launch grid=(256,1,1) block=(512,1,1) lds={L_END}\n.amdgcn_target "amdgcn-amd-amdhsa--gfx950"\n.text\n' + A.text()
    s += '.section .rodata,"a"\n' + kdesc(KN, 256)
    open(path, 'w').write(s)
    return L_END, A.nops

SETS = dict(a=['issued', 'par', 'kstart', 'k1', 'tile', 'bar1'], b=['tst', 'drain', 'polled', 'staged', 'kred', 'kdone'],
            c=['kpre', 'ug0', 'ug1', 'ug2', 'ug3', 'gok'], d=['ug0', 'pass0', 'pass1', 'pass2', 'polled', 'staged'])
if __name__ == '__main__':
    out = sys.argv[1]
    print(gen(out))
    if len(sys.argv) > 2:
        for k, v in SETS.items(): gen(out.replace('.s', f'_{k}.s'), v)
        gen(out.replace('.s', '_np.s'), None, dict(prefetch=False))
        gen(out.replace('.s', '_p16.s'), None, dict(pfwg=16))
        gen(out.replace('.s', '_p64.s'), None, dict(pfwg=64))
```

```python
import re

TRANS = ('v_exp_f32', 'v_log_f32', 'v_rcp_f32', 'v_rsq_f32', 'v_sqrt_f32', 'v_sin_f32', 'v_cos_f32')
NODST_S = ('s_cmp', 's_waitcnt', 's_barrier', 's_nop', 's_branch', 's_cbranch', 's_endpgm', 's_setprio', 's_sleep', 's_bitcmp')

def regs_of(tok):
    tok = tok.strip()
    tok = tok.lstrip('-')
    m = re.fullmatch(r'\|?abs\((.*)\)\|?', tok)
    if m: tok = m.group(1)
    tok = tok.strip('|')
    m = re.fullmatch(r'([vsa])(\d+)', tok)
    if m: return [(m.group(1), int(m.group(2)))]
    m = re.fullmatch(r'([vsa])\[(\d+):(\d+)\]', tok)
    if m: return [(m.group(1), i) for i in range(int(m.group(2)), int(m.group(3)) + 1)]
    if tok == 'vcc': return [('s', 106), ('s', 107)]
    if tok == 'vcc_lo': return [('s', 106)]
    if tok == 'vcc_hi': return [('s', 107)]
    if tok == 'exec': return [('s', 126), ('s', 127)]
    if tok == 'm0': return [('s', 124)]
    return []

class Ins:
    def __init__(self, text):
        self.text = text
        t = text.split(';')[0].strip()
        parts = t.split(None, 1)
        self.op = parts[0]
        rest = parts[1] if len(parts) > 1 else ''
        ops = []; cur = ''; depth = 0
        for ch in rest:
            if ch in '[(': depth += 1
            if ch in '])': depth -= 1
            if ch == ',' and depth == 0: ops.append(cur); cur = ''
            else: cur += ch
        if cur.strip(): ops.append(cur)
        mods = ''
        if ops:
            last = ops[-1].strip().split(None, 1)
            ops[-1] = last[0]
            mods = last[1] if len(last) > 1 else ''
        self.mods = mods
        ops = [o.strip() for o in ops]
        self.ops = ops
        op = self.op
        self.cls = 'other'
        d = []; s = []
        if op.startswith('v_mfma'):
            self.cls = 'sgemm' if op.endswith('_f32') and 'x4_f32' in op or op.endswith('x2_f32') else 'xdl'
            d = regs_of(ops[0]); self.srcA = regs_of(ops[1]); self.srcB = regs_of(ops[2]); self.srcC = regs_of(ops[3])
            s = self.srcA + self.srcB + self.srcC
            if '16x16x32' in op: self.passes = 4
            elif '32x32x16' in op: self.passes = 8
            elif '16x16x4_f32' in op: self.passes = 8
            elif '32x32x2_f32' in op: self.passes = 16
            else: raise Exception('unknown mfma ' + op)
        elif op.startswith('v_'):
            self.cls = 'valu'
            d = regs_of(ops[0])
            rs = ops[1:]
            if op.startswith(('v_add_co', 'v_sub_co', 'v_addc_co', 'v_subb_co', 'v_subrev_co', 'v_mad_u64', 'v_div_scale')):
                d += regs_of(ops[1]); rs = ops[2:]
            for o in rs: s += regs_of(o)
            if op.startswith(('v_fmac', 'v_pk_fmac', 'v_dot2c')) or 'dpp' in op or 'd16' in op or op.startswith('v_writelane'): s += regs_of(ops[0])
            if op.startswith('v_permlane') : d += regs_of(ops[1]); s += regs_of(ops[0])
            if op.startswith('v_cmpx'): d += regs_of('exec')
        elif op.startswith('ds_'):
            self.cls = 'ds'
            if op.startswith(('ds_read', 'ds_bpermute', 'ds_permute', 'ds_swizzle')) or '_rtn' in op:
                d = regs_of(ops[0])
                for o in ops[1:]: s += regs_of(o)
                if 'd16' in op: s += regs_of(ops[0])
            else:
                for o in ops: s += regs_of(o)
        elif op.startswith(('buffer_', 'global_')):
            self.cls = 'vmem'
            islds = re.search(r'\blds\b', mods) is not None or '_lds_' in op
            self.islds = islds
            if ('load' in op) and not islds:
                d = regs_of(ops[0])
                for o in ops[1:]: s += regs_of(o)
            else:
                for o in ops: s += regs_of(o)
                if 'atomic' in op and 'sc0' in mods: d = regs_of(ops[0])
            if islds: s += regs_of('m0')
        elif op.startswith(('s_load', 's_buffer_load', 's_memtime', 's_memrealtime')):
            self.cls = 'smem'
            d = regs_of(ops[0])
            for o in ops[1:]: s += regs_of(o)
        elif op.startswith('s_'):
            self.cls = 'salu'
            if op.startswith(NODST_S):
                for o in ops: s += regs_of(o)
            else:
                d = regs_of(ops[0])
                for o in ops[1:]: s += regs_of(o)
                if 'saveexec' in op: d += regs_of('exec')
        self.d = set(d); self.s = set(s)
        self.trans = op.replace('_e32', '').replace('_e64', '') in TRANS
        self.dpp = 'dpp' in op or 'row_' in mods or 'quad_perm' in mods
        self.states = 1
        if op == 's_nop': self.states = int(ops[0], 0) + 1

def need(p, c):
    n = 0
    pv = {r for r in p.d if r[0] in 'va'}; ps = {r for r in p.d if r[0] == 's'}
    if p.cls == 'valu':
        if c.cls in ('xdl', 'sgemm') and pv & c.s: n = max(n, 2)
        if c.cls in ('xdl', 'sgemm') and ('s', 126) in ps: n = max(n, 4)
        if p.trans and c.cls in ('valu',) and not c.trans and pv & (c.s | c.d): n = max(n, 1)
        if p.trans and c.cls in ('valu',) and c.trans and pv & (c.s): n = max(n, 1)
        if p.trans and c.cls in ('ds', 'vmem') and pv & c.s: n = max(n, 1)
        if c.cls == 'valu' and c.dpp and pv & c.s: n = max(n, 2)
        if c.cls == 'valu' and c.dpp and ('s', 126) in ps: n = max(n, 5)
        if c.cls == 'valu' and c.op.startswith('v_permlane') and pv & c.s: n = max(n, 2)
        if c.cls == 'valu' and c.op.startswith(('v_readlane', 'v_readfirstlane')) and pv & c.s: n = max(n, 1)
        if ps:
            if c.cls == 'vmem' and ps & c.s: n = max(n, 5)
            if c.cls == 'valu' and ps & c.s:
                n = max(n, 4 if c.op.startswith(('v_readlane', 'v_writelane')) else 2)
            if c.cls in ('salu', 'smem') and ps & c.s: n = max(n, 1)
            if ('s', 126) in ps and c.cls == 'valu' and c.op.startswith(('v_readlane', 'v_readfirstlane', 'v_writelane', 'v_permlane')): n = max(n, 4)
        if 'sdwa' in p.op or 'op_sel' in p.mods:
            if c.cls == 'valu' and pv & (c.s | c.d): n = max(n, 1)
    if p.cls == 'salu':
        if ('s', 124) in p.d and c.cls == 'vmem' and getattr(c, 'islds', False): n = max(n, 1)
    if p.cls == 'vmem' and 'store' in p.op and ('x4' in p.op or 'x3' in p.op):
        data = set(regs_of(p.ops[0])) if p.op.startswith('buffer') else set(regs_of(p.ops[1]))
        if data & c.d: n = max(n, 2)
    if p.cls in ('xdl', 'sgemm'):
        idx = {2: 0, 4: 1, 8: 2, 16: 3}[p.passes]
        if p.cls == 'xdl':
            if c.cls in ('xdl', 'sgemm'):
                if pv & set(c.srcA + c.srcB): n = max(n, [5, 8, 12, 20][idx])
                if pv & set(c.srcC):
                    if c.cls == 'xdl' and set(c.srcC) == pv and c.passes == p.passes: n = max(n, [2, 0, 0, 0][idx])
                    else: n = max(n, [4, 6, 10, 18][idx])
                elif pv & c.d: n = max(n, [5, 8, 12, 20][idx])
            elif pv & (c.s | c.d): n = max(n, [5, 8, 12, 20][idx])
            if c.cls == 'valu' and set(p.srcC) & c.d: n = max(n, [1, 3, 7, 15][idx])
        else:
            if c.cls in ('xdl', 'sgemm'):
                if pv & set(c.srcA + c.srcB): n = max(n, [4, 6, 10, 18][idx])
                if pv & set(c.srcC):
                    if c.cls == 'sgemm' and set(c.srcC) == pv: n = max(n, [2, 0, 0, 0][idx])
                    else: n = max(n, [2, 4, 8, 16][idx])
                elif pv & c.d: n = max(n, [4, 6, 10, 18][idx])
            elif pv & (c.s | c.d): n = max(n, [4, 6, 10, 18][idx])
    return n

class Asm:
    def __init__(self):
        self.lines = []
        self.win = []
        self.nops = 0
    def raw(self, text):
        self.lines.append(text)
    def label(self, name):
        self.lines.append(name + ':')
    def comment(self, t):
        self.lines.append('    ; ' + t)
    def fence(self):
        worst = 0; dist = 0
        for p in reversed(self.win):
            w = 0
            if p.cls == 'valu': w = 5
            if p.cls in ('xdl', 'sgemm'): w = {2: 5, 4: 8, 8: 12, 16: 20}[p.passes]
            if p.cls == 'vmem': w = 2
            if p.cls == 'salu': w = 1 if ('s', 124) in p.d else 0
            worst = max(worst, w - dist)
            dist += p.states
        while worst > 0:
            k = min(worst, 16)
            self('s_nop %d' % (k - 1))
            worst -= k
        self.win = []
    def __call__(self, text):
        for ln in text.strip().split('\n'):
            ln = ln.strip()
            if not ln: continue
            if ln.startswith(';'): self.lines.append('    ' + ln); continue
            if ln.endswith(':'): self.label(ln[:-1]); continue
            c = Ins(ln)
            req = 0; dist = 0
            for p in reversed(self.win):
                req = max(req, need(p, c) - dist)
                dist += p.states
                if dist > 24: break
            while req > 0:
                k = min(req, 16)
                nop = Ins('s_nop %d' % (k - 1))
                self.lines.append('    s_nop %d' % (k - 1)); self.win.append(nop); self.nops += 1
                req -= k
            self.lines.append('    ' + ln)
            self.win.append(c)
            if len(self.win) > 40: self.win = self.win[-30:]
    stamps = False
    stamp_op = 's_memrealtime'
    stamp_sel = None
    def stamp(self, i, wait=False):
        if not self.stamps: return
        if isinstance(i, str):
            if i not in self.stamp_sel: return
            i = 1 + self.stamp_sel.index(i)
        self(f'{self.stamp_op} s[{72+2*i}:{73+2*i}]')
        if wait: self('s_waitcnt lgkmcnt(0)')
    def stamp_init(self):
        if self.stamps:
            for i in range(8): self(f's_mov_b64 s[{72+2*i}:{73+2*i}], 0')
            self('s_mov_b32 s90, s2')
            self.stamp(0)
    def stamp_flush(self, ki, wave_sreg):
        if not self.stamps: return
        if getattr(self, 'dbgflush', False):
            self.nflush = getattr(self, 'nflush', 0) + 1
            return self.stamp_flush_dbg(0 if self.nflush == 1 else 8)
        self('s_waitcnt vmcnt(0) lgkmcnt(0)')
        self.stamp(7)
        self('s_mov_b64 exec, 1')
        self('s_waitcnt lgkmcnt(0)')
        for i in range(8): self(f'v_mov_b32 v{8+i}, s{72+2*i}')
        self(f"""s_lshl_b32 s91, s90, 4
s_add_u32 s91, s91, s{wave_sreg}
s_lshl_b32 s91, s91, 5
s_add_u32 s91, s91, {0x8000000 + ki*0x100000}
v_mov_b32 v16, s91
global_store_dwordx4 v16, v[8:11], s[40:41]
global_store_dwordx4 v16, v[12:15], s[40:41] offset:16""")
    def stamp_flush_dbg(self, base):
        self('s_waitcnt vmcnt(0) lgkmcnt(0)')
        self.stamp(7)
        self('s_mov_b64 exec, 1')
        self('s_waitcnt lgkmcnt(0)')
        self('s_not_b32 s72, s72')
        self('v_mov_b32 v16, 0')
        for i in range(8):
            self(f'v_mov_b32 v8, s{72+2*i}')
            self(f'global_atomic_umax v16, v8, s[38:39] offset:{4*(0 if i == 0 else base+i)}')
    def text(self):
        return '\n'.join(self.lines) + '\n'

def vr(a, n=1):
    return 'v%d' % a if n == 1 else 'v[%d:%d]' % (a, a + n - 1)
def sr(a, n=1):
    return 's%d' % a if n == 1 else 's[%d:%d]' % (a, a + n - 1)

def kdesc(name, vgpr, sgpr=102, extra=''):
    acc = (vgpr + 3) // 4 * 4
    return f""".p2align 6
.amdhsa_kernel {name}
  .amdhsa_next_free_vgpr {vgpr}
  .amdhsa_next_free_sgpr {sgpr}
  .amdhsa_accum_offset {acc}
  .amdhsa_group_segment_fixed_size 0
  .amdhsa_kernarg_size 136
  .amdhsa_user_sgpr_count 2
  .amdhsa_user_sgpr_kernarg_segment_ptr 1
  .amdhsa_system_sgpr_workgroup_id_x 1
  .amdhsa_float_denorm_mode_32 3
{extra}.end_amdhsa_kernel
"""
```

```python
import sys, struct
from asmlib import *
from k1 import f2u, L2E, L2E_HI, L2E_LO, INV2PI, load_ptrs, P, ptr, rnd, lo2f, hi2f, bfexp
import k2, k1
k1.HIMASK[0] = 's88'
from align import align
from fused4 import VM, epilogue, mfma_phase
KN = 'gated_mix__ssm_conv_s4d__ssm_conv_h3__prompt_kernel'

WS_UR = 0; WS_KVR = 2 << 20; WS_IN = 4 << 20; WS_GT = WS_IN + 1024; WS_EP = WS_IN + (1 << 20)
KLC = 4224; KLS = 2 * KLC
UXC = 4576; UXS = 2 * UXC
L_KL = 0
L_UX = 4 * KLS
L_Y = L_UX + 4 * UXS
L_G = L_Y + 16384
L_RED = L_G + 4096
L_KC = L_RED + 8192
L_TK = L_KC + 6144
L_TV = L_TK + 9 * 1040
L_TU = L_TV + 8 * 1040
L_PAR = L_TU + 8 * 1040
L_PARW = L_PAR + 4096
L_FLG = L_PARW + 4096
L_END = L_FLG + 256
F_U = 64; F_T = 80; F_K = 96; F_S = 144
assert all(x % 16 == 0 for x in (L_UX, L_Y, L_RED, L_KC, L_TK, L_TV, L_TU, L_PAR, L_PARW, L_FLG))

def gen(path, stamps=None, opts=None):
    o = dict(prefetch=True, prio=2, sleep=1, tprio=3, ssm='T', gmask=31)
    o.update(opts or {})
    A = Asm(); A.stamps = bool(stamps); A.stamp_sel = stamps
    if o.get('cyc'): A.stamp_op = 's_memtime'
    A.dbgflush = o.get('dbg', False)
    V = VM(A)
    A.raw(f'.globl {KN}\n.p2align 8\n.type {KN},@function\n{KN}:')
    A('s_cmp_ge_u32 s2, 256\ns_cbranch_scc1 Lend')
    A.stamp_init()
    load_ptrs(A)
    A('s_mov_b32 s88, 0xffff0000')
    LANE, IDX, KG = 1, 2, 3
    t0, t1, t2, t3, t4, t5, t6, t7 = 40, 41, 42, 43, 44, 45, 46, 47
    if o['prefetch']:
        A(f'''s_cmp_ge_u32 s2, {o.get('pfwg', 256)}
s_cbranch_scc1 Lnopf
s_getpc_b64 s[68:69]
v_lshlrev_b32 v49, 4, v0
v_add_u32 v50, 0x2000, v49
v_min_u32 v50, Lend-{KN}-16, v50
s_and_b32 s68, s68, 0xffffff00
global_load_dwordx4 v[56:59], v49, s[68:69]
global_load_dwordx4 v[60:63], v50, s[68:69]
Lnopf:''')
    A(f'''v_lshrrev_b32 v{t0}, 6, v0
v_readfirstlane_b32 s3, v{t0}          ; wave
v_and_b32 v{LANE}, 63, v0
v_and_b32 v{IDX}, 15, v0
v_bfe_u32 v{KG}, v0, 4, 2
v_lshlrev_b32 v{t0}, 4, v{LANE}        ; lane*16
s_and_b32 s4, s2, 7                    ; s
s_lshr_b32 s5, s2, 3                   ; jq
s_lshl_b32 s6, s4, 6
s_lshl_b32 s7, s5, 1
s_add_u32 s6, s6, s7                   ; d0
s_and_b32 s43, s3, 3                   ; w&3
s_cmp_ge_u32 s3, 4
s_cbranch_scc1 Ltw''')
    PL = 51
    A(f'''s_lshl_b32 s70, s6, 8
v_lshlrev_b32 v{t1}, 1, v0
v_add_u32 v{t1}, s70, v{t1}
s_lshr_b32 s42, s3, 1                  ; ch
s_add_u32 s7, s42, s6                  ; d
s_lshl_b32 s71, s7, 1
v_mov_b32 v{t2}, s71
s_mov_b32 s48, {f2u(L2E_HI):#x}
s_mov_b32 s49, {f2u(L2E_LO):#x}
s_waitcnt lgkmcnt(0)''')
    V.issue(f"global_load_ushort v{PL}, v{t2}, {ptr('logdt')}", 'par')
    V.issue(f"global_load_ushort v{PL+1}, v{t1}, {ptr('logA')}", 'par')
    V.issue(f"global_load_ushort v{PL+2}, v{t1}, {ptr('Aim')}", 'par')
    V.issue(f"global_load_ushort v{PL+3}, v{t1}, {ptr('Cr')}", 'par')
    V.issue(f"global_load_ushort v{PL+4}, v{t1}, {ptr('Ci')}", 'par')
    A('s_barrier\ns_branch Lkw')
    A.win = []
    A.label('Ltw')

    def ssm_dma(t5):
        A(f'''s_lshr_b32 s94, s43, 1
s_add_u32 s95, s94, s6
s_lshl_b32 s95, s95, 12
s_add_u32 s60, s{P['ssmk']}, s95
s_addc_u32 s61, s{P['ssmk']+1}, 0
s_mov_b32 s62, 4096
s_mov_b32 s63, 0x00020000
s_mul_i32 s94, s94, {2*KLS}
s_and_b32 s95, s43, 1
s_mul_i32 s97, s95, {KLC}
s_add_u32 s94, s94, s97
s_add_u32 s94, s94, {L_KL + KLS}
s_lshl_b32 s95, s95, 2
v_lshlrev_b32 v{t5}, 2, v{LANE}
s_sub_u32 s96, s95, 64
v_add_u32 v{t5}, s96, v{t5}
s_add_u32 m0, s94, 64''')
        for i in range(4):
            V.issue(f'buffer_load_dwordx4 v{t0}, s[60:63], s95 offen offset:{1024*i} lds', 'ssmk')
        A('s_mov_b32 m0, s94\ns_mov_b64 exec, 0xffff')
        V.issue(f'buffer_load_dword v{t5}, s[60:63], 0 offen lds', 'ssmk')
        A('s_mov_b64 exec, -1')
    nsync = [0]
    def sync(off, n, vaddr_w, vaddr_r, vone, tmp):
        k = nsync[0]; nsync[0] += 1
        if vaddr_w is not None: A(f'ds_write_b32 v{vaddr_w}, v{vone} offset:{off}')
        A.fence()
        A.label(f'Lsy{k}')
        if n == 2:
            A(f'ds_read_b64 {vr(tmp,2)}, v{vaddr_r} offset:{off}\ns_waitcnt lgkmcnt(0)\nv_and_b32 v{tmp}, v{tmp}, v{tmp+1}')
        else:
            A(f'ds_read_b128 {vr(tmp,4)}, v{vaddr_r} offset:{off}\ns_waitcnt lgkmcnt(0)\nv_and_b32 v{tmp}, v{tmp}, v{tmp+1}\nv_and_b32 v{tmp+2}, v{tmp+2}, v{tmp+3}\nv_and_b32 v{tmp}, v{tmp}, v{tmp+2}')
        A(f'v_cmp_ne_u32 vcc, 0, v{tmp}\ns_cbranch_vccz Lsy{k}')
    V.q = []
    TAG = 4
    SK = 8; GU = 16; GW = 24
    VST = 36; VTA = 37; VTB = 38; VFL = 39
    VSW = 28; VSR = 29; ONE = 30
    if o['tprio']: A(f"s_setprio {o['tprio']}")
    A(f'''v_lshrrev_b32 v{t4}, 3, v{LANE}
v_lshlrev_b32 v{t4}, 10, v{t4}
v_and_b32 v{t5}, 7, v0
v_lshl_add_u32 v{t4}, v{t5}, 4, v{t4}
s_lshl_b32 s70, s5, 16
s_lshl_b32 s71, s4, 7
s_add_u32 s70, s70, s71
s_sub_u32 s71, s70, 0x2000
v_add_u32 v{t5}, s71, v{t4}
s_lshl_b32 s71, s43, 14
s_add_u32 s70, s70, s71
v_add_u32 v{t4}, s70, v{t4}
v_add_u32 v{t1}, 0x2000, v{t4}
s_mul_i32 s70, s43, 2080
s_lshl_b32 s71, s43, 4
s_lshl_b64 s[92:93], 0xffff, s71
v_mov_b32 v{t3}, {WS_EP}
s_lshl_b32 s94, s4, 9
s_lshl_b32 s95, s43, 7
s_add_u32 s94, s94, s95
v_lshlrev_b32 v{t6}, 4, v{KG}
v_add_u32 v{t6}, s94, v{t6}
s_lshl_b32 s94, s2, 13
s_lshl_b32 s95, s43, 11
s_add_u32 s94, s94, s95
v_add_u32 v{t7}, s94, v{t0}
v_mov_b32 v108, 0
v_mov_b32 v109, 0
v_mov_b32 v110, 0
v_mov_b32 v111, 0
v_add_u32 v{t2}, {L_FLG}, v{t0}
s_mov_b64 exec, 0xffff
ds_write_b128 v{t2}, v[108:111]
s_lshr_b32 s94, s43, 1
s_mul_i32 s94, s94, {2*KLS}
s_and_b32 s95, s43, 1
s_mul_i32 s95, s95, {KLC}
s_add_u32 s94, s94, s95
v_add_u32 v{t2}, s94, v{t0}
s_mov_b64 exec, 15
ds_write_b128 v{t2}, v[108:111] offset:{L_KL}
s_mov_b64 exec, -1
s_waitcnt lgkmcnt(0)
{'s_barrier' if o.get('early_bar', True) else ''}
s_mov_b32 s44, s{P['k']}
s_mov_b32 s45, s{P['k']+1}
s_mov_b32 s46, 0x200000
s_mov_b32 s47, 0x00020000''')
    V.issue(f"global_load_dwordx4 {vr(SK,4)}, v{t6}, {ptr('shk')}", 'sk')
    V.issue(f"global_load_dwordx4 {vr(SK+4,4)}, v{t6}, {ptr('shk')} offset:64", 'sk')
    V.issue(f"global_load_dword v{TAG}, v{t3}, {ptr('ws')}", 'sk')
    if o.get('stag'):
        A('s_lshr_b32 s94, s5, 3')
        A.label('Lstag')
        A(f's_cmp_eq_u32 s94, 0\ns_cbranch_scc1 Lstagd\ns_sleep {o["stag"]}\ns_sub_u32 s94, s94, 1\ns_branch Lstag')
        A.label('Lstagd')
    for g, va in ((0, t4), (1, t1)):
        A(f's_add_u32 m0, s70, {L_TK + 1040 + 1040*g}')
        V.issue(f"global_load_lds_dwordx4 v{va}, {ptr('k')}", 'tile')
        A(f's_add_u32 m0, s70, {L_TV + 1040*g}')
        V.issue(f"global_load_lds_dwordx4 v{va}, {ptr('v')}", 'tile')
        A(f's_add_u32 m0, s70, {L_TU + 1040*g}')
        V.issue(f"global_load_lds_dwordx4 v{va}, {ptr('u')}", 'tile')
    A(f's_mov_b32 m0, {L_TK}\ns_mov_b64 exec, s[92:93]')
    V.issue(f'buffer_load_dwordx4 v{t5}, s[44:47], 0 offen lds', 'tile')
    A('s_mov_b64 exec, -1')
    if not o.get('early_bar', True): A('s_barrier')
    V.issue(f"global_load_dwordx4 {vr(GU,4)}, v{t7}, {ptr('u')}", 'gate')
    V.issue(f"global_load_dwordx4 {vr(GU+4,4)}, v{t7}, {ptr('u')} offset:1024", 'gate')
    V.issue(f"global_load_dwordx4 {vr(GW,4)}, v{t0}, {ptr('gw')}", 'gate')
    A(f'''s_lshl_b32 s94, s2, 12
s_lshl_b32 s95, s43, 7
s_add_u32 s94, s94, s95
s_add_u32 s94, s94, {WS_IN}
v_and_b32 v7, 3, v0
v_lshlrev_b32 v7, 10, v7
v_add_u32 v7, s94, v7''')
    V.issue(f"global_load_dword v7, v7, {ptr('ws')} sc1", 'gate')
    if o['ssm'] == 'T': ssm_dma(t5)
    A.stamp('issued')
    c1, c2 = 5, 6
    H = 120; GQ = 96; SD = 64
    A(f'''s_mov_b32 s52, 0x05040100
s_mov_b32 s53, 0x07060302
v_and_b32 v31, 7, v{IDX}
v_sub_u32 v{c1}, 7, v31                ; grp
v_mul_u32_u24 v{VTA}, 1040, v{c1}
v_lshrrev_b32 v{c2}, 3, v{IDX}         ; par
v_lshl_add_u32 v{VTA}, v{c2}, 9, v{VTA}
v_lshl_add_u32 v{VTA}, v{KG}, 2, v{VTA}
s_lshl_b32 s94, s43, 5
s_add_u32 s94, s94, {L_TK}
v_add_u32 v{VTA}, s94, v{VTA}
v_lshl_add_u32 v{VTB}, v{c2}, 4, v{VTA}
v_lshl_add_u32 v{VST}, v{KG}, 1, v{c2}
v_lshlrev_b32 v{VST}, 12, v{VST}
v_lshlrev_b32 v{c1}, 4, v{c1}
v_sub_u32 v{VST}, v{VST}, v{c1}
s_lshl_b32 s94, s4, 18
s_lshl_b32 s95, s43, 16
s_add_u32 s94, s94, s95
s_lshl_b32 s95, s5, 7
s_sub_u32 s94, s94, s95
s_add_u32 s94, s94, {3968 + 112}
v_add_u32 v{VST}, s94, v{VST}
v_cmp_eq_u32 s[54:55], 1, v{c2}
s_lshl_b32 s94, s43, 3
v_and_b32 v{c1}, 7, v0
v_add_u32 v{VFL}, s94, v{c1}
v_lshlrev_b32 v{VFL}, 15, v{VFL}
s_lshl_b32 s94, s4, 12
s_lshr_b32 s95, s5, 3
s_lshl_b32 s95, s95, 7
s_add_u32 s94, s94, s95
s_and_b32 s95, s5, 7
s_lshl_b32 s96, s95, 2
s_add_u32 s94, s94, s96
s_add_u32 s94, s94, {WS_IN}
v_bfe_u32 v{c1}, v0, 3, 1
v_mul_u32_u24 v{c1}, 132, v{c1}
v_add3_u32 v{VFL}, v{VFL}, v{c1}, s94
s_cmp_eq_u32 s95, 7
s_movk_i32 s70, 0xff
s_cselect_b32 s70, 0xffff, s70
s_cmp_eq_u32 s5, 31
s_cselect_b32 s70, 0xff, s70
s_lshl_b32 s94, s43, 2
s_add_u32 s94, s94, {L_FLG}
v_mov_b32 v{VSW}, s94
v_mov_b32 v{VSR}, {L_FLG}
v_mov_b32 v{ONE}, 1
s_mul_i32 s94, s43, {UXS}
s_add_u32 s94, s94, {L_UX + 4096}
v_add_u32 v{c1}, s94, v{t0}
s_mov_b32 exec_lo, 0x0fffffff
s_mov_b32 exec_hi, 0
ds_write_b128 v{c1}, v[108:111]
ds_write_b128 v{c1}, v[108:111] offset:{UXC}
s_mov_b64 exec, -1
v_subrev_u32 v5, 0x100, v0             ; ht
v_lshrrev_b32 v{H+8}, 2, v5
v_lshlrev_b32 v{H+8}, 12, v{H+8}
v_and_b32 v6, 3, v5
v_lshl_add_u32 v{H+8}, v6, 4, v{H+8}
v_add_u32 v{H+8}, {WS_GT}, v{H+8}
v_add_u32 v{H+9}, 0x40000, v{H+8}
v_add_u32 v{H+10}, 0x80000, v{H+8}
v_add_u32 v{H+11}, 0xc0000, v{H+8}
s_lshl_b32 s95, s6, 1
s_load_dword s98, {ptr('Dskip')}, s95
s_load_dword s99, {ptr('ssmD')}, s95
s_mov_b32 s56, s{P['out']}
s_mov_b32 s57, s{P['out']+1}
s_mov_b32 s58, 0x200000
s_mov_b32 s59, 0x00020000
v_lshlrev_b32 v6, 2, v5
v_add_u32 v{H}, {L_Y}, v6              ; vP
v_sub_u32 v{H+1}, {L_UX + UXC + 4092}, v6 ; vN
v_lshlrev_b32 v{H+2}, 11, v5
v_add_u32 v{H+2}, s95, v{H+2}          ; vO
v_mov_b32 v{H+3}, {L_FLG}
s_cmp_eq_u32 s43, 0
s_cselect_b32 s94, 7, 8
v_min_u32 v{t3}, s94, v{LANE}
v_lshlrev_b32 v{t3}, 2, v{t3}
s_lshl_b32 s94, s2, 12
s_lshl_b32 s95, s43, 7
s_add_u32 s94, s94, s95
s_add_u32 s94, s94, {WS_IN}
v_add_u32 v{t3}, s94, v{t3}
s_lshl_b32 s94, s6, 12
s_add_u32 s64, s{P['ws']}, s94
s_addc_u32 s65, s{P['ws']+1}, 0
s_lshl_b32 s94, s43, 10
s_sub_u32 s94, 3072, s94
v_add_u32 v{t1}, s94, v{t0}
v_add_u32 v{t2}, {L_UX}, v{t1}
v_add_u32 v{t4}, 0x1000, v{t1}
v_add_u32 v{t5}, {WS_KVR}, v{t1}
v_add_u32 v{t6}, {WS_KVR + 0x1000}, v{t1}
s_movk_i32 s94, 0xff0
v_cmp_eq_u32 s[92:93], s94, v{t1}
s_waitcnt lgkmcnt(0)
s_lshl_b32 s100, s98, 16
s_and_b32 s101, s98, 0xffff0000
v_mov_b32 v{H+4}, s100
v_mov_b32 v{H+5}, s101
s_lshl_b32 s100, s99, 16
s_and_b32 s101, s99, 0xffff0000
v_mov_b32 v{H+6}, s100
v_mov_b32 v{H+7}, s101''')
    WS2 = [188, 196]
    V.wait('sk')
    for i in range(2):
        for t in range(4):
            for ee in range(2):
                (hi2f if t & 1 else lo2f)(A, WS2[i] + 2 * t + ee, SK + 4 * i + 2 * ee + (t >> 1))
    A(f'v_add_u32 v{TAG}, 1, v{TAG}')
    V.wait('tile')
    A.stamp('tile')
    sync(F_T, 4, VSW, VSR, ONE, 32)
    A.stamp('bar1', True)
    dpp = 'row_ror:8 row_mask:0xf bank_mask:0xf'
    KD = [140, 156]
    def tread(i):
        k = KD[i]
        for r in range(3): A(f'ds_read_b32 v{k+r}, v{VTB} offset:{512 + 128*(r+1) + 16*i}')
        for r in range(4): A(f'ds_read_b32 v{k+3+r}, v{VTA} offset:{1040 + 128*r + 16*i}')
        for r in range(4): A(f'ds_read_b32 v{k+7+r}, v{VTA} offset:{L_TV - L_TK + 128*r + 16*i}')
        for r in range(4): A(f'ds_read_b32 v{k+11+r}, v{VTA} offset:{L_TU - L_TK + 128*r + 16*i}')
    W = 64; KP = 72; VP = 86; AC = 94; O = 102; UNS = [172, 180]
    tread(0)
    for i in range(2):
        k = KD[i]; VD = k + 7; UD = k + 11; UN = UNS[i]
        W = WS2[i]
        A('s_waitcnt lgkmcnt(0)')
        if i == 0: tread(1)
        for r in range(7): lo2f(A, KP + 2 * r, k + r); hi2f(A, KP + 2 * r + 1, k + r)
        for a in range(4): A(f'v_pk_mul_f32 {vr(AC+2*a,2)}, {vr(KP+2*a,2)}, {vr(W+6,2)}')
        for r in range(4): lo2f(A, VP + 2 * r, VD + r); hi2f(A, VP + 2 * r + 1, VD + r)
        for tp in range(1, 4):
            for a in range(4): A(f'v_pk_fma_f32 {vr(AC+2*a,2)}, {vr(KP+2*(a+tp),2)}, {vr(W+2*(3-tp),2)}, {vr(AC+2*a,2)}')
        for ch in range(2):
            A(f'v_perm_b32 v{O+4+2*ch}, v{UD+2}, v{UD+3}, s{52+ch}')
            A(f'v_perm_b32 v{O+4+2*ch+1}, v{UD}, v{UD+1}, s{52+ch}')
        for a in range(4): A(f'v_pk_mul_f32 {vr(AC+2*a,2)}, {vr(AC+2*a,2)}, {vr(VP+2*a,2)}')
        A('s_mov_b64 vcc, s[54:55]')
        for ch in range(2):
            A(f'v_cvt_pk_bf16_f32 v{O+2*ch}, v{AC+6+ch}, v{AC+4+ch}')
            A(f'v_cvt_pk_bf16_f32 v{O+2*ch+1}, v{AC+2+ch}, v{AC+ch}')
        for tn in (1, 0):
            for e in range(2):
                A(f'v_cndmask_b32_dpp v{UN+4*tn+e}, v{O+4*tn+e}, v{O+4*tn+2+e}, vcc {dpp}')
        A('s_not_b64 vcc, vcc')
        for tn in (1, 0):
            for e in range(2):
                A(f'v_cndmask_b32_dpp v{UN+4*tn+2+e}, v{O+4*tn+2+e}, v{O+4*tn+e}, vcc {dpp}')
        A(f'v_add_u32 v{t7}, {WS_KVR}, v{VST}')
        V.issue(f"global_store_dwordx4 v{VST}, {vr(UN+4,4)}, {ptr('ws')} {o.get('sflag','sc1')}", 'st')
        V.issue(f"global_store_dwordx4 v{t7}, {vr(UN,4)}, {ptr('ws')} {o.get('sflag','sc1')}", 'st')
        if i == 0: A(f'v_add_u32 v{VST}, 0x8000, v{VST}')
    A.stamp('tst')
    X = 64
    if o['ssm'] == 'T':
        V.wait('ssmk')
        A(f'ds_write_b32 v{VSW}, v{ONE} offset:{F_S}')
    else: V.wait('gate')
    for r in range(2):
        A(f'v_dot2_f32_bf16 v{X+2*r}, v{GU+4*r}, v{GW}, 0\nv_dot2_f32_bf16 v{X+2*r+1}, v{GU+4*r+1}, v{GW+1}, 0')
    for r in range(2):
        A(f'v_dot2_f32_bf16 v{X+2*r}, v{GU+4*r+2}, v{GW+2}, v{X+2*r}\nv_dot2_f32_bf16 v{X+2*r+1}, v{GU+4*r+3}, v{GW+3}, v{X+2*r+1}')
    A(f'''s_lshl_b32 s94, s2, 12
s_lshl_b32 s95, s43, 4
s_add_u32 s94, s94, s95
s_add_u32 s94, s94, {WS_GT}
v_add_f32 v{X}, v{X}, v{X+1}
v_add_f32 v{X+2}, v{X+2}, v{X+3}
v_mov_b32 v{t7}, s94''')
    for sh in ('row_shr:1 row_mask:0xf bank_mask:0xf bound_ctrl:0', 'row_shr:2 row_mask:0xf bank_mask:0xf bound_ctrl:0', 'row_shr:4 row_mask:0xf bank_mask:0xf bound_ctrl:0',
               'row_shr:8 row_mask:0xf bank_mask:0xf bound_ctrl:0', 'row_bcast:15 row_mask:0xa bank_mask:0xf', 'row_bcast:31 row_mask:0xc bank_mask:0xf'):
        for r in range(2): A(f'v_add_f32_dpp v{X+2*r}, v{X+2*r}, v{X+2*r} {sh}')
    for r in range(2): rnd(A, X + 2 * r, X + 2 * r)
    for r in range(2): A(f'v_mul_f32 v{X+2*r}, {f2u(-L2E):#x}, v{X+2*r}')
    for r in range(2): A(f'v_exp_f32 v{X+2*r}, v{X+2*r}')
    for r in range(2): A(f'v_add_f32 v{X+2*r}, 1.0, v{X+2*r}')
    for r in range(2): A(f'v_rcp_f32 v{X+2*r}, v{X+2*r}')
    for r in range(2): A(f'v_mov_b32 v{X+2*r+1}, v{TAG}')
    for r in range(2): A(f'v_cvt_pk_bf16_f32 v{X+2*r}, v{X+2*r}, 0')
    A('s_mov_b32 exec_lo, 0\ns_brev_b32 exec_hi, 1')
    V.issue(f"global_store_dwordx4 v{t7}, {vr(X,4)}, {ptr('ws')} sc1", 'g')
    A('s_mov_b32 exec_lo, s70\ns_mov_b32 exec_hi, 0')
    V.wait('st')
    V.issue(f"global_store_dword v{VFL}, v{TAG}, {ptr('ws')}", 'fl')
    A(f's_mov_b64 exec, -1\ns_mov_b32 s94, 0\ns_mov_b64 s[66:67], -1')
    A.stamp('drain', True)
    A.fence()
    A.label('Lpoll')
    A(f'''global_load_dword v{t7}, v{t3}, {ptr('ws')} sc1
s_add_u32 s94, s94, 1
s_waitcnt vmcnt(0)
v_cmp_ne_u32 vcc, v{TAG}, v{t7}
s_and_b64 s[66:67], s[66:67], vcc
s_cbranch_scc0 Lpolled
s_and_b32 s95, s94, {o['gmask']}
s_cbranch_scc1 Lpoll
s_mov_b32 exec_lo, s70
s_mov_b32 exec_hi, 0
global_store_dword v{VFL}, v{TAG}, {ptr('ws')} offset:2048 sc1
s_mov_b64 exec, -1
global_load_dword v{t7}, v{t3}, {ptr('ws')} offset:2048 sc1
s_waitcnt vmcnt(0)
v_cmp_ne_u32 vcc, v{TAG}, v{t7}
s_and_b64 s[66:67], s[66:67], vcc
s_cbranch_scc0 Lpolled
s_cmp_lt_u32 s94, 0x800000
s_cbranch_scc1 Lpoll''')
    A.fence()
    A.label('Lpolled')
    A.stamp('polled', True)
    V.q = []
    src = [t1, t5, t4, t6]
    for cv in range(4):
        V.issue(f'global_load_dwordx4 {vr(SD+8*cv,4)}, v{src[cv]}, s[64:65] {o.get("lflag","sc1")}', f'u{cv}')
        V.issue(f'global_load_dword v{SD+4+8*cv}, v{src[cv]}, s[64:65] offset:16 {o.get("lflag","sc1")}', f'u{cv}')
    def gloads():
        for Pp in range(4):
            V.issue(f"global_load_dwordx4 {vr(GQ+4*Pp,4)}, v{H+8+Pp}, {ptr('ws')} sc1", 'gq')
    for cv in range(4):
        D = SD + 8 * cv; E = 8 + 4 * cv
        V.wait(f'u{cv}')
        A(f'v_cndmask_b32 v{D+4}, v{D+4}, 0, s[92:93]')
        A(f'ds_write_b128 v{t2}, {vr(D,4)} offset:{UXS*cv + UXC}')
        for e in range(4): A(f'v_alignbit_b32 v{E+e}, v{D+e+1}, v{D+e}, 16')
        A(f'ds_write_b128 v{t2}, {vr(E,4)} offset:{UXS*cv}')
    A(f'ds_write_b32 v{VSW}, v{ONE} offset:{F_U}')
    A.stamp('staged')
    A(f'''s_mov_b32 exec_lo, s70
s_mov_b32 exec_hi, 0
global_store_dword v{VFL}, v{TAG}, {ptr('ws')} offset:2048 sc1
s_mov_b64 exec, -1
''')
    A('s_setprio 0\ns_mov_b32 s94, 0')
    A.fence()
    A.label('Lgld')
    gloads()
    A('s_waitcnt vmcnt(0)')
    A(f'v_xor_b32 v20, v{TAG}, v{GQ+1}')
    for i in range(1, 8):
        A(f'v_xor_b32 v21, v{TAG}, v{GQ+2*i+1}\nv_or_b32 v20, v20, v21')
    A(f'''v_cmp_ne_u32 vcc, 0, v20
s_cbranch_vccz Lgok
s_add_u32 s94, s94, 1
s_cmp_lt_u32 s94, 0x200000
s_cbranch_scc1 Lgld''')
    A.fence()
    A.label('Lgok')
    A.stamp('gok')
    for Pp in range(4):
        A(f'v_lshl_or_b32 v{20+Pp}, v{GQ+4*Pp+2}, 16, v{GQ+4*Pp}')
        A(f'ds_write_b32 v{H}, v{20+Pp} offset:{16384 + 1024*Pp}')
    A('s_mov_b32 s60, 0')
    A.fence()
    A.label('Lepi')
    A(f'''ds_read_b128 v[20:23], v{H+3}
s_waitcnt lgkmcnt(0)
v_and_b32 v20, v20, v21
v_and_b32 v22, v22, v23
v_and_b32 v20, v20, v22
v_cmp_ne_u32 vcc, 0, v20
s_cbranch_vccnz Lgo
s_sleep {o['sleep']}
s_branch Lepi''')
    A.win = []
    A.label('Lgo')
    epilogue(A, H, H + 1, H + 2, H + 4, H + 6, 24)
    A(f'''v_add_u32 v{H}, 0x400, v{H}
v_subrev_u32 v{H+1}, 0x400, v{H+1}
v_add_u32 v{H+3}, 16, v{H+3}
s_add_u32 s60, s60, 0x80000
s_cmp_lt_u32 s60, 0x200000''')
    A.fence()
    A('s_cbranch_scc1 Lepi')
    A(f'''s_cmp_lg_u32 s2, 0
s_cbranch_scc1 Lfin
s_barrier
s_cmp_lg_u32 s3, 4
s_cbranch_scc1 Lfin
v_mov_b32 v20, {WS_EP}
s_mov_b64 exec, 1
global_store_dword v20, v{TAG}, {ptr('ws')} sc1''')
    A.label('Lfin')
    A.stamp_flush(0, 3)
    A('s_endpgm')
    A.win = []
    A.label('Lkw')
    V.q = []
    POS = [5, 6]; VPAR = 7; VPW = 8; FSC = 9
    ACC = [148, 152, 156, 160]
    CA = 200
    GI = 20
    VSW = 26; VSR = 27; ONE = 28
    PL = 51
    V.q = ['par'] * 5
    A.stamp('issued')
    c1, c2, c3 = 10, 11, 29
    A(f'''s_and_b32 s44, s3, 1                   ; hw = w&1
v_lshrrev_b32 v{t1}, 1, v0
v_lshlrev_b32 v{t1}, 4, v{t1}
v_and_b32 v{t6}, 1, v0
v_lshl_add_u32 v{t1}, v{t6}, 2, v{t1}
v_add_u32 v{t1}, {L_PAR}, v{t1}
s_mov_b32 s50, {f2u(14.0):#x}
v_lshlrev_b32 v{c1}, 3, v{IDX}
v_cvt_f32_u32 v{POS[0]}, v{c1}         ; pL = 8 j
v_subrev_u32 v{c1}, 8, v{IDX}
v_lshlrev_b32 v{c2}, 9, v{c1}
v_lshlrev_b32 v{c1}, 2, v{c1}
v_add_u32 v{c1}, 0x200, v{c1}
v_cmp_gt_u32 vcc, 10, v{IDX}
v_cndmask_b32 v{c1}, v{c2}, v{c1}, vcc
v_cmp_gt_u32 vcc, 8, v{IDX}
v_cndmask_b32 v{c1}, v{c1}, v{IDX}, vcc
v_cvt_f32_u32 v{POS[1]}, v{c1}         ; pR
s_lshl_b32 s94, s3, 9
s_add_u32 s94, s94, {L_PAR}
v_lshlrev_b32 v{VPAR}, 5, v{KG}
v_add_u32 v{VPAR}, s94, v{VPAR}
v_mov_b32 v33, v{POS[0]}
v_mov_b32 v32, v{POS[0]}
v_mov_b32 v34, v{POS[1]}
v_mov_b32 v35, v{POS[1]}
v_mov_b32 v36, s50
v_mov_b32 v37, s50
s_mov_b32 s51, 0
s_lshl_b32 s94, s3, 2
s_add_u32 s94, s94, {L_FLG}
v_mov_b32 v{VSW}, s94
s_lshl_b32 s94, s42, 3
s_add_u32 s94, s94, {L_FLG}
v_mov_b32 v{VSR}, s94
v_mov_b32 v{ONE}, 1''')
    for a in ACC:
        for i in range(4): A(f'v_mov_b32 v{a+i}, 0')
    A(f'''s_mul_i32 s45, s42, 3072
s_add_u32 s45, s45, {L_KC}
v_lshlrev_b32 v{c3}, 2, v{LANE}
v_add_u32 v{c3}, {704*4}, v{c3}        ; dummy
v_lshlrev_b32 v{c1}, 5, v{IDX}
v_lshl_add_u32 v{c1}, v{KG}, 4, v{c1}
v_lshrrev_b32 v{c2}, 1, v{c1}
v_add_u32 v{c2}, 0x400, v{c2}
v_lshlrev_b32 v{t2}, 3, v{IDX}
v_add_u32 v{t2}, {384*4}, v{t2}
v_lshlrev_b32 v{t3}, 2, v{IDX}
v_add_u32 v{t3}, {512*4}, v{t3}
v_cmp_eq_u32 vcc, 2, v{KG}
v_cmp_eq_u32 s[92:93], 3, v{KG}
v_cndmask_b32 v{CA}, v{c1}, v{t2}, vcc
v_add_u32 v{t4}, 0x200, v{t3}
v_cndmask_b32 v{CA}, v{CA}, v{t4}, s[92:93]
v_cndmask_b32 v{CA+1}, v{c1}, v{t2}, vcc
v_add_u32 v{CA+1}, 4, v{CA+1}
v_cndmask_b32 v{CA+1}, v{CA+1}, v{c3}, s[92:93]
v_add_u32 v{t4}, 8, v{c1}
v_cndmask_b32 v{CA+2}, v{t4}, v{t3}, vcc
v_cndmask_b32 v{CA+2}, v{CA+2}, v{c3}, s[92:93]
v_add_u32 v{t4}, 12, v{c1}
v_add_u32 v{t5}, 0x100, v{t3}
v_cndmask_b32 v{CA+3}, v{t4}, v{t5}, vcc
v_cndmask_b32 v{CA+3}, v{CA+3}, v{c3}, s[92:93]
v_mov_b32 v{t4}, 0x200
v_mov_b32 v{t5}, 0x80
v_cndmask_b32 v{t5}, v{t4}, v{t5}, vcc
v_cndmask_b32 v{t7}, v{t5}, 64, s[92:93]         ; step r0
v_cndmask_b32 v{t5}, v{t5}, 0, s[92:93]          ; step r1
v_cndmask_b32 v{t4}, v{t4}, 64, vcc
v_cndmask_b32 v{t4}, v{t4}, 0, s[92:93]          ; step r2,r3
v_add_u32 v{CA+4}, v{CA}, v{t7}
v_add_u32 v{CA+5}, v{CA+1}, v{t5}
v_add_u32 v{CA+6}, v{CA+2}, v{t4}
v_add_u32 v{CA+7}, v{CA+3}, v{t4}
v_add_u32 v{CA+8}, v{CA+4}, v{t7}
v_add_u32 v{CA+9}, v{CA+5}, v{t5}
v_add_u32 v{CA+10}, v{CA+6}, v{t4}
v_add_u32 v{CA+11}, v{CA+7}, v{t4}
v_add_u32 v{CA+12}, v{CA+8}, v{t7}
v_add_u32 v{CA+13}, v{CA+9}, v{t5}
v_add_u32 v{CA+14}, v{CA+10}, v{t4}
v_add_u32 v{CA+15}, v{CA+11}, v{t4}
v_cmp_gt_u32 vcc, 2, v{KG}
v_cndmask_b32 v{CA+8}, v{CA+8}, v{c2}, vcc
v_cndmask_b32 v{CA+9}, v{CA+9}, v{c3}, vcc
v_add_u32 v{t4}, 4, v{c2}
v_cndmask_b32 v{CA+10}, v{CA+10}, v{t4}, vcc
v_cndmask_b32 v{CA+11}, v{CA+11}, v{c3}, vcc
v_add_u32 v{t4}, 0x100, v{c2}
v_cndmask_b32 v{CA+12}, v{CA+12}, v{t4}, vcc
v_cndmask_b32 v{CA+13}, v{CA+13}, v{c3}, vcc
v_add_u32 v{t4}, 0x104, v{c2}
v_cndmask_b32 v{CA+14}, v{CA+14}, v{t4}, vcc
v_cndmask_b32 v{CA+15}, v{CA+15}, v{c3}, vcc''')
    A('s_cmp_eq_u32 s44, 0\ns_cselect_b64 s[92:93], -1, 0')
    for i in range(8): A(f'v_cndmask_b32 v{CA+i}, v{CA+8+i}, v{CA+i}, s[92:93]\nv_add_u32 v{CA+i}, s45, v{CA+i}')
    A(f'v_and_b32 v{c1}, 0x7f, v0\nv_lshlrev_b32 v{c1}, 1, v{c1}\ns_sub_u32 s94, s45, {133*128*4}')
    for n, m in enumerate((1, 2, 4)):
        for e in range(2):
            g = GI + 2 * n + e
            A(f'''v_add_u32 v{g}, {256*m+e}, v{c1}
v_cvt_f32_u32 v{g}, v{g}
v_cvt_pk_bf16_f32 v{g}, v{g}, 0
v_lshl_add_u32 v{g}, v{g}, 2, s94''')
    V.wait('par')
    A.stamp('par')
    for i in range(5): A(f'v_lshlrev_b32 v{PL+i}, 16, v{PL+i}')
    A(f'v_max_f32 v{t5}, |v{PL+3}|, |v{PL+4}|')
    bfexp(A, PL, PL, t2, t3, 48, 49)
    for sh in (1, 2): A(f'v_max_f32_dpp v{t5}, v{t5}, v{t5} row_shr:{sh} row_mask:0xf bank_mask:0xf')
    bfexp(A, PL + 1, PL + 1, t2, t3, 48, 49)
    for sh in (4, 8): A(f'v_max_f32_dpp v{t5}, v{t5}, v{t5} row_shr:{sh} row_mask:0xf bank_mask:0xf')
    A(f'''v_mul_f32 v{PL+1}, v{PL+1}, v{PL}
v_mul_f32 v{PL+2}, v{PL+2}, v{PL}
v_max_f32_dpp v{t5}, v{t5}, v{t5} row_bcast:15 row_mask:0xa bank_mask:0xf
v_mul_f32 v64, {f2u(-L2E):#x}, v{PL+1}
v_mul_f32 v65, {f2u(INV2PI):#x}, v{PL+2}
v_max_f32_dpp v{t5}, v{t5}, v{t5} row_bcast:31 row_mask:0xc bank_mask:0xf
v_mul_f32 v68, 0x43000000, v65
v_mul_f32 v69, 0x43000000, v64
v_readlane_b32 s94, v{t5}, 63
v_fract_f32 v68, v68
v_exp_f32 v69, v69
v_cos_f32 v70, v68
v_sin_f32 v71, v68
s_lshr_b32 s94, s94, 23
s_max_u32 s94, s94, 13
s_sub_u32 s95, 267, s94
s_lshl_b32 s95, s95, 23
s_sub_i32 s94, s94, 153
v_mul_f32 v66, s95, v{PL+3}
v_mul_f32 v67, s95, v{PL+4}
v_ldexp_f32 v{FSC}, v{PL}, s94
v_mul_f32 v70, v69, v70
v_mul_f32 v71, v69, v71
v_rndne_f32 v74, v65
v_sub_f32 v65, v65, v74
v_mul_f32 v72, v70, v70
v_mul_f32 v73, v70, v71
v_fma_f32 v72, -v71, v71, v72
v_add_f32 v73, v73, v73
ds_write2_b32 v{t1}, v64, v65 offset0:0 offset1:2
v_add_u32 v{t6}, 0x800, v{t1}
ds_write2_b32 v{t6}, v66, v67 offset0:0 offset1:2
v_add_u32 v{t6}, 0x1000, v{t1}
ds_write2_b32 v{t6}, v70, v71 offset0:0 offset1:2
v_add_u32 v{t6}, 0x1800, v{t1}
ds_write2_b32 v{t6}, v72, v73 offset0:0 offset1:2''')
    A('s_waitcnt lgkmcnt(0)')
    A.stamp('kstart', True)
    A.fence()
    PRB = [64, 164]
    XA = [96, 100]; LB = [104, 196]
    T = 108
    def pread(buf):
        for jp in range(2):
            for pl in range(4): A(f'ds_read_b128 {vr(PRB[buf]+16*jp+4*pl,4)}, v{VPAR} offset:{2048*pl + 16*jp + 128*buf}')
    pread(0)
    A.label('Lkgen')
    if o['ssm'] == 'Kmid':
        A('s_cmp_lg_u32 s51, 1\ns_cbranch_scc1 Lnossm')
        ssm_dma(38)
        A.fence()
        A.label('Lnossm')
    for buf in range(2):
        PR = PRB[buf]
        def two(fmt, fmt1=None):
            for jp in range(2):
                t = T + 20 * jp; p_ = PR + 16 * jp
                names = dict(a=p_, b=p_+2, cr=p_+4, ci=p_+6, wr=p_+8, wi=p_+10, zr=p_+12, zi=p_+14, thL=t, thR=t+2, mL=t+4, mR=t+6, cL=t+8, sL=t+10, cR=t+12, sR=t+14, p=t+16, q=t+18, x=t, y=t+2)
                if fmt1 is None:
                    A(fmt.format(**{k: vr(v, 2) for k, v in names.items()}))
                else:
                    for e in range(2):
                        A(fmt1.format(j=2*jp+e, **{k: f'v{v+e}' for k, v in names.items()}))
        one = lambda f: two(None, f)
        def cvt(dst, o1, o2, neg=''):
            for k in range(4): A(f'v_cvt_pk_f16_f32 v{dst+k}, v{T+20*(k>>1)+o1+(k&1)}, {neg}v{T+20*(k>>1)+o2+(k&1)}')
        NEG = ' neg_lo:[1,0,0] neg_hi:[1,0,0]'
        A('s_waitcnt lgkmcnt(0)')
        if buf == 1: A(f'v_add_u32 v{VPAR}, 0x100, v{VPAR}')
        pread(1 - buf)
        two('v_pk_mul_f32 {thR}, {b}, v[34:35]'); two('v_pk_mul_f32 {thL}, {b}, v[32:33]')
        two('v_pk_fma_f32 {mL}, {a}, v[32:33], v[36:37]'); two('v_pk_mul_f32 {mR}, {a}, v[34:35]')
        one('v_fract_f32 {thR}, {thR}')
        one('v_exp_f32 {mL}, {mL}'); one('v_cos_f32 {cL}, {thL}'); one('v_sin_f32 {sL}, {thL}')
        one('v_cos_f32 {cR}, {thR}')
        two('v_pk_mul_f32 {cL}, {mL}, {cL}'); two('v_pk_mul_f32 {sL}, {mL}, {sL}')
        one('v_sin_f32 {sR}, {thR}')
        two('v_pk_mul_f32 {p}, {cL}, {wr}'); two('v_pk_mul_f32 {q}, {cL}, {wi}')
        one('v_exp_f32 {mR}, {mR}')
        two('v_pk_mul_f32 {x}, {cr}, {cR}'); two('v_pk_mul_f32 {y}, {cr}, {sR}')
        two('v_pk_fma_f32 {p}, {sL}, {wi}, {p}' + NEG); two('v_pk_fma_f32 {q}, {sL}, {wr}, {q}')
        two('v_pk_fma_f32 {x}, {ci}, {sR}, {x}' + NEG); two('v_pk_fma_f32 {y}, {ci}, {cR}, {y}')
        cvt(LB[0], 8, 10)
        two('v_pk_mul_f32 {x}, {mR}, {x}'); two('v_pk_mul_f32 {y}, {mR}, {y}')
        cvt(LB[1], 16, 18)
        two('v_pk_mul_f32 {cR}, {x}, {zr}'); two('v_pk_mul_f32 {sR}, {x}, {zi}')
        cvt(XA[0], 0, 2, '-')
        two('v_pk_fma_f32 {cR}, {y}, {zi}, {cR}' + NEG); two('v_pk_fma_f32 {sR}, {y}, {zr}, {sR}')
        for bb in range(2): A(f'v_mfma_f32_16x16x32_f16 {vr(ACC[bb],4)}, {vr(XA[0],4)}, {vr(LB[bb],4)}, {vr(ACC[bb],4)}')
        cvt(XA[1], 12, 14, '-')
        if buf == 1: A('s_add_u32 s51, s51, 1\ns_cmp_lt_u32 s51, 2')
        for bb in range(2): A(f'v_mfma_f32_16x16x32_f16 {vr(ACC[2+bb],4)}, {vr(XA[1],4)}, {vr(LB[bb],4)}, {vr(ACC[2+bb],4)}')
    A('s_cbranch_scc1 Lkgen')
    A.stamp('k1')
    if o['ssm'] == 'Kend': ssm_dma(38)
    A(f'''v_and_b32 v{t3}, 0x7f, v0
v_lshlrev_b32 v{t3}, 2, v{t3}
s_mul_i32 s94, s42, {2*KLS}
s_add_u32 s94, s94, {L_KL + 64}
v_add_u32 v{t4}, s94, v{t3}
v_add_u32 v{t5}, {KLC - 4}, v{t4}
v_lshl_add_u32 v{t3}, v{t3}, 1, s45
s_lshl_b32 s95, s3, 11
s_add_u32 s95, s95, {L_RED}
v_add_u32 v{t1}, s95, v{t0}
s_xor_b32 s95, s3, 1
s_lshl_b32 s95, s95, 11
s_add_u32 s95, s95, {L_RED}
v_add_u32 v{t2}, s95, v{t0}
s_waitcnt lgkmcnt(0)''')
    for i in range(8): A(f'v_cndmask_b32 v{64+i}, v{148+i}, v{156+i}, s[92:93]')
    for i in range(8): A(f'v_mul_f32 v{64+i}, v{FSC}, v{64+i}')
    A(f'ds_write_b128 v{t1}, v[64:67]\nds_write_b128 v{t1}, v[68:71] offset:1024')
    A(f'ds_write_b32 v{VSW}, v{ONE} offset:{F_K}')
    for i in range(8): A(f'v_cndmask_b32 v{72+i}, v{156+i}, v{148+i}, s[92:93]')
    sync(F_K, 2, None, VSR, ONE, 30)
    A(f'ds_read_b128 v[64:67], v{t2}\nds_read_b128 v[68:71], v{t2} offset:1024')
    for i in range(8):
        if i % 4 == 0: A(f's_waitcnt lgkmcnt({1 if i == 0 else 4})')
        A(f'v_fma_f32 v{72+i}, v{72+i}, v{FSC}, v{64+i}')
        A(f'ds_write_b32 v{CA+i}, v{72+i}')
    sync(F_K + 16, 2, VSW, VSR, ONE, 30)
    A.stamp('kred', True)
    RD = 64
    A(f'ds_read_b64 v[64:65], v{t3}')
    srcs = {1: (GI, 0), 2: (GI + 2, 0), 3: (GI + 2, 256), 4: (GI + 4, 0), 5: (GI + 4, 128), 6: (GI + 4, 256), 7: (GI + 4, 384)}
    for m in range(1, 8):
        g, off = srcs[m]
        A(f'ds_read_b32 v{RD+2*m}, v{g} offset:{off}\nds_read_b32 v{RD+2*m+1}, v{g+1} offset:{off}')
    for m in range(8):
        if m in (0, 4): A(f's_waitcnt lgkmcnt({8 if m == 0 else 0})')
        A(f'v_cvt_pk_bf16_f32 v{80+m}, v{RD+2*m}, v{RD+2*m+1}')
        if m == 3: A('s_waitcnt lgkmcnt(0)')
    for m in range(8):
        A(f'ds_write_b32 v{t4}, v{80+m} offset:{512*m}\nds_write_b32 v{t5}, v{80+m} offset:{512*m}')
        if m == 5: A('s_waitcnt lgkmcnt(4)')
    if o['ssm'] != 'T': V.wait('ssmk')
    sync(F_K + 32, 2, VSW, VSR, ONE, 30)
    if o['ssm'] == 'T': sync(F_S, 2, None, VSR, ONE, 30)
    A.stamp('kdone', True)
    A(f'''s_mul_i32 s94, s3, {KLS}
s_add_u32 s94, s94, {L_KL}
v_lshl_add_u32 v4, v{KG}, 2, v{IDX}
v_lshlrev_b32 v4, 2, v4
v_and_b32 v{t4}, 1, v{IDX}
v_mov_b32 v{t5}, {KLC}
v_cmp_eq_u32 vcc, 1, v{t4}
v_cndmask_b32 v{t5}, v{t5}, 4, vcc
v_add3_u32 v4, v4, v{t5}, s94          ; vK
v_mul_u32_u24 v5, {UXC}, v{t4}
v_lshrrev_b32 v{t4}, 1, v{IDX}
v_lshlrev_b32 v{t4}, 6, v{t4}
v_sub_u32 v5, v5, v{t4}
v_lshl_add_u32 v5, v{KG}, 4, v5
s_mul_i32 s94, s3, {UXS}
s_add_u32 s94, s94, {L_UX + 448}
v_add_u32 v5, s94, v5                  ; vU
s_lshl_b32 s94, s3, 12
s_add_u32 s94, s94, {L_Y}
v_lshlrev_b32 v6, 2, v{IDX}
v_lshl_add_u32 v6, v{KG}, 7, v6
v_add_u32 v6, s94, v6                  ; vY
v_mov_b32 v7, v{VSW}
v_mov_b32 v1, 1
v_mov_b32 v2, {L_FLG + F_U}''')
    if o['prio']: A(f"s_setprio {o['prio']}")
    mfma_phase(A, 4, 5, 6, 7, 1, 2, o)
    A.stamp_flush(0, 3)
    A.label('Lend')
    A('s_endpgm')
    HDR = open('gated_mix__ssm_conv_s4d__ssm_conv_h3__prompt.s.ref').read().split('; Override launch')[0]
    s = HDR + f'; @launch grid=(256,1,1) block=(512,1,1) lds={L_END}\n.amdgcn_target "amdgcn-amd-amdhsa--gfx950"\n.text\n' + A.text()
    s += '.section .rodata,"a"\n' + kdesc(KN, 256)
    if o.get('align', 4): s = align(s, nopmin=o.get('align', 4))[0]
    open(path, 'w').write(s)
    return L_END, A.nops

SETS = dict(a=['issued', 'par', 'kstart', 'k1', 'tile', 'bar1'], b=['tst', 'drain', 'polled', 'staged', 'kred', 'kdone'],
            c=['kpre', 'ug0', 'ug1', 'ug2', 'ug3', 'gok'], d=['ug0', 'pass0', 'pass1', 'pass2', 'polled', 'staged'])
if __name__ == '__main__':
    out = sys.argv[1]
    print(gen(out))
    if len(sys.argv) > 2:
        for k, v in SETS.items(): gen(out.replace('.s', f'_{k}.s'), v)
        gen(out.replace('.s', '_np.s'), None, dict(prefetch=False))
        gen(out.replace('.s', '_p16.s'), None, dict(pfwg=16))
        gen(out.replace('.s', '_p64.s'), None, dict(pfwg=64))
        gen(out.replace('.s', '_dbg1.s'), ['tile', 'tst', 'drain', 'polled', 'staged', 'gok'], dict(dbg=True))
        gen(out.replace('.s', '_dbg2.s'), ['par', 'kstart', 'k1', 'kdone', 'kpre', 'ug0'], dict(dbg=True))
        gen(out.replace('.s', '_lb.s'), None, dict(early_bar=False))
        gen(out.replace('.s', '_ke.s'), None, dict(ssm='Kend'))
        gen(out.replace('.s', '_km.s'), None, dict(ssm='Kmid'))
        gen(out.replace('.s', '_g7.s'), None, dict(gmask=7))
        for k in 'ab': gen(out.replace('.s', f'_ke_{k}.s'), SETS[k], dict(ssm='Kend'))
        gen(out.replace('.s', '_al0.s'), None, dict(align=0))
        gen(out.replace('.s', '_al2.s'), None, dict(align=2))
        gen(out.replace('.s', '_al1.s'), None, dict(align=1))
        gen(out.replace('.s', '_cyc.s'), ['ug0', 'ug1', 'ug2', 'ug3', 'pass2', 'pass1'], dict(cyc=True))
        gen(out.replace('.s', '_rt.s'), ['ug0', 'ug1', 'ug2', 'ug3', 'pass2', 'pass1'])
        for st in (6, 12, 18, 24): gen(out.replace('.s', f'_st{st}.s'), None, dict(stag=st))
        gen(out.replace('.s', '_st12_c.s'), SETS['c'], dict(stag=12))
```

```python
import sys, struct
from asmlib import *
from k1 import f2u, L2E, L2E_HI, L2E_LO, INV2PI, load_ptrs, P, ptr, rnd, lo2f, hi2f, bfexp
import k2, k1
k1.HIMASK[0] = 's88'
from align import align
from fused4 import VM, epilogue, mfma_phase
KN = 'gated_mix__ssm_conv_s4d__ssm_conv_h3__prompt_kernel'

WS_UR = 0; WS_KVR = 0x240080; WS_IN = 5 << 20; WS_GT = WS_IN + 1024; WS_EP = WS_IN + (1 << 20)
KLC = 4224; KLS = 2 * KLC
UXC = 4576; UXS = 2 * UXC
L_KL = 0
L_UX = 4 * KLS
L_Y = L_UX + 4 * UXS
L_G = L_Y + 16384
L_RED = L_G + 4096
L_KC = L_RED + 8192
L_TK = L_KC + 6144
L_TV = L_TK + 9 * 1040
L_TU = L_TV + 8 * 1040
L_PAR = L_TU + 8 * 1040
L_PARW = L_PAR + 4096
L_FLG = L_PARW + 4096
L_END = L_FLG + 256
F_U = 64; F_T = 80; F_K = 96; F_S = 144
assert all(x % 16 == 0 for x in (L_UX, L_Y, L_RED, L_KC, L_TK, L_TV, L_TU, L_PAR, L_PARW, L_FLG))

def gen(path, stamps=None, opts=None):
    o = dict(prefetch=True, prio=2, sleep=1, tprio=3, ssm='T', gmask=15)
    o.update(opts or {})
    A = Asm(); A.stamps = bool(stamps); A.stamp_sel = stamps
    if o.get('cyc'): A.stamp_op = 's_memtime'
    A.dbgflush = o.get('dbg', False)
    V = VM(A)
    PIT = o.get('pitch', 4096)
    A.raw(f'.globl {KN}\n.p2align 8\n.type {KN},@function\n{KN}:')
    A('s_cmp_ge_u32 s2, 256\ns_cbranch_scc1 Lend')
    A.stamp_init()
    load_ptrs(A)
    A('s_mov_b32 s88, 0xffff0000')
    LANE, IDX, KG = 1, 2, 3
    t0, t1, t2, t3, t4, t5, t6, t7 = 40, 41, 42, 43, 44, 45, 46, 47
    if o['prefetch']:
        A(f'''s_cmp_ge_u32 s2, {o.get('pfwg', 256)}
s_cbranch_scc1 Lnopf
s_getpc_b64 s[68:69]
v_lshlrev_b32 v49, 4, v0
v_add_u32 v50, 0x2000, v49
v_min_u32 v50, Lend-{KN}-16, v50
s_and_b32 s68, s68, 0xffffff00
global_load_dwordx4 v[56:59], v49, s[68:69]
global_load_dwordx4 v[60:63], v50, s[68:69]
Lnopf:''')
    A(f'''v_lshrrev_b32 v{t0}, 6, v0
v_readfirstlane_b32 s3, v{t0}          ; wave
v_and_b32 v{LANE}, 63, v0
v_and_b32 v{IDX}, 15, v0
v_bfe_u32 v{KG}, v0, 4, 2
v_lshlrev_b32 v{t0}, 4, v{LANE}        ; lane*16
s_and_b32 s4, s2, 7                    ; s
s_lshr_b32 s5, s2, 3                   ; jq
s_lshl_b32 s6, s4, 6
s_lshl_b32 s7, s5, 1
s_add_u32 s6, s6, s7                   ; d0
s_and_b32 s43, s3, 3                   ; w&3
s_cmp_ge_u32 s3, 4
s_cbranch_scc1 Ltw''')
    PL = 51
    A(f'''s_lshl_b32 s70, s6, 8
v_lshlrev_b32 v{t1}, 1, v0
v_add_u32 v{t1}, s70, v{t1}
s_lshr_b32 s42, s3, 1                  ; ch
s_add_u32 s7, s42, s6                  ; d
s_lshl_b32 s71, s7, 1
v_mov_b32 v{t2}, s71
s_mov_b32 s48, {f2u(L2E_HI):#x}
s_mov_b32 s49, {f2u(L2E_LO):#x}
s_waitcnt lgkmcnt(0)''')
    V.issue(f"global_load_ushort v{PL}, v{t2}, {ptr('logdt')}", 'par')
    V.issue(f"global_load_ushort v{PL+1}, v{t1}, {ptr('logA')} {o.get('pnt','')}", 'par')
    V.issue(f"global_load_ushort v{PL+2}, v{t1}, {ptr('Aim')} {o.get('pnt','')}", 'par')
    V.issue(f"global_load_ushort v{PL+3}, v{t1}, {ptr('Cr')} {o.get('pnt','')}", 'par')
    V.issue(f"global_load_ushort v{PL+4}, v{t1}, {ptr('Ci')} {o.get('pnt','')}", 'par')
    if o.get('touch', True):
        A(f'''v_and_b32 v{t2}, 1, v0
v_lshlrev_b32 v{t2}, 21, v{t2}
v_bfe_u32 v{t3}, v0, 1, 2
v_lshl_add_u32 v{t2}, v{t3}, 16, v{t2}
s_lshl_b32 s70, s4, 18
v_add_u32 v{t2}, s70, v{t2}
v_lshlrev_b32 v{t3}, 19, v{t3}
global_load_dword v253, v{t2}, {ptr('ws')}
global_load_dword v254, v{t3}, {ptr('out')}''')
    A('s_barrier\ns_branch Lkw')
    A.win = []
    A.label('Ltw')

    def ssm_dma(t5):
        A(f'''s_lshr_b32 s94, s43, 1
s_add_u32 s95, s94, s6
s_lshl_b32 s95, s95, 12
s_add_u32 s60, s{P['ssmk']}, s95
s_addc_u32 s61, s{P['ssmk']+1}, 0
s_mov_b32 s62, 4096
s_mov_b32 s63, 0x00020000
s_mul_i32 s94, s94, {2*KLS}
s_and_b32 s95, s43, 1
s_mul_i32 s97, s95, {KLC}
s_add_u32 s94, s94, s97
s_add_u32 s94, s94, {L_KL + KLS}
s_lshl_b32 s95, s95, 2
v_lshlrev_b32 v{t5}, 2, v{LANE}
s_sub_u32 s96, s95, 64
v_add_u32 v{t5}, s96, v{t5}
s_add_u32 m0, s94, 64''')
        for i in range(4):
            V.issue(f'buffer_load_dwordx4 v{t0}, s[60:63], s95 offen offset:{1024*i} {o.get("snt","")} lds', 'ssmk')
        A('s_mov_b32 m0, s94\ns_mov_b64 exec, 0xffff')
        V.issue(f'buffer_load_dword v{t5}, s[60:63], 0 offen lds', 'ssmk')
        A('s_mov_b64 exec, -1')
    nsync = [0]
    def sync(off, n, vaddr_w, vaddr_r, vone, tmp):
        k = nsync[0]; nsync[0] += 1
        if vaddr_w is not None: A(f'ds_write_b32 v{vaddr_w}, v{vone} offset:{off}')
        A.fence()
        A.label(f'Lsy{k}')
        if n == 2:
            A(f'ds_read_b64 {vr(tmp,2)}, v{vaddr_r} offset:{off}\ns_waitcnt lgkmcnt(0)\nv_and_b32 v{tmp}, v{tmp}, v{tmp+1}')
        else:
            A(f'ds_read_b128 {vr(tmp,4)}, v{vaddr_r} offset:{off}\ns_waitcnt lgkmcnt(0)\nv_and_b32 v{tmp}, v{tmp}, v{tmp+1}\nv_and_b32 v{tmp+2}, v{tmp+2}, v{tmp+3}\nv_and_b32 v{tmp}, v{tmp}, v{tmp+2}')
        A(f'v_cmp_ne_u32 vcc, 0, v{tmp}\ns_cbranch_vccz Lsy{k}')
    V.q = []
    TAG = 4
    SK = 8; GU = 16; GW = 24
    VST = 36; VTA = 37; VTB = 38; VFL = 39
    VSW = 28; VSR = 29; ONE = 30
    if o['tprio']: A(f"s_setprio {o['tprio']}")
    A(f'''v_lshrrev_b32 v{t4}, 3, v{LANE}
v_lshlrev_b32 v{t4}, 10, v{t4}
v_and_b32 v{t5}, 7, v0
v_lshl_add_u32 v{t4}, v{t5}, 4, v{t4}
s_lshl_b32 s70, s5, 16
s_lshl_b32 s71, s4, 7
s_add_u32 s70, s70, s71
s_sub_u32 s71, s70, 0x2000
v_add_u32 v{t5}, s71, v{t4}
s_lshl_b32 s71, s43, 14
s_add_u32 s70, s70, s71
v_add_u32 v{t4}, s70, v{t4}
v_add_u32 v{t1}, 0x2000, v{t4}
s_mul_i32 s70, s43, 2080
s_lshl_b32 s71, s43, 4
s_lshl_b64 s[92:93], 0xffff, s71
v_mov_b32 v{t3}, {WS_EP}
s_lshl_b32 s94, s4, 9
s_lshl_b32 s95, s43, 7
s_add_u32 s94, s94, s95
v_lshlrev_b32 v{t6}, 4, v{KG}
v_add_u32 v{t6}, s94, v{t6}
s_lshl_b32 s94, s2, 13
s_lshl_b32 s95, s43, 11
s_add_u32 s94, s94, s95
v_add_u32 v{t7}, s94, v{t0}
v_mov_b32 v108, 0
v_mov_b32 v109, 0
v_mov_b32 v110, 0
v_mov_b32 v111, 0
v_add_u32 v{t2}, {L_FLG}, v{t0}
s_mov_b64 exec, 0xffff
ds_write_b128 v{t2}, v[108:111]
s_lshr_b32 s94, s43, 1
s_mul_i32 s94, s94, {2*KLS}
s_and_b32 s95, s43, 1
s_mul_i32 s95, s95, {KLC}
s_add_u32 s94, s94, s95
v_add_u32 v{t2}, s94, v{t0}
s_mov_b64 exec, 15
ds_write_b128 v{t2}, v[108:111] offset:{L_KL}
s_mov_b64 exec, -1
s_waitcnt lgkmcnt(0)
{'s_barrier' if o.get('early_bar', True) else ''}
s_mov_b32 s44, s{P['k']}
s_mov_b32 s45, s{P['k']+1}
s_mov_b32 s46, 0x200000
s_mov_b32 s47, 0x00020000''')
    V.issue(f"global_load_dwordx4 {vr(SK,4)}, v{t6}, {ptr('shk')}", 'sk')
    V.issue(f"global_load_dwordx4 {vr(SK+4,4)}, v{t6}, {ptr('shk')} offset:64", 'sk')
    V.issue(f"global_load_dword v{TAG}, v{t3}, {ptr('ws')}", 'sk')
    if o.get('stag'):
        A('s_lshr_b32 s94, s5, 3')
        A.label('Lstag')
        A(f's_cmp_eq_u32 s94, 0\ns_cbranch_scc1 Lstagd\ns_sleep {o["stag"]}\ns_sub_u32 s94, s94, 1\ns_branch Lstag')
        A.label('Lstagd')
    for g, va in ((0, t4), (1, t1)):
        A(f's_add_u32 m0, s70, {L_TK + 1040 + 1040*g}')
        V.issue(f"global_load_lds_dwordx4 v{va}, {ptr('k')} {o.get('tnt','') if 'k' in o.get('tntw','kvu') else ''}", 'tile')
        A(f's_add_u32 m0, s70, {L_TV + 1040*g}')
        V.issue(f"global_load_lds_dwordx4 v{va}, {ptr('v')} {o.get('tnt','') if 'v' in o.get('tntw','kvu') else ''}", 'tile')
        A(f's_add_u32 m0, s70, {L_TU + 1040*g}')
        V.issue(f"global_load_lds_dwordx4 v{va}, {ptr('u')} {o.get('tnt','') if 'u' in o.get('tntw','kvu') else ''}", 'tile')
    A(f's_mov_b32 m0, {L_TK}\ns_mov_b64 exec, s[92:93]')
    V.issue(f'buffer_load_dwordx4 v{t5}, s[44:47], 0 offen lds', 'tile')
    A('s_mov_b64 exec, -1')
    if not o.get('early_bar', True): A('s_barrier')
    def gate_loads():
        V.issue(f"global_load_dwordx4 {vr(GU,4)}, v48, {ptr('u')} {o.get('gnt','')}", 'gate')
        V.issue(f"global_load_dwordx4 {vr(GU+4,4)}, v48, {ptr('u')} offset:1024 {o.get('gnt','')}", 'gate')
        V.issue(f"global_load_dwordx4 {vr(GW,4)}, v{t0}, {ptr('gw')}", 'gate')
    A(f'v_mov_b32 v48, v{t7}')
    if not o.get('late', False): gate_loads()
    A(f'''s_lshl_b32 s94, s2, 12
s_lshl_b32 s95, s43, 7
s_add_u32 s94, s94, s95
s_add_u32 s94, s94, {WS_IN}
v_and_b32 v7, 3, v0
v_lshlrev_b32 v7, 10, v7
v_add_u32 v7, s94, v7''')
    V.issue(f"global_load_dword v7, v7, {ptr('ws')} sc1", 'warm')
    if o['ssm'] == 'T' and not o.get('late', False): ssm_dma(t5)
    A.stamp('issued')
    c1, c2 = 5, 6
    H = 120; GQ = 96; SD = 64
    A(f'''s_mov_b32 s52, 0x05040100
s_mov_b32 s53, 0x07060302
v_and_b32 v31, 7, v{IDX}
v_sub_u32 v{c1}, 7, v31                ; grp
v_mul_u32_u24 v{VTA}, 1040, v{c1}
v_lshrrev_b32 v{c2}, 3, v{IDX}         ; par
v_lshl_add_u32 v{VTA}, v{c2}, 9, v{VTA}
v_lshl_add_u32 v{VTA}, v{KG}, 2, v{VTA}
s_lshl_b32 s94, s43, 5
s_add_u32 s94, s94, {L_TK}
v_add_u32 v{VTA}, s94, v{VTA}
v_lshl_add_u32 v{VTB}, v{c2}, 4, v{VTA}
v_lshl_add_u32 v{VST}, v{KG}, 1, v{c2}
v_mul_u32_u24 v{VST}, {PIT}, v{VST}
v_lshlrev_b32 v{c1}, 4, v{c1}
v_sub_u32 v{VST}, v{VST}, v{c1}
s_lshl_b32 s94, s4, 6
s_lshl_b32 s95, s43, 4
s_add_u32 s94, s94, s95
s_mul_i32 s94, s94, {PIT}
s_lshl_b32 s95, s5, 7
s_sub_u32 s94, s94, s95
s_add_u32 s94, s94, {3968 + 112}
v_add_u32 v{VST}, s94, v{VST}
v_cmp_eq_u32 s[54:55], 1, v{c2}
s_lshl_b32 s94, s43, 3
v_and_b32 v{c1}, 7, v0
v_add_u32 v{VFL}, s94, v{c1}
v_lshlrev_b32 v{VFL}, 15, v{VFL}
s_lshl_b32 s94, s4, 12
s_lshr_b32 s95, s5, 3
s_lshl_b32 s95, s95, 7
s_add_u32 s94, s94, s95
s_and_b32 s95, s5, 7
s_lshl_b32 s96, s95, 2
s_add_u32 s94, s94, s96
s_add_u32 s94, s94, {WS_IN}
v_bfe_u32 v{c1}, v0, 3, 1
v_mul_u32_u24 v{c1}, 132, v{c1}
v_add3_u32 v{VFL}, v{VFL}, v{c1}, s94
s_cmp_eq_u32 s95, 7
s_movk_i32 s70, 0xff
s_cselect_b32 s70, 0xffff, s70
s_cmp_eq_u32 s5, 31
s_cselect_b32 s70, 0xff, s70
s_lshl_b32 s94, s43, 2
s_add_u32 s94, s94, {L_FLG}
v_mov_b32 v{VSW}, s94
v_mov_b32 v{VSR}, {L_FLG}
v_mov_b32 v{ONE}, 1
s_mul_i32 s94, s43, {UXS}
s_add_u32 s94, s94, {L_UX + 4096}
v_add_u32 v{c1}, s94, v{t0}
s_mov_b32 exec_lo, 0x0fffffff
s_mov_b32 exec_hi, 0
ds_write_b128 v{c1}, v[108:111]
ds_write_b128 v{c1}, v[108:111] offset:{UXC}
s_mov_b64 exec, -1
v_subrev_u32 v5, 0x100, v0             ; ht
v_lshrrev_b32 v{H+8}, 2, v5
v_lshlrev_b32 v{H+8}, 12, v{H+8}
v_and_b32 v6, 3, v5
v_lshl_add_u32 v{H+8}, v6, 4, v{H+8}
v_add_u32 v{H+8}, {WS_GT}, v{H+8}
v_add_u32 v{H+9}, 0x40000, v{H+8}
v_add_u32 v{H+10}, 0x80000, v{H+8}
v_add_u32 v{H+11}, 0xc0000, v{H+8}
s_lshl_b32 s95, s6, 1
s_load_dword s98, {ptr('Dskip')}, s95
s_load_dword s99, {ptr('ssmD')}, s95
s_mov_b32 s56, s{P['out']}
s_mov_b32 s57, s{P['out']+1}
s_mov_b32 s58, 0x200000
s_mov_b32 s59, 0x00020000
v_lshlrev_b32 v6, 2, v5
v_add_u32 v{H}, {L_Y}, v6              ; vP
v_sub_u32 v{H+1}, {L_UX + UXC + 4092}, v6 ; vN
v_lshlrev_b32 v{H+2}, 11, v5
v_add_u32 v{H+2}, s95, v{H+2}          ; vO
v_mov_b32 v{H+3}, {L_FLG}
s_cmp_eq_u32 s43, 0
s_cselect_b32 s94, 7, 8
v_min_u32 v{t3}, s94, v{LANE}
v_lshlrev_b32 v{t3}, 2, v{t3}
s_lshl_b32 s94, s2, 12
s_lshl_b32 s95, s43, 7
s_add_u32 s94, s94, s95
s_add_u32 s94, s94, {WS_IN}
v_add_u32 v{t3}, s94, v{t3}
s_mul_i32 s94, s6, {PIT}
s_add_u32 s64, s{P['ws']}, s94
s_addc_u32 s65, s{P['ws']+1}, 0
s_lshl_b32 s94, s43, 10
s_sub_u32 s94, 3072, s94
v_add_u32 v{t1}, s94, v{t0}
v_add_u32 v{t2}, {L_UX}, v{t1}
v_add_u32 v{t4}, {PIT}, v{t1}
v_add_u32 v{t5}, {WS_KVR}, v{t1}
v_add_u32 v{t6}, {WS_KVR + PIT}, v{t1}
s_movk_i32 s94, 0xff0
v_cmp_eq_u32 s[92:93], s94, v{t1}
s_waitcnt lgkmcnt(0)
s_lshl_b32 s100, s98, 16
s_and_b32 s101, s98, 0xffff0000
v_mov_b32 v{H+4}, s100
v_mov_b32 v{H+5}, s101
s_lshl_b32 s100, s99, 16
s_and_b32 s101, s99, 0xffff0000
v_mov_b32 v{H+6}, s100
v_mov_b32 v{H+7}, s101''')
    WS2 = [188, 196]
    V.wait('sk')
    for i in range(2):
        for t in range(4):
            for ee in range(2):
                (hi2f if t & 1 else lo2f)(A, WS2[i] + 2 * t + ee, SK + 4 * i + 2 * ee + (t >> 1))
    A(f'v_add_u32 v{TAG}, 1, v{TAG}')
    V.wait('tile')
    A.stamp('tile')
    if o.get('late', False):
        A(f'ds_write_b32 v{VSW}, v{ONE} offset:{F_T}')
        gate_loads()
        if o['ssm'] == 'T': ssm_dma(35)
    sync(F_T, 4, VSW, VSR, ONE, 32)
    A.stamp('bar1', True)
    dpp = 'row_ror:8 row_mask:0xf bank_mask:0xf'
    KD = [140, 156]
    def tread(i):
        k = KD[i]
        for r in range(3): A(f'ds_read_b32 v{k+r}, v{VTB} offset:{512 + 128*(r+1) + 16*i}')
        for r in range(4): A(f'ds_read_b32 v{k+3+r}, v{VTA} offset:{1040 + 128*r + 16*i}')
        for r in range(4): A(f'ds_read_b32 v{k+7+r}, v{VTA} offset:{L_TV - L_TK + 128*r + 16*i}')
        for r in range(4): A(f'ds_read_b32 v{k+11+r}, v{VTA} offset:{L_TU - L_TK + 128*r + 16*i}')
    W = 64; KP = 72; VP = 86; AC = 94; O = 102; UNS = [172, 180]
    tread(0)
    for i in range(2):
        k = KD[i]; VD = k + 7; UD = k + 11; UN = UNS[i]
        W = WS2[i]
        A('s_waitcnt lgkmcnt(0)')
        if i == 0: tread(1)
        for r in range(7): lo2f(A, KP + 2 * r, k + r); hi2f(A, KP + 2 * r + 1, k + r)
        for a in range(4): A(f'v_pk_mul_f32 {vr(AC+2*a,2)}, {vr(KP+2*a,2)}, {vr(W+6,2)}')
        for r in range(4): lo2f(A, VP + 2 * r, VD + r); hi2f(A, VP + 2 * r + 1, VD + r)
        for tp in range(1, 4):
            for a in range(4): A(f'v_pk_fma_f32 {vr(AC+2*a,2)}, {vr(KP+2*(a+tp),2)}, {vr(W+2*(3-tp),2)}, {vr(AC+2*a,2)}')
        for ch in range(2):
            A(f'v_perm_b32 v{O+4+2*ch}, v{UD+2}, v{UD+3}, s{52+ch}')
            A(f'v_perm_b32 v{O+4+2*ch+1}, v{UD}, v{UD+1}, s{52+ch}')
        for a in range(4): A(f'v_pk_mul_f32 {vr(AC+2*a,2)}, {vr(AC+2*a,2)}, {vr(VP+2*a,2)}')
        A('s_mov_b64 vcc, s[54:55]')
        for ch in range(2):
            A(f'v_cvt_pk_bf16_f32 v{O+2*ch}, v{AC+6+ch}, v{AC+4+ch}')
            A(f'v_cvt_pk_bf16_f32 v{O+2*ch+1}, v{AC+2+ch}, v{AC+ch}')
        for tn in (1, 0):
            for e in range(2):
                A(f'v_cndmask_b32_dpp v{UN+4*tn+e}, v{O+4*tn+e}, v{O+4*tn+2+e}, vcc {dpp}')
        A('s_not_b64 vcc, vcc')
        for tn in (1, 0):
            for e in range(2):
                A(f'v_cndmask_b32_dpp v{UN+4*tn+2+e}, v{O+4*tn+2+e}, v{O+4*tn+e}, vcc {dpp}')
        A(f'v_add_u32 v{t7}, {WS_KVR}, v{VST}')
        V.issue(f"global_store_dwordx4 v{VST}, {vr(UN+4,4)}, {ptr('ws')} {o.get('sflag','sc1')}", 'st')
        V.issue(f"global_store_dwordx4 v{t7}, {vr(UN,4)}, {ptr('ws')} {o.get('sflag','sc1')}", 'st')
        if i == 0: A(f'v_add_u32 v{VST}, {8*PIT}, v{VST}')
    A.stamp('tst')
    X = 64
    if o['ssm'] == 'T':
        V.wait('ssmk')
        A(f'ds_write_b32 v{VSW}, v{ONE} offset:{F_S}')
    else: V.wait('gate')
    for r in range(2):
        A(f'v_dot2_f32_bf16 v{X+2*r}, v{GU+4*r}, v{GW}, 0\nv_dot2_f32_bf16 v{X+2*r+1}, v{GU+4*r+1}, v{GW+1}, 0')
    for r in range(2):
        A(f'v_dot2_f32_bf16 v{X+2*r}, v{GU+4*r+2}, v{GW+2}, v{X+2*r}\nv_dot2_f32_bf16 v{X+2*r+1}, v{GU+4*r+3}, v{GW+3}, v{X+2*r+1}')
    A(f'''s_lshl_b32 s94, s2, 12
s_lshl_b32 s95, s43, 4
s_add_u32 s94, s94, s95
s_add_u32 s94, s94, {WS_GT}
v_add_f32 v{X}, v{X}, v{X+1}
v_add_f32 v{X+2}, v{X+2}, v{X+3}
v_mov_b32 v{t7}, s94''')
    for sh in ('row_shr:1 row_mask:0xf bank_mask:0xf bound_ctrl:0', 'row_shr:2 row_mask:0xf bank_mask:0xf bound_ctrl:0', 'row_shr:4 row_mask:0xf bank_mask:0xf bound_ctrl:0',
               'row_shr:8 row_mask:0xf bank_mask:0xf bound_ctrl:0', 'row_bcast:15 row_mask:0xa bank_mask:0xf', 'row_bcast:31 row_mask:0xc bank_mask:0xf'):
        for r in range(2): A(f'v_add_f32_dpp v{X+2*r}, v{X+2*r}, v{X+2*r} {sh}')
    for r in range(2): rnd(A, X + 2 * r, X + 2 * r)
    for r in range(2): A(f'v_mul_f32 v{X+2*r}, {f2u(-L2E):#x}, v{X+2*r}')
    for r in range(2): A(f'v_exp_f32 v{X+2*r}, v{X+2*r}')
    for r in range(2): A(f'v_add_f32 v{X+2*r}, 1.0, v{X+2*r}')
    for r in range(2): A(f'v_rcp_f32 v{X+2*r}, v{X+2*r}')
    for r in range(2): A(f'v_mov_b32 v{X+2*r+1}, v{TAG}')
    for r in range(2): A(f'v_cvt_pk_bf16_f32 v{X+2*r}, v{X+2*r}, 0')
    A('s_mov_b32 exec_lo, 0\ns_brev_b32 exec_hi, 1')
    V.issue(f"global_store_dwordx4 v{t7}, {vr(X,4)}, {ptr('ws')} sc1", 'g')
    A('s_mov_b32 exec_lo, s70\ns_mov_b32 exec_hi, 0')
    V.wait('st')
    V.issue(f"global_store_dword v{VFL}, v{TAG}, {ptr('ws')}", 'fl')
    A(f's_mov_b64 exec, -1\ns_mov_b32 s94, 0\ns_mov_b64 s[66:67], -1')
    A.stamp('drain', True)
    A.fence()
    A.label('Lpoll')
    A(f'''global_load_dword v{t7}, v{t3}, {ptr('ws')} sc1
s_add_u32 s94, s94, 1
s_waitcnt vmcnt(0)
v_cmp_ne_u32 vcc, v{TAG}, v{t7}
s_and_b64 s[66:67], s[66:67], vcc
s_cbranch_scc0 Lpolled
s_and_b32 s95, s94, {o['gmask']}
s_cbranch_scc1 Lpoll
s_mov_b32 exec_lo, s70
s_mov_b32 exec_hi, 0
global_store_dword v{VFL}, v{TAG}, {ptr('ws')} offset:2048 sc1
s_mov_b64 exec, -1
global_load_dword v{t7}, v{t3}, {ptr('ws')} offset:2048 sc1
s_waitcnt vmcnt(0)
v_cmp_ne_u32 vcc, v{TAG}, v{t7}
s_and_b64 s[66:67], s[66:67], vcc
s_cbranch_scc0 Lpolled
s_cmp_lt_u32 s94, 0x800000
s_cbranch_scc1 Lpoll''')
    A.fence()
    A.label('Lpolled')
    A.stamp('polled', True)
    V.q = []
    src = [t1, t5, t4, t6]
    for cv in range(4):
        V.issue(f'global_load_dwordx4 {vr(SD+8*cv,4)}, v{src[cv]}, s[64:65] {o.get("lflag","sc1")}', f'u{cv}')
        V.issue(f'global_load_dword v{SD+4+8*cv}, v{src[cv]}, s[64:65] offset:16 {o.get("lflag","sc1")}', f'u{cv}')
    def gloads():
        for Pp in range(4):
            V.issue(f"global_load_dwordx4 {vr(GQ+4*Pp,4)}, v{H+8+Pp}, {ptr('ws')} sc1", 'gq')
    for cv in range(4):
        D = SD + 8 * cv; E = 8 + 4 * cv
        V.wait(f'u{cv}')
        A(f'v_cndmask_b32 v{D+4}, v{D+4}, 0, s[92:93]')
        A(f'ds_write_b128 v{t2}, {vr(D,4)} offset:{UXS*cv + UXC}')
        for e in range(4): A(f'v_alignbit_b32 v{E+e}, v{D+e+1}, v{D+e}, 16')
        A(f'ds_write_b128 v{t2}, {vr(E,4)} offset:{UXS*cv}')
    A(f'ds_write_b32 v{VSW}, v{ONE} offset:{F_U}')
    A.stamp('staged')
    A('s_setprio 0\ns_mov_b32 s94, 0')
    if o.get('gwait', True):
        A.fence()
        A.label('Lallst')
        A(f'''ds_read_b128 v[32:35], v{VSR} offset:{F_U}
s_add_u32 s94, s94, 1
s_waitcnt lgkmcnt(0)
v_and_b32 v32, v32, v33
v_and_b32 v34, v34, v35
v_and_b32 v32, v32, v34
v_cmp_ne_u32 vcc, 0, v32
s_cbranch_vccnz Lallok
s_cmp_lt_u32 s94, 24
s_cbranch_scc1 Lallst''')
        A.fence()
        A.label('Lallok')
    A(f'''s_mov_b32 exec_lo, s70
s_mov_b32 exec_hi, 0
global_store_dword v{VFL}, v{TAG}, {ptr('ws')} offset:2048 sc1
s_mov_b64 exec, -1
s_mov_b32 s94, 0''')
    A.fence()
    A.label('Lgld')
    gloads()
    A('s_waitcnt vmcnt(0)')
    A(f'v_xor_b32 v20, v{TAG}, v{GQ+1}')
    for i in range(1, 8):
        A(f'v_xor_b32 v21, v{TAG}, v{GQ+2*i+1}\nv_or_b32 v20, v20, v21')
    A(f'''v_cmp_ne_u32 vcc, 0, v20
s_cbranch_vccz Lgok
s_add_u32 s94, s94, 1
s_cmp_lt_u32 s94, 0x200000
s_cbranch_scc1 Lgld''')
    A.fence()
    A.label('Lgok')
    A.stamp('gok')
    for Pp in range(4):
        A(f'v_lshl_or_b32 v{20+Pp}, v{GQ+4*Pp+2}, 16, v{GQ+4*Pp}')
        A(f'ds_write_b32 v{H}, v{20+Pp} offset:{16384 + 1024*Pp}')
    A('s_mov_b32 s60, 0')
    A.fence()
    A.label('Lepi')
    A(f'''ds_read_b128 v[20:23], v{H+3}
s_waitcnt lgkmcnt(0)
v_and_b32 v20, v20, v21
v_and_b32 v22, v22, v23
v_and_b32 v20, v20, v22
v_cmp_ne_u32 vcc, 0, v20
s_cbranch_vccnz Lgo
s_sleep {o['sleep']}
s_branch Lepi''')
    A.win = []
    A.label('Lgo')
    epilogue(A, H, H + 1, H + 2, H + 4, H + 6, 24)
    A(f'''v_add_u32 v{H}, 0x400, v{H}
v_subrev_u32 v{H+1}, 0x400, v{H+1}
v_add_u32 v{H+3}, 16, v{H+3}
s_add_u32 s60, s60, 0x80000
s_cmp_lt_u32 s60, 0x200000''')
    A.fence()
    A('s_cbranch_scc1 Lepi')
    A(f'''s_cmp_lg_u32 s2, 0
s_cbranch_scc1 Lfin
s_barrier
s_cmp_lg_u32 s3, 4
s_cbranch_scc1 Lfin
v_mov_b32 v20, {WS_EP}
s_mov_b64 exec, 1
global_store_dword v20, v{TAG}, {ptr('ws')} sc1''')
    A.label('Lfin')
    A.stamp_flush(0, 3)
    A('s_endpgm')
    A.win = []
    A.label('Lkw')
    V.q = []
    POS = [5, 6]; VPAR = 7; VPW = 8; FSC = 9
    ACC = [148, 152, 156, 160]
    CA = 200
    GI = 20
    VSW = 26; VSR = 27; ONE = 28
    PL = 51
    V.q = ['par'] * 5 + (['tch'] * 2 if o.get('touch', True) else [])
    A.stamp('issued')
    c1, c2, c3 = 10, 11, 29
    A(f'''s_and_b32 s44, s3, 1                   ; hw = w&1
v_lshrrev_b32 v{t1}, 1, v0
v_lshlrev_b32 v{t1}, 4, v{t1}
v_and_b32 v{t6}, 1, v0
v_lshl_add_u32 v{t1}, v{t6}, 2, v{t1}
v_add_u32 v{t1}, {L_PAR}, v{t1}
s_mov_b32 s50, {f2u(14.0):#x}
v_lshlrev_b32 v{c1}, 3, v{IDX}
v_cvt_f32_u32 v{POS[0]}, v{c1}         ; pL = 8 j
v_subrev_u32 v{c1}, 8, v{IDX}
v_lshlrev_b32 v{c2}, 9, v{c1}
v_lshlrev_b32 v{c1}, 2, v{c1}
v_add_u32 v{c1}, 0x200, v{c1}
v_cmp_gt_u32 vcc, 10, v{IDX}
v_cndmask_b32 v{c1}, v{c2}, v{c1}, vcc
v_cmp_gt_u32 vcc, 8, v{IDX}
v_cndmask_b32 v{c1}, v{c1}, v{IDX}, vcc
v_cvt_f32_u32 v{POS[1]}, v{c1}         ; pR
s_lshl_b32 s94, s3, 9
s_add_u32 s94, s94, {L_PAR}
v_lshlrev_b32 v{VPAR}, 5, v{KG}
v_add_u32 v{VPAR}, s94, v{VPAR}
v_mov_b32 v33, v{POS[0]}
v_mov_b32 v32, v{POS[0]}
v_mov_b32 v34, v{POS[1]}
v_mov_b32 v35, v{POS[1]}
v_mov_b32 v36, s50
v_mov_b32 v37, s50
s_mov_b32 s51, 0
s_lshl_b32 s94, s3, 2
s_add_u32 s94, s94, {L_FLG}
v_mov_b32 v{VSW}, s94
s_lshl_b32 s94, s42, 3
s_add_u32 s94, s94, {L_FLG}
v_mov_b32 v{VSR}, s94
v_mov_b32 v{ONE}, 1''')
    for a in ACC:
        for i in range(4): A(f'v_mov_b32 v{a+i}, 0')
    A(f'''s_mul_i32 s45, s42, 3072
s_add_u32 s45, s45, {L_KC}
v_lshlrev_b32 v{c3}, 2, v{LANE}
v_add_u32 v{c3}, {704*4}, v{c3}        ; dummy
v_lshlrev_b32 v{c1}, 5, v{IDX}
v_lshl_add_u32 v{c1}, v{KG}, 4, v{c1}
v_lshrrev_b32 v{c2}, 1, v{c1}
v_add_u32 v{c2}, 0x400, v{c2}
v_lshlrev_b32 v{t2}, 3, v{IDX}
v_add_u32 v{t2}, {384*4}, v{t2}
v_lshlrev_b32 v{t3}, 2, v{IDX}
v_add_u32 v{t3}, {512*4}, v{t3}
v_cmp_eq_u32 vcc, 2, v{KG}
v_cmp_eq_u32 s[92:93], 3, v{KG}
v_cndmask_b32 v{CA}, v{c1}, v{t2}, vcc
v_add_u32 v{t4}, 0x200, v{t3}
v_cndmask_b32 v{CA}, v{CA}, v{t4}, s[92:93]
v_cndmask_b32 v{CA+1}, v{c1}, v{t2}, vcc
v_add_u32 v{CA+1}, 4, v{CA+1}
v_cndmask_b32 v{CA+1}, v{CA+1}, v{c3}, s[92:93]
v_add_u32 v{t4}, 8, v{c1}
v_cndmask_b32 v{CA+2}, v{t4}, v{t3}, vcc
v_cndmask_b32 v{CA+2}, v{CA+2}, v{c3}, s[92:93]
v_add_u32 v{t4}, 12, v{c1}
v_add_u32 v{t5}, 0x100, v{t3}
v_cndmask_b32 v{CA+3}, v{t4}, v{t5}, vcc
v_cndmask_b32 v{CA+3}, v{CA+3}, v{c3}, s[92:93]
v_mov_b32 v{t4}, 0x200
v_mov_b32 v{t5}, 0x80
v_cndmask_b32 v{t5}, v{t4}, v{t5}, vcc
v_cndmask_b32 v{t7}, v{t5}, 64, s[92:93]         ; step r0
v_cndmask_b32 v{t5}, v{t5}, 0, s[92:93]          ; step r1
v_cndmask_b32 v{t4}, v{t4}, 64, vcc
v_cndmask_b32 v{t4}, v{t4}, 0, s[92:93]          ; step r2,r3
v_add_u32 v{CA+4}, v{CA}, v{t7}
v_add_u32 v{CA+5}, v{CA+1}, v{t5}
v_add_u32 v{CA+6}, v{CA+2}, v{t4}
v_add_u32 v{CA+7}, v{CA+3}, v{t4}
v_add_u32 v{CA+8}, v{CA+4}, v{t7}
v_add_u32 v{CA+9}, v{CA+5}, v{t5}
v_add_u32 v{CA+10}, v{CA+6}, v{t4}
v_add_u32 v{CA+11}, v{CA+7}, v{t4}
v_add_u32 v{CA+12}, v{CA+8}, v{t7}
v_add_u32 v{CA+13}, v{CA+9}, v{t5}
v_add_u32 v{CA+14}, v{CA+10}, v{t4}
v_add_u32 v{CA+15}, v{CA+11}, v{t4}
v_cmp_gt_u32 vcc, 2, v{KG}
v_cndmask_b32 v{CA+8}, v{CA+8}, v{c2}, vcc
v_cndmask_b32 v{CA+9}, v{CA+9}, v{c3}, vcc
v_add_u32 v{t4}, 4, v{c2}
v_cndmask_b32 v{CA+10}, v{CA+10}, v{t4}, vcc
v_cndmask_b32 v{CA+11}, v{CA+11}, v{c3}, vcc
v_add_u32 v{t4}, 0x100, v{c2}
v_cndmask_b32 v{CA+12}, v{CA+12}, v{t4}, vcc
v_cndmask_b32 v{CA+13}, v{CA+13}, v{c3}, vcc
v_add_u32 v{t4}, 0x104, v{c2}
v_cndmask_b32 v{CA+14}, v{CA+14}, v{t4}, vcc
v_cndmask_b32 v{CA+15}, v{CA+15}, v{c3}, vcc''')
    A('s_cmp_eq_u32 s44, 0\ns_cselect_b64 s[92:93], -1, 0')
    for i in range(8): A(f'v_cndmask_b32 v{CA+i}, v{CA+8+i}, v{CA+i}, s[92:93]\nv_add_u32 v{CA+i}, s45, v{CA+i}')
    A(f'v_and_b32 v{c1}, 0x7f, v0\nv_lshlrev_b32 v{c1}, 1, v{c1}\ns_sub_u32 s94, s45, {133*128*4}')
    for n, m in enumerate((1, 2, 4)):
        for e in range(2):
            g = GI + 2 * n + e
            A(f'''v_add_u32 v{g}, {256*m+e}, v{c1}
v_cvt_f32_u32 v{g}, v{g}
v_cvt_pk_bf16_f32 v{g}, v{g}, 0
v_lshl_add_u32 v{g}, v{g}, 2, s94''')
    V.wait('par')
    A.stamp('par')
    for i in range(5): A(f'v_lshlrev_b32 v{PL+i}, 16, v{PL+i}')
    A(f'v_max_f32 v{t5}, |v{PL+3}|, |v{PL+4}|')
    bfexp(A, PL, PL, t2, t3, 48, 49)
    for sh in (1, 2): A(f'v_max_f32_dpp v{t5}, v{t5}, v{t5} row_shr:{sh} row_mask:0xf bank_mask:0xf')
    bfexp(A, PL + 1, PL + 1, t2, t3, 48, 49)
    for sh in (4, 8): A(f'v_max_f32_dpp v{t5}, v{t5}, v{t5} row_shr:{sh} row_mask:0xf bank_mask:0xf')
    A(f'''v_mul_f32 v{PL+1}, v{PL+1}, v{PL}
v_mul_f32 v{PL+2}, v{PL+2}, v{PL}
v_max_f32_dpp v{t5}, v{t5}, v{t5} row_bcast:15 row_mask:0xa bank_mask:0xf
v_mul_f32 v64, {f2u(-L2E):#x}, v{PL+1}
v_mul_f32 v65, {f2u(INV2PI):#x}, v{PL+2}
v_max_f32_dpp v{t5}, v{t5}, v{t5} row_bcast:31 row_mask:0xc bank_mask:0xf
v_mul_f32 v68, 0x43000000, v65
v_mul_f32 v69, 0x43000000, v64
v_readlane_b32 s94, v{t5}, 63
v_fract_f32 v68, v68
v_exp_f32 v69, v69
v_cos_f32 v70, v68
v_sin_f32 v71, v68
s_lshr_b32 s94, s94, 23
s_max_u32 s94, s94, 13
s_sub_u32 s95, 267, s94
s_lshl_b32 s95, s95, 23
s_sub_i32 s94, s94, 153
v_mul_f32 v66, s95, v{PL+3}
v_mul_f32 v67, s95, v{PL+4}
v_ldexp_f32 v{FSC}, v{PL}, s94
v_mul_f32 v70, v69, v70
v_mul_f32 v71, v69, v71
v_rndne_f32 v74, v65
v_sub_f32 v65, v65, v74
v_mul_f32 v72, v70, v70
v_mul_f32 v73, v70, v71
v_fma_f32 v72, -v71, v71, v72
v_add_f32 v73, v73, v73
ds_write2_b32 v{t1}, v64, v65 offset0:0 offset1:2
v_add_u32 v{t6}, 0x800, v{t1}
ds_write2_b32 v{t6}, v66, v67 offset0:0 offset1:2
v_add_u32 v{t6}, 0x1000, v{t1}
ds_write2_b32 v{t6}, v70, v71 offset0:0 offset1:2
v_add_u32 v{t6}, 0x1800, v{t1}
ds_write2_b32 v{t6}, v72, v73 offset0:0 offset1:2''')
    A('s_waitcnt lgkmcnt(0)')
    A.stamp('kstart', True)
    A.fence()
    PRB = [64, 164]
    XA = [96, 100]; LB = [104, 196]
    T = 108
    def pread(buf):
        for jp in range(2):
            for pl in range(4): A(f'ds_read_b128 {vr(PRB[buf]+16*jp+4*pl,4)}, v{VPAR} offset:{2048*pl + 16*jp + 128*buf}')
    pread(0)
    A.label('Lkgen')
    if o['ssm'] == 'Kmid':
        A('s_cmp_lg_u32 s51, 1\ns_cbranch_scc1 Lnossm')
        ssm_dma(38)
        A.fence()
        A.label('Lnossm')
    for buf in range(2):
        PR = PRB[buf]
        def two(fmt, fmt1=None):
            for jp in range(2):
                t = T + 20 * jp; p_ = PR + 16 * jp
                names = dict(a=p_, b=p_+2, cr=p_+4, ci=p_+6, wr=p_+8, wi=p_+10, zr=p_+12, zi=p_+14, thL=t, thR=t+2, mL=t+4, mR=t+6, cL=t+8, sL=t+10, cR=t+12, sR=t+14, p=t+16, q=t+18, x=t, y=t+2)
                if fmt1 is None:
                    A(fmt.format(**{k: vr(v, 2) for k, v in names.items()}))
                else:
                    for e in range(2):
                        A(fmt1.format(j=2*jp+e, **{k: f'v{v+e}' for k, v in names.items()}))
        one = lambda f: two(None, f)
        def cvt(dst, o1, o2, neg=''):
            for k in range(4): A(f'v_cvt_pk_f16_f32 v{dst+k}, v{T+20*(k>>1)+o1+(k&1)}, {neg}v{T+20*(k>>1)+o2+(k&1)}')
        NEG = ' neg_lo:[1,0,0] neg_hi:[1,0,0]'
        A('s_waitcnt lgkmcnt(0)')
        if buf == 1: A(f'v_add_u32 v{VPAR}, 0x100, v{VPAR}')
        pread(1 - buf)
        two('v_pk_mul_f32 {thR}, {b}, v[34:35]'); two('v_pk_mul_f32 {thL}, {b}, v[32:33]')
        two('v_pk_fma_f32 {mL}, {a}, v[32:33], v[36:37]'); two('v_pk_mul_f32 {mR}, {a}, v[34:35]')
        one('v_fract_f32 {thR}, {thR}')
        one('v_exp_f32 {mL}, {mL}'); one('v_cos_f32 {cL}, {thL}'); one('v_sin_f32 {sL}, {thL}')
        one('v_cos_f32 {cR}, {thR}')
        two('v_pk_mul_f32 {cL}, {mL}, {cL}'); two('v_pk_mul_f32 {sL}, {mL}, {sL}')
        one('v_sin_f32 {sR}, {thR}')
        two('v_pk_mul_f32 {p}, {cL}, {wr}'); two('v_pk_mul_f32 {q}, {cL}, {wi}')
        one('v_exp_f32 {mR}, {mR}')
        two('v_pk_mul_f32 {x}, {cr}, {cR}'); two('v_pk_mul_f32 {y}, {cr}, {sR}')
        two('v_pk_fma_f32 {p}, {sL}, {wi}, {p}' + NEG); two('v_pk_fma_f32 {q}, {sL}, {wr}, {q}')
        two('v_pk_fma_f32 {x}, {ci}, {sR}, {x}' + NEG); two('v_pk_fma_f32 {y}, {ci}, {cR}, {y}')
        cvt(LB[0], 8, 10)
        two('v_pk_mul_f32 {x}, {mR}, {x}'); two('v_pk_mul_f32 {y}, {mR}, {y}')
        cvt(LB[1], 16, 18)
        two('v_pk_mul_f32 {cR}, {x}, {zr}'); two('v_pk_mul_f32 {sR}, {x}, {zi}')
        cvt(XA[0], 0, 2, '-')
        two('v_pk_fma_f32 {cR}, {y}, {zi}, {cR}' + NEG); two('v_pk_fma_f32 {sR}, {y}, {zr}, {sR}')
        for bb in range(2): A(f'v_mfma_f32_16x16x32_f16 {vr(ACC[bb],4)}, {vr(XA[0],4)}, {vr(LB[bb],4)}, {vr(ACC[bb],4)}')
        cvt(XA[1], 12, 14, '-')
        if buf == 1: A('s_add_u32 s51, s51, 1\ns_cmp_lt_u32 s51, 2')
        for bb in range(2): A(f'v_mfma_f32_16x16x32_f16 {vr(ACC[2+bb],4)}, {vr(XA[1],4)}, {vr(LB[bb],4)}, {vr(ACC[2+bb],4)}')
    A('s_cbranch_scc1 Lkgen')
    A.stamp('k1')
    if o['ssm'] == 'Kend': ssm_dma(38)
    A(f'''v_and_b32 v{t3}, 0x7f, v0
v_lshlrev_b32 v{t3}, 2, v{t3}
s_mul_i32 s94, s42, {2*KLS}
s_add_u32 s94, s94, {L_KL + 64}
v_add_u32 v{t4}, s94, v{t3}
v_add_u32 v{t5}, {KLC - 4}, v{t4}
v_lshl_add_u32 v{t3}, v{t3}, 1, s45
s_lshl_b32 s95, s3, 11
s_add_u32 s95, s95, {L_RED}
v_add_u32 v{t1}, s95, v{t0}
s_xor_b32 s95, s3, 1
s_lshl_b32 s95, s95, 11
s_add_u32 s95, s95, {L_RED}
v_add_u32 v{t2}, s95, v{t0}
s_waitcnt lgkmcnt(0)''')
    for i in range(8): A(f'v_cndmask_b32 v{64+i}, v{148+i}, v{156+i}, s[92:93]')
    for i in range(8): A(f'v_mul_f32 v{64+i}, v{FSC}, v{64+i}')
    A(f'ds_write_b128 v{t1}, v[64:67]\nds_write_b128 v{t1}, v[68:71] offset:1024')
    A(f'ds_write_b32 v{VSW}, v{ONE} offset:{F_K}')
    for i in range(8): A(f'v_cndmask_b32 v{72+i}, v{156+i}, v{148+i}, s[92:93]')
    sync(F_K, 2, None, VSR, ONE, 30)
    A(f'ds_read_b128 v[64:67], v{t2}\nds_read_b128 v[68:71], v{t2} offset:1024')
    for i in range(8):
        if i % 4 == 0: A(f's_waitcnt lgkmcnt({1 if i == 0 else 4})')
        A(f'v_fma_f32 v{72+i}, v{72+i}, v{FSC}, v{64+i}')
        A(f'ds_write_b32 v{CA+i}, v{72+i}')
    sync(F_K + 16, 2, VSW, VSR, ONE, 30)
    A.stamp('kred', True)
    RD = 64
    A(f'ds_read_b64 v[64:65], v{t3}')
    srcs = {1: (GI, 0), 2: (GI + 2, 0), 3: (GI + 2, 256), 4: (GI + 4, 0), 5: (GI + 4, 128), 6: (GI + 4, 256), 7: (GI + 4, 384)}
    for m in range(1, 8):
        g, off = srcs[m]
        A(f'ds_read_b32 v{RD+2*m}, v{g} offset:{off}\nds_read_b32 v{RD+2*m+1}, v{g+1} offset:{off}')
    for m in range(8):
        if m in (0, 4): A(f's_waitcnt lgkmcnt({8 if m == 0 else 0})')
        A(f'v_cvt_pk_bf16_f32 v{80+m}, v{RD+2*m}, v{RD+2*m+1}')
        if m == 3: A('s_waitcnt lgkmcnt(0)')
    for m in range(8):
        A(f'ds_write_b32 v{t4}, v{80+m} offset:{512*m}\nds_write_b32 v{t5}, v{80+m} offset:{512*m}')
        if m == 5: A('s_waitcnt lgkmcnt(4)')
    if o['ssm'] != 'T': V.wait('ssmk')
    sync(F_K + 32, 2, VSW, VSR, ONE, 30)
    if o['ssm'] == 'T': sync(F_S, 2, None, VSR, ONE, 30)
    A.stamp('kdone', True)
    A(f'''s_mul_i32 s94, s3, {KLS}
s_add_u32 s94, s94, {L_KL}
v_lshl_add_u32 v4, v{KG}, 2, v{IDX}
v_lshlrev_b32 v4, 2, v4
v_and_b32 v{t4}, 1, v{IDX}
v_mov_b32 v{t5}, {KLC}
v_cmp_eq_u32 vcc, 1, v{t4}
v_cndmask_b32 v{t5}, v{t5}, 4, vcc
v_add3_u32 v4, v4, v{t5}, s94          ; vK
v_mul_u32_u24 v5, {UXC}, v{t4}
v_lshrrev_b32 v{t4}, 1, v{IDX}
v_lshlrev_b32 v{t4}, 6, v{t4}
v_sub_u32 v5, v5, v{t4}
v_lshl_add_u32 v5, v{KG}, 4, v5
s_mul_i32 s94, s3, {UXS}
s_add_u32 s94, s94, {L_UX + 448}
v_add_u32 v5, s94, v5                  ; vU
s_lshl_b32 s94, s3, 12
s_add_u32 s94, s94, {L_Y}
v_lshlrev_b32 v6, 2, v{IDX}
v_lshl_add_u32 v6, v{KG}, 7, v6
v_add_u32 v6, s94, v6                  ; vY
v_mov_b32 v7, v{VSW}
v_mov_b32 v1, 1
v_mov_b32 v2, {L_FLG + F_U}''')
    if o['prio']: A(f"s_setprio {o['prio']}")
    mfma_phase(A, 4, 5, 6, 7, 1, 2, o)
    A.stamp_flush(0, 3)
    A.label('Lend')
    A('s_endpgm')
    HDR = open('gated_mix__ssm_conv_s4d__ssm_conv_h3__prompt.s.ref').read().split('; Override launch')[0]
    s = HDR + f'; @launch grid=(256,1,1) block=(512,1,1) lds={L_END}\n.amdgcn_target "amdgcn-amd-amdhsa--gfx950"\n.text\n' + A.text()
    s += '.section .rodata,"a"\n' + kdesc(KN, 256)
    if o.get('align', 4): s = align(s, nopmin=o.get('align', 4))[0]
    if o.get('ont', True):
        import re
        s = re.sub(r'(buffer_store_dword v\d+, v\d+, s\[56:59\], s60 offen[a-z:0-9 ]*)$', r'\1 nt', s, flags=re.M)
    open(path, 'w').write(s)
    return L_END, A.nops

SETS = dict(a=['issued', 'par', 'kstart', 'k1', 'tile', 'bar1'], b=['tst', 'drain', 'polled', 'staged', 'kred', 'kdone'],
            c=['kpre', 'ug0', 'ug1', 'ug2', 'ug3', 'gok'], d=['ug0', 'pass0', 'pass1', 'pass2', 'polled', 'staged'])
if __name__ == '__main__':
    out = sys.argv[1]
    print(gen(out))
    if len(sys.argv) > 2:
        for k, v in SETS.items(): gen(out.replace('.s', f'_{k}.s'), v)
        gen(out.replace('.s', '_np.s'), None, dict(prefetch=False))
        gen(out.replace('.s', '_late.s'), None, dict(late=True))
        gen(out.replace('.s', '_km.s'), None, dict(ssm='Kmid'))
        gen(out.replace('.s', '_s0.s'), None, dict(snt=''))
        gen(out.replace('.s', '_g0.s'), None, dict(gnt=''))
        gen(out.replace('.s', '_p0.s'), None, dict(pnt=''))
        gen(out.replace('.s', '_t0.s'), None, dict(touch=False))
        gen(out.replace('.s', '_dbg1.s'), ['tile', 'tst', 'drain', 'polled', 'staged', 'gok'], dict(dbg=True))
        gen(out.replace('.s', '_dbg2.s'), ['par', 'kstart', 'k1', 'kdone', 'kpre', 'ug0'], dict(dbg=True))
        gen(out.replace('.s', '_cyc.s'), ['ug0', 'ug1', 'ug2', 'ug3', 'pass2', 'pass1'], dict(cyc=True))
```

```python
import re

TRANS = ('v_exp_f32', 'v_log_f32', 'v_rcp_f32', 'v_rsq_f32', 'v_sqrt_f32', 'v_sin_f32', 'v_cos_f32')
NODST_S = ('s_cmp', 's_waitcnt', 's_barrier', 's_nop', 's_branch', 's_cbranch', 's_endpgm', 's_setprio', 's_sleep', 's_bitcmp')

def regs_of(tok):
    tok = tok.strip()
    tok = tok.lstrip('-')
    m = re.fullmatch(r'\|?abs\((.*)\)\|?', tok)
    if m: tok = m.group(1)
    tok = tok.strip('|')
    m = re.fullmatch(r'([vsa])(\d+)', tok)
    if m: return [(m.group(1), int(m.group(2)))]
    m = re.fullmatch(r'([vsa])\[(\d+):(\d+)\]', tok)
    if m: return [(m.group(1), i) for i in range(int(m.group(2)), int(m.group(3)) + 1)]
    if tok == 'vcc': return [('s', 106), ('s', 107)]
    if tok == 'vcc_lo': return [('s', 106)]
    if tok == 'vcc_hi': return [('s', 107)]
    if tok == 'exec': return [('s', 126), ('s', 127)]
    if tok == 'm0': return [('s', 124)]
    return []

class Ins:
    def __init__(self, text):
        self.text = text
        t = text.split(';')[0].strip()
        parts = t.split(None, 1)
        self.op = parts[0]
        rest = parts[1] if len(parts) > 1 else ''
        ops = []; cur = ''; depth = 0
        for ch in rest:
            if ch in '[(': depth += 1
            if ch in '])': depth -= 1
            if ch == ',' and depth == 0: ops.append(cur); cur = ''
            else: cur += ch
        if cur.strip(): ops.append(cur)
        mods = ''
        if ops:
            last = ops[-1].strip().split(None, 1)
            ops[-1] = last[0]
            mods = last[1] if len(last) > 1 else ''
        self.mods = mods
        ops = [o.strip() for o in ops]
        self.ops = ops
        op = self.op
        self.cls = 'other'
        d = []; s = []
        if op.startswith('v_mfma'):
            self.cls = 'sgemm' if op.endswith('_f32') and 'x4_f32' in op or op.endswith('x2_f32') else 'xdl'
            d = regs_of(ops[0]); self.srcA = regs_of(ops[1]); self.srcB = regs_of(ops[2]); self.srcC = regs_of(ops[3])
            s = self.srcA + self.srcB + self.srcC
            if '16x16x32' in op: self.passes = 4
            elif '32x32x16' in op: self.passes = 8
            elif '16x16x4_f32' in op: self.passes = 8
            elif '32x32x2_f32' in op: self.passes = 16
            else: raise Exception('unknown mfma ' + op)
        elif op.startswith('v_'):
            self.cls = 'valu'
            d = regs_of(ops[0])
            rs = ops[1:]
            if op.startswith(('v_add_co', 'v_sub_co', 'v_addc_co', 'v_subb_co', 'v_subrev_co', 'v_mad_u64', 'v_div_scale')):
                d += regs_of(ops[1]); rs = ops[2:]
            for o in rs: s += regs_of(o)
            if op.startswith(('v_fmac', 'v_pk_fmac', 'v_dot2c')) or 'dpp' in op or 'd16' in op or op.startswith('v_writelane'): s += regs_of(ops[0])
            if op.startswith('v_permlane') : d += regs_of(ops[1]); s += regs_of(ops[0])
            if op.startswith('v_cmpx'): d += regs_of('exec')
        elif op.startswith('ds_'):
            self.cls = 'ds'
            if op.startswith(('ds_read', 'ds_bpermute', 'ds_permute', 'ds_swizzle')) or '_rtn' in op:
                d = regs_of(ops[0])
                for o in ops[1:]: s += regs_of(o)
                if 'd16' in op: s += regs_of(ops[0])
            else:
                for o in ops: s += regs_of(o)
        elif op.startswith(('buffer_', 'global_')):
            self.cls = 'vmem'
            islds = re.search(r'\blds\b', mods) is not None or '_lds_' in op
            self.islds = islds
            if ('load' in op) and not islds:
                d = regs_of(ops[0])
                for o in ops[1:]: s += regs_of(o)
            else:
                for o in ops: s += regs_of(o)
                if 'atomic' in op and 'sc0' in mods: d = regs_of(ops[0])
            if islds: s += regs_of('m0')
        elif op.startswith(('s_load', 's_buffer_load', 's_memtime', 's_memrealtime')):
            self.cls = 'smem'
            d = regs_of(ops[0])
            for o in ops[1:]: s += regs_of(o)
        elif op.startswith('s_'):
            self.cls = 'salu'
            if op.startswith(NODST_S):
                for o in ops: s += regs_of(o)
            else:
                d = regs_of(ops[0])
                for o in ops[1:]: s += regs_of(o)
                if 'saveexec' in op: d += regs_of('exec')
        self.d = set(d); self.s = set(s)
        self.trans = op.replace('_e32', '').replace('_e64', '') in TRANS
        self.dpp = 'dpp' in op or 'row_' in mods or 'quad_perm' in mods
        self.states = 1
        if op == 's_nop': self.states = int(ops[0], 0) + 1

def need(p, c):
    n = 0
    pv = {r for r in p.d if r[0] in 'va'}; ps = {r for r in p.d if r[0] == 's'}
    if p.cls == 'valu':
        if c.cls in ('xdl', 'sgemm') and pv & c.s: n = max(n, 2)
        if c.cls in ('xdl', 'sgemm') and ('s', 126) in ps: n = max(n, 4)
        if p.trans and c.cls in ('valu',) and not c.trans and pv & (c.s | c.d): n = max(n, 1)
        if p.trans and c.cls in ('valu',) and c.trans and pv & (c.s): n = max(n, 1)
        if p.trans and c.cls in ('ds', 'vmem') and pv & c.s: n = max(n, 1)
        if c.cls == 'valu' and c.dpp and pv & c.s: n = max(n, 2)
        if c.cls == 'valu' and c.dpp and ('s', 126) in ps: n = max(n, 5)
        if c.cls == 'valu' and c.op.startswith('v_permlane') and pv & c.s: n = max(n, 2)
        if c.cls == 'valu' and c.op.startswith(('v_readlane', 'v_readfirstlane')) and pv & c.s: n = max(n, 1)
        if ps:
            if c.cls == 'vmem' and ps & c.s: n = max(n, 5)
            if c.cls == 'valu' and ps & c.s:
                n = max(n, 4 if c.op.startswith(('v_readlane', 'v_writelane')) else 2)
            if c.cls in ('salu', 'smem') and ps & c.s: n = max(n, 1)
            if ('s', 126) in ps and c.cls == 'valu' and c.op.startswith(('v_readlane', 'v_readfirstlane', 'v_writelane', 'v_permlane')): n = max(n, 4)
        if 'sdwa' in p.op or 'op_sel' in p.mods:
            if c.cls == 'valu' and pv & (c.s | c.d): n = max(n, 1)
    if p.cls == 'salu':
        if ('s', 124) in p.d and c.cls == 'vmem' and getattr(c, 'islds', False): n = max(n, 1)
    if p.cls == 'vmem' and 'store' in p.op and ('x4' in p.op or 'x3' in p.op):
        data = set(regs_of(p.ops[0])) if p.op.startswith('buffer') else set(regs_of(p.ops[1]))
        if data & c.d: n = max(n, 2)
    if p.cls in ('xdl', 'sgemm'):
        idx = {2: 0, 4: 1, 8: 2, 16: 3}[p.passes]
        if p.cls == 'xdl':
            if c.cls in ('xdl', 'sgemm'):
                if pv & set(c.srcA + c.srcB): n = max(n, [5, 8, 12, 20][idx])
                if pv & set(c.srcC):
                    if c.cls == 'xdl' and set(c.srcC) == pv and c.passes == p.passes: n = max(n, [2, 0, 0, 0][idx])
                    else: n = max(n, [4, 6, 10, 18][idx])
                elif pv & c.d: n = max(n, [5, 8, 12, 20][idx])
            elif pv & (c.s | c.d): n = max(n, [5, 8, 12, 20][idx])
            if c.cls == 'valu' and set(p.srcC) & c.d: n = max(n, [1, 3, 7, 15][idx])
        else:
            if c.cls in ('xdl', 'sgemm'):
                if pv & set(c.srcA + c.srcB): n = max(n, [4, 6, 10, 18][idx])
                if pv & set(c.srcC):
                    if c.cls == 'sgemm' and set(c.srcC) == pv: n = max(n, [2, 0, 0, 0][idx])
                    else: n = max(n, [2, 4, 8, 16][idx])
                elif pv & c.d: n = max(n, [4, 6, 10, 18][idx])
            elif pv & (c.s | c.d): n = max(n, [4, 6, 10, 18][idx])
    return n

class Asm:
    def __init__(self):
        self.lines = []
        self.win = []
        self.nops = 0
    def raw(self, text):
        self.lines.append(text)
    def label(self, name):
        self.lines.append(name + ':')
    def comment(self, t):
        self.lines.append('    ; ' + t)
    def fence(self):
        worst = 0; dist = 0
        for p in reversed(self.win):
            w = 0
            if p.cls == 'valu': w = 5
            if p.cls in ('xdl', 'sgemm'): w = {2: 5, 4: 8, 8: 12, 16: 20}[p.passes]
            if p.cls == 'vmem': w = 2
            if p.cls == 'salu': w = 1 if ('s', 124) in p.d else 0
            worst = max(worst, w - dist)
            dist += p.states
        while worst > 0:
            k = min(worst, 16)
            self('s_nop %d' % (k - 1))
            worst -= k
        self.win = []
    def __call__(self, text):
        for ln in text.strip().split('\n'):
            ln = ln.strip()
            if not ln: continue
            if ln.startswith(';'): self.lines.append('    ' + ln); continue
            if ln.endswith(':'): self.label(ln[:-1]); continue
            c = Ins(ln)
            req = 0; dist = 0
            for p in reversed(self.win):
                req = max(req, need(p, c) - dist)
                dist += p.states
                if dist > 24: break
            while req > 0:
                k = min(req, 16)
                nop = Ins('s_nop %d' % (k - 1))
                self.lines.append('    s_nop %d' % (k - 1)); self.win.append(nop); self.nops += 1
                req -= k
            self.lines.append('    ' + ln)
            self.win.append(c)
            if len(self.win) > 40: self.win = self.win[-30:]
    stamps = False
    stamp_op = 's_memrealtime'
    stamp_sel = None
    def stamp(self, i, wait=False):
        if not self.stamps: return
        if isinstance(i, str):
            if i not in self.stamp_sel: return
            i = 1 + self.stamp_sel.index(i)
        self(f'{self.stamp_op} s[{72+2*i}:{73+2*i}]')
        if wait: self('s_waitcnt lgkmcnt(0)')
    def stamp_init(self):
        if self.stamps:
            for i in range(8): self(f's_mov_b64 s[{72+2*i}:{73+2*i}], 0')
            self('s_mov_b32 s90, s2')
            self.stamp(0)
    def stamp_flush(self, ki, wave_sreg):
        if not self.stamps: return
        if getattr(self, 'encflush', False):
            self.nflush = getattr(self, 'nflush', 0) + 1
            k = self.nflush
            self('s_waitcnt vmcnt(0) lgkmcnt(0)')
            if self.stamp_sel[0] == 'END': self.stamp(1)
            self.stamp(7)
            self(f'''s_waitcnt lgkmcnt(0)
s_cmp_eq_u32 s74, 0
s_cbranch_scc1 Lenc_done{k}
s_sub_u32 s74, s74, s72
s_mul_i32 s74, s74, 10
Lenc{k}:
s_memrealtime s[76:77]
s_waitcnt lgkmcnt(0)
s_sub_u32 s76, s76, s86
s_cmp_lt_u32 s76, s74
s_cbranch_scc1 Lenc{k}
Lenc_done{k}:''')
            return
        if getattr(self, 'dbgflush', False):
            self.nflush = getattr(self, 'nflush', 0) + 1
            return self.stamp_flush_dbg(0 if self.nflush == 1 else 8)
        self('s_waitcnt vmcnt(0) lgkmcnt(0)')
        self.stamp(7)
        self('s_mov_b64 exec, 1')
        self('s_waitcnt lgkmcnt(0)')
        for i in range(8): self(f'v_mov_b32 v{8+i}, s{72+2*i}')
        self(f"""s_lshl_b32 s91, s90, 4
s_add_u32 s91, s91, s{wave_sreg}
s_lshl_b32 s91, s91, 5
s_add_u32 s91, s91, {0x8000000 + ki*0x100000}
v_mov_b32 v16, s91
global_store_dwordx4 v16, v[8:11], s[40:41]
global_store_dwordx4 v16, v[12:15], s[40:41] offset:16""")
    def stamp_flush_dbg(self, base):
        self('s_waitcnt vmcnt(0) lgkmcnt(0)')
        self.stamp(7)
        self('s_mov_b64 exec, 1')
        self('s_waitcnt lgkmcnt(0)')
        self('s_not_b32 s72, s72')
        self('v_mov_b32 v16, 0')
        for i in range(8):
            self(f'v_mov_b32 v8, s{72+2*i}')
            self(f'global_atomic_umax v16, v8, s[38:39] offset:{4*(0 if i == 0 else base+i)}')
    def text(self):
        return '\n'.join(self.lines) + '\n'

def vr(a, n=1):
    return 'v%d' % a if n == 1 else 'v[%d:%d]' % (a, a + n - 1)
def sr(a, n=1):
    return 's%d' % a if n == 1 else 's[%d:%d]' % (a, a + n - 1)

def kdesc(name, vgpr, sgpr=102, extra=''):
    acc = (vgpr + 3) // 4 * 4
    return f""".p2align 6
.amdhsa_kernel {name}
  .amdhsa_next_free_vgpr {vgpr}
  .amdhsa_next_free_sgpr {sgpr}
  .amdhsa_accum_offset {acc}
  .amdhsa_group_segment_fixed_size 0
  .amdhsa_kernarg_size 136
  .amdhsa_user_sgpr_count 2
  .amdhsa_user_sgpr_kernarg_segment_ptr 1
  .amdhsa_system_sgpr_workgroup_id_x 1
  .amdhsa_float_denorm_mode_32 3
{extra}.end_amdhsa_kernel
"""
```

```python
import sys, struct
from asmlib import *
from k1 import f2u, L2E, L2E_HI, L2E_LO, INV2PI, load_ptrs, P, ptr, rnd, lo2f, hi2f, bfexp
import k2, k1
k1.HIMASK[0] = 's88'
from align import align
from fused4 import VM
from mfma2 import mfma_phase
KN = 'gated_mix__ssm_conv_s4d__ssm_conv_h3__prompt_kernel'

WS_UR = 0; WS_KVR = 0x240080; WS_IN = 5 << 20; WS_GT = WS_IN + 1024; WS_EP = WS_IN + (1 << 20)
KLC = 4224; KLS = 2 * KLC
UXC = 4576; UXS = 2 * UXC
L_KL = 0
L_UX = 4 * KLS
L_Y = L_UX + 4 * UXS
L_G = L_Y + 16384
L_RED = L_G + 4096
L_KC = L_RED + 8192
L_TK = L_KC + 6144
L_TV = L_TK + 9 * 1040
L_TU = L_TV + 8 * 1040
L_PAR = L_TU + 8 * 1040
L_PARW = L_PAR + 4096
L_FLG = L_PARW + 4096
L_END = L_FLG + 256
F_U = 128; F_T = 144; F_K = 160; F_S = 208
assert all(x % 16 == 0 for x in (L_UX, L_Y, L_RED, L_KC, L_TK, L_TV, L_TU, L_PAR, L_PARW, L_FLG))

def gen(path, stamps=None, opts=None):
    o = dict(NPRE=20, prefetch=True, prio=2, sleep=1, tprio=3, ssm='T', gmask=15)
    o.update(opts or {})
    A = Asm(); A.stamps = bool(stamps); A.stamp_sel = stamps
    if o.get('cyc'): A.stamp_op = 's_memtime'
    A.dbgflush = o.get('dbg', False)
    A.encflush = o.get('enc', False)
    V = VM(A)
    PIT = o.get('pitch', 4096)
    A.raw(f'.globl {KN}\n.p2align 8\n.type {KN},@function\n{KN}:')
    A('s_cmp_ge_u32 s2, 256\ns_cbranch_scc1 Lend')
    A.stamp_init()
    load_ptrs(A)
    A('s_mov_b32 s88, 0xffff0000')
    LANE, IDX, KG = 1, 2, 3
    t0, t1, t2, t3, t4, t5, t6, t7 = 40, 41, 42, 43, 44, 45, 46, 47
    if o['prefetch']:
        A(f'''s_cmp_ge_u32 s2, {o.get('pfwg', 256)}
s_cbranch_scc1 Lnopf
s_getpc_b64 s[68:69]
v_lshlrev_b32 v49, 4, v0
v_add_u32 v50, 0x2000, v49
v_min_u32 v50, Lend-{KN}-16, v50
s_and_b32 s68, s68, 0xffffff00
global_load_dwordx4 v[56:59], v49, s[68:69]
global_load_dwordx4 v[60:63], v50, s[68:69]
Lnopf:''')
    A(f'''v_lshrrev_b32 v{t0}, 6, v0
v_readfirstlane_b32 s3, v{t0}          ; wave
v_and_b32 v{LANE}, 63, v0
v_and_b32 v{IDX}, 15, v0
v_bfe_u32 v{KG}, v0, 4, 2
v_lshlrev_b32 v{t0}, 4, v{LANE}        ; lane*16
s_and_b32 s4, s2, 7                    ; s
s_lshr_b32 s5, s2, 3                   ; jq
s_lshl_b32 s6, s4, 6
s_lshl_b32 s7, s5, 1
s_add_u32 s6, s6, s7                   ; d0
s_and_b32 s43, s3, 3                   ; w&3
s_cmp_ge_u32 s3, 4
s_cbranch_scc1 Ltw''')
    PL = 51
    A(f'''s_lshl_b32 s70, s6, 8
v_lshlrev_b32 v{t1}, 1, v0
v_add_u32 v{t1}, s70, v{t1}
s_lshr_b32 s42, s3, 1                  ; ch
s_add_u32 s7, s42, s6                  ; d
s_lshl_b32 s71, s7, 1
v_mov_b32 v{t2}, s71
s_mov_b32 s48, {f2u(L2E_HI):#x}
s_mov_b32 s49, {f2u(L2E_LO):#x}
s_waitcnt lgkmcnt(0)''')
    V.issue(f"global_load_ushort v{PL}, v{t2}, {ptr('logdt')}", 'par')
    V.issue(f"global_load_ushort v{PL+1}, v{t1}, {ptr('logA')} {o.get('pnt','')}", 'par')
    V.issue(f"global_load_ushort v{PL+2}, v{t1}, {ptr('Aim')} {o.get('pnt','')}", 'par')
    V.issue(f"global_load_ushort v{PL+3}, v{t1}, {ptr('Cr')} {o.get('pnt','')}", 'par')
    V.issue(f"global_load_ushort v{PL+4}, v{t1}, {ptr('Ci')} {o.get('pnt','')}", 'par')
    if o.get('touch', True):
        A(f'''v_and_b32 v{t2}, 1, v0
v_lshlrev_b32 v{t2}, 21, v{t2}
v_bfe_u32 v{t3}, v0, 1, 2
v_lshl_add_u32 v{t2}, v{t3}, 16, v{t2}
s_lshl_b32 s70, s4, 18
v_add_u32 v{t2}, s70, v{t2}
v_lshlrev_b32 v{t3}, 19, v{t3}
global_load_dword v253, v{t2}, {ptr('ws')}
global_load_dword v254, v{t3}, {ptr('out')}''')
    A('s_barrier\ns_branch Lkw')
    A.win = []
    A.label('Ltw')

    def ssm_dma(t5):
        A(f'''s_lshr_b32 s94, s43, 1
s_add_u32 s95, s94, s6
s_lshl_b32 s95, s95, 12
s_add_u32 s60, s{P['ssmk']}, s95
s_addc_u32 s61, s{P['ssmk']+1}, 0
s_mov_b32 s62, 4096
s_mov_b32 s63, 0x00020000
s_mul_i32 s94, s94, {2*KLS}
s_and_b32 s95, s43, 1
s_mul_i32 s97, s95, {KLC}
s_add_u32 s94, s94, s97
s_add_u32 s94, s94, {L_KL + KLS}
s_lshl_b32 s95, s95, 2
v_lshlrev_b32 v{t5}, 2, v{LANE}
s_sub_u32 s96, s95, 64
v_add_u32 v{t5}, s96, v{t5}
s_add_u32 m0, s94, 64''')
        for i in range(4):
            V.issue(f'buffer_load_dwordx4 v{t0}, s[60:63], s95 offen offset:{1024*i} {o.get("snt","")} lds', 'ssmk')
        A('s_mov_b32 m0, s94\ns_mov_b64 exec, 0xffff')
        V.issue(f'buffer_load_dword v{t5}, s[60:63], 0 offen lds', 'ssmk')
        A('s_mov_b64 exec, -1')
    nsync = [0]
    def sync(off, n, vaddr_w, vaddr_r, vone, tmp):
        k = nsync[0]; nsync[0] += 1
        if vaddr_w is not None: A(f'ds_write_b32 v{vaddr_w}, v{vone} offset:{off}')
        A.fence()
        A.label(f'Lsy{k}')
        if n == 2:
            A(f'ds_read_b64 {vr(tmp,2)}, v{vaddr_r} offset:{off}\ns_waitcnt lgkmcnt(0)\nv_and_b32 v{tmp}, v{tmp}, v{tmp+1}')
        else:
            A(f'ds_read_b128 {vr(tmp,4)}, v{vaddr_r} offset:{off}\ns_waitcnt lgkmcnt(0)\nv_and_b32 v{tmp}, v{tmp}, v{tmp+1}\nv_and_b32 v{tmp+2}, v{tmp+2}, v{tmp+3}\nv_and_b32 v{tmp}, v{tmp}, v{tmp+2}')
        A(f'v_cmp_ne_u32 vcc, 0, v{tmp}\ns_cbranch_vccz Lsy{k}')
    V.q = []
    TAG = 4
    SK = 8; GU = 16; GW = 24
    VST = 36; VTA = 37; VTB = 38; VFL = 39
    VSW = 28; VSR = 29; ONE = 30
    if o['tprio']: A(f"s_setprio {o['tprio']}")
    A(f'''v_lshrrev_b32 v{t4}, 3, v{LANE}
v_lshlrev_b32 v{t4}, 10, v{t4}
v_and_b32 v{t5}, 7, v0
v_lshl_add_u32 v{t4}, v{t5}, 4, v{t4}
s_lshl_b32 s70, s5, 16
s_lshl_b32 s71, s4, 7
s_add_u32 s70, s70, s71
s_sub_u32 s71, s70, 0x2000
v_add_u32 v{t5}, s71, v{t4}
s_lshl_b32 s71, s43, 14
s_add_u32 s70, s70, s71
v_add_u32 v{t4}, s70, v{t4}
v_add_u32 v{t1}, 0x2000, v{t4}
s_mul_i32 s70, s43, 2080
s_lshl_b32 s71, s43, 4
s_lshl_b64 s[92:93], 0xffff, s71
v_mov_b32 v{t3}, {WS_EP}
s_lshl_b32 s94, s4, 9
s_lshl_b32 s95, s43, 7
s_add_u32 s94, s94, s95
v_lshlrev_b32 v{t6}, 4, v{KG}
v_add_u32 v{t6}, s94, v{t6}
s_lshl_b32 s94, s2, 13
s_lshl_b32 s95, s43, 11
s_add_u32 s94, s94, s95
v_add_u32 v{t7}, s94, v{t0}
v_mov_b32 v108, 0
v_mov_b32 v109, 0
v_mov_b32 v110, 0
v_mov_b32 v111, 0
v_add_u32 v{t2}, {L_FLG}, v{t0}
s_mov_b64 exec, 0xffff
ds_write_b128 v{t2}, v[108:111]
s_lshr_b32 s94, s43, 1
s_mul_i32 s94, s94, {2*KLS}
s_and_b32 s95, s43, 1
s_mul_i32 s95, s95, {KLC}
s_add_u32 s94, s94, s95
v_add_u32 v{t2}, s94, v{t0}
s_mov_b64 exec, 15
ds_write_b128 v{t2}, v[108:111] offset:{L_KL}
s_mov_b64 exec, -1
s_waitcnt lgkmcnt(0)
{'s_barrier' if o.get('early_bar', True) else ''}
s_mov_b32 s44, s{P['k']}
s_mov_b32 s45, s{P['k']+1}
s_mov_b32 s46, 0x200000
s_mov_b32 s47, 0x00020000''')
    V.issue(f"global_load_dwordx4 {vr(SK,4)}, v{t6}, {ptr('shk')}", 'sk')
    V.issue(f"global_load_dwordx4 {vr(SK+4,4)}, v{t6}, {ptr('shk')} offset:64", 'sk')
    V.issue(f"global_load_dword v{TAG}, v{t3}, {ptr('ws')}", 'sk')
    if o.get('stag'):
        A('s_lshr_b32 s94, s5, 3')
        A.label('Lstag')
        A(f's_cmp_eq_u32 s94, 0\ns_cbranch_scc1 Lstagd\ns_sleep {o["stag"]}\ns_sub_u32 s94, s94, 1\ns_branch Lstag')
        A.label('Lstagd')
    for g, va in ((0, t4), (1, t1)):
        A(f's_add_u32 m0, s70, {L_TK + 1040 + 1040*g}')
        V.issue(f"global_load_lds_dwordx4 v{va}, {ptr('k')} {o.get('tnt','') if 'k' in o.get('tntw','kvu') else ''}", 'tile')
        A(f's_add_u32 m0, s70, {L_TV + 1040*g}')
        V.issue(f"global_load_lds_dwordx4 v{va}, {ptr('v')} {o.get('tnt','') if 'v' in o.get('tntw','kvu') else ''}", 'tile')
        A(f's_add_u32 m0, s70, {L_TU + 1040*g}')
        V.issue(f"global_load_lds_dwordx4 v{va}, {ptr('u')} {o.get('tnt','') if 'u' in o.get('tntw','kvu') else ''}", 'tile')
    A(f's_mov_b32 m0, {L_TK}\ns_mov_b64 exec, s[92:93]')
    V.issue(f'buffer_load_dwordx4 v{t5}, s[44:47], 0 offen lds', 'tile')
    A('s_mov_b64 exec, -1')
    if not o.get('early_bar', True): A('s_barrier')
    def gate_loads():
        V.issue(f"global_load_dwordx4 {vr(GU,4)}, v48, {ptr('u')} {o.get('gnt','')}", 'gate')
        V.issue(f"global_load_dwordx4 {vr(GU+4,4)}, v48, {ptr('u')} offset:1024 {o.get('gnt','')}", 'gate')
        V.issue(f"global_load_dwordx4 {vr(GW,4)}, v{t0}, {ptr('gw')}", 'gate')
    A(f'v_mov_b32 v48, v{t7}')
    if not o.get('late', False): gate_loads()
    A(f'''s_lshl_b32 s94, s2, 12
s_lshl_b32 s95, s43, 7
s_add_u32 s94, s94, s95
s_add_u32 s94, s94, {WS_IN}
v_and_b32 v7, 3, v0
v_lshlrev_b32 v7, 10, v7
v_add_u32 v7, s94, v7''')
    V.issue(f"global_load_dword v7, v7, {ptr('ws')} sc1", 'warm')
    if o['ssm'] == 'T' and not o.get('late', False): ssm_dma(t5)
    A.stamp('issued')
    c1, c2 = 5, 6
    H = 120; GQ = 96; SD = 64
    A(f'''s_mov_b32 s52, 0x05040100
s_mov_b32 s53, 0x07060302
v_and_b32 v31, 7, v{IDX}
v_sub_u32 v{c1}, 7, v31                ; grp
v_mul_u32_u24 v{VTA}, 1040, v{c1}
v_lshrrev_b32 v{c2}, 3, v{IDX}         ; par
v_lshl_add_u32 v{VTA}, v{c2}, 9, v{VTA}
v_lshl_add_u32 v{VTA}, v{KG}, 2, v{VTA}
s_lshl_b32 s94, s43, 5
s_add_u32 s94, s94, {L_TK}
v_add_u32 v{VTA}, s94, v{VTA}
v_lshl_add_u32 v{VTB}, v{c2}, 4, v{VTA}
v_lshl_add_u32 v{VST}, v{KG}, 1, v{c2}
v_mul_u32_u24 v{VST}, {PIT}, v{VST}
v_lshlrev_b32 v{c1}, 4, v{c1}
v_sub_u32 v{VST}, v{VST}, v{c1}
s_lshl_b32 s94, s4, 6
s_lshl_b32 s95, s43, 4
s_add_u32 s94, s94, s95
s_mul_i32 s94, s94, {PIT}
s_lshl_b32 s95, s5, 7
s_sub_u32 s94, s94, s95
s_add_u32 s94, s94, {3968 + 112}
v_add_u32 v{VST}, s94, v{VST}
v_cmp_eq_u32 s[54:55], 1, v{c2}
s_lshl_b32 s94, s43, 3
v_and_b32 v{c1}, 7, v0
v_add_u32 v{VFL}, s94, v{c1}
v_lshlrev_b32 v{VFL}, 15, v{VFL}
s_lshl_b32 s94, s4, 12
s_lshr_b32 s95, s5, 3
s_lshl_b32 s95, s95, 7
s_add_u32 s94, s94, s95
s_and_b32 s95, s5, 7
s_lshl_b32 s96, s95, 2
s_add_u32 s94, s94, s96
s_add_u32 s94, s94, {WS_IN}
v_bfe_u32 v{c1}, v0, 3, 1
v_mul_u32_u24 v{c1}, 132, v{c1}
v_add3_u32 v{VFL}, v{VFL}, v{c1}, s94
s_cmp_eq_u32 s95, 7
s_movk_i32 s70, 0xff
s_cselect_b32 s70, 0xffff, s70
s_cmp_eq_u32 s5, 31
s_cselect_b32 s70, 0xff, s70
s_lshl_b32 s94, s43, 2
s_add_u32 s94, s94, {L_FLG}
v_mov_b32 v{VSW}, s94
v_mov_b32 v{VSR}, {L_FLG}
v_mov_b32 v{ONE}, 1
s_mul_i32 s94, s43, {UXS}
s_add_u32 s94, s94, {L_UX + 4096}
v_add_u32 v{c1}, s94, v{t0}
s_mov_b32 exec_lo, 0x0fffffff
s_mov_b32 exec_hi, 0
ds_write_b128 v{c1}, v[108:111]
ds_write_b128 v{c1}, v[108:111] offset:{UXC}
s_mov_b64 exec, -1
v_subrev_u32 v5, 0x100, v0             ; ht
v_lshrrev_b32 v{H+8}, 2, v5
v_lshlrev_b32 v{H+8}, 12, v{H+8}
v_and_b32 v6, 3, v5
v_lshl_add_u32 v{H+8}, v6, 4, v{H+8}
v_add_u32 v{H+8}, {WS_GT}, v{H+8}
v_add_u32 v{H+9}, 0x40000, v{H+8}
v_add_u32 v{H+10}, 0x80000, v{H+8}
v_add_u32 v{H+11}, 0xc0000, v{H+8}
s_lshl_b32 s95, s6, 1
s_load_dword s98, {ptr('Dskip')}, s95
s_load_dword s99, {ptr('ssmD')}, s95
s_mov_b32 s56, s{P['out']}
s_mov_b32 s57, s{P['out']+1}
s_mov_b32 s58, 0x200000
s_mov_b32 s59, 0x00020000
v_lshlrev_b32 v6, 2, v5
v_add_u32 v{H}, {L_Y}, v6              ; vP
v_sub_u32 v{H+1}, {L_UX + UXC + 4092}, v6 ; vN
v_lshlrev_b32 v{H+2}, 11, v5
v_add_u32 v{H+2}, s95, v{H+2}          ; vO
s_lshr_b32 s94, s43, 1
s_lshl_b32 s94, s94, 4
s_add_u32 s94, s94, {L_FLG}
v_mov_b32 v{H+3}, s94
v_mov_b32 v{H+12}, {L_FLG + F_U}
s_cmp_eq_u32 s43, 0
s_cselect_b32 s94, 7, 8
v_min_u32 v{t3}, s94, v{LANE}
v_lshlrev_b32 v{t3}, 2, v{t3}
s_lshl_b32 s94, s2, 12
s_lshl_b32 s95, s43, 7
s_add_u32 s94, s94, s95
s_add_u32 s94, s94, {WS_IN}
v_add_u32 v{t3}, s94, v{t3}
s_mul_i32 s94, s6, {PIT}
s_add_u32 s64, s{P['ws']}, s94
s_addc_u32 s65, s{P['ws']+1}, 0
s_lshl_b32 s94, s43, 10
s_sub_u32 s94, 3072, s94
v_add_u32 v{t1}, s94, v{t0}
v_add_u32 v{t2}, {L_UX}, v{t1}
v_add_u32 v{t4}, {PIT}, v{t1}
v_add_u32 v{t5}, {WS_KVR}, v{t1}
v_add_u32 v{t6}, {WS_KVR + PIT}, v{t1}
s_movk_i32 s94, 0xff0
v_cmp_eq_u32 s[92:93], s94, v{t1}
s_waitcnt lgkmcnt(0)
s_lshl_b32 s100, s98, 16
s_and_b32 s101, s98, 0xffff0000
v_mov_b32 v{H+4}, s100
v_mov_b32 v{H+5}, s101
s_lshl_b32 s100, s99, 16
s_and_b32 s101, s99, 0xffff0000
v_mov_b32 v{H+6}, s100
v_mov_b32 v{H+7}, s101''')
    WS2 = [188, 196]
    V.wait('sk')
    for i in range(2):
        for t in range(4):
            for ee in range(2):
                (hi2f if t & 1 else lo2f)(A, WS2[i] + 2 * t + ee, SK + 4 * i + 2 * ee + (t >> 1))
    A(f'v_add_u32 v{TAG}, 1, v{TAG}')
    V.wait('tile')
    A.stamp('tile')
    if o.get('late', False):
        A(f'ds_write_b32 v{VSW}, v{ONE} offset:{F_T}')
        gate_loads()
        if o['ssm'] == 'T': ssm_dma(35)
    sync(F_T, 4, VSW, VSR, ONE, 32)
    A.stamp('bar1', True)
    dpp = 'row_ror:8 row_mask:0xf bank_mask:0xf'
    KD = [140, 156]
    def tread(i):
        k = KD[i]
        for r in range(3): A(f'ds_read_b32 v{k+r}, v{VTB} offset:{512 + 128*(r+1) + 16*i}')
        for r in range(4): A(f'ds_read_b32 v{k+3+r}, v{VTA} offset:{1040 + 128*r + 16*i}')
        for r in range(4): A(f'ds_read_b32 v{k+7+r}, v{VTA} offset:{L_TV - L_TK + 128*r + 16*i}')
        for r in range(4): A(f'ds_read_b32 v{k+11+r}, v{VTA} offset:{L_TU - L_TK + 128*r + 16*i}')
    W = 64; KP = 72; VP = 86; AC = 94; O = 102; UNS = [172, 180]
    tread(0)
    for i in range(2):
        k = KD[i]; VD = k + 7; UD = k + 11; UN = UNS[i]
        W = WS2[i]
        A('s_waitcnt lgkmcnt(0)')
        if i == 0: tread(1)
        for r in range(7): lo2f(A, KP + 2 * r, k + r); hi2f(A, KP + 2 * r + 1, k + r)
        for a in range(4): A(f'v_pk_mul_f32 {vr(AC+2*a,2)}, {vr(KP+2*a,2)}, {vr(W+6,2)}')
        for r in range(4): lo2f(A, VP + 2 * r, VD + r); hi2f(A, VP + 2 * r + 1, VD + r)
        for tp in range(1, 4):
            for a in range(4): A(f'v_pk_fma_f32 {vr(AC+2*a,2)}, {vr(KP+2*(a+tp),2)}, {vr(W+2*(3-tp),2)}, {vr(AC+2*a,2)}')
        for ch in range(2):
            A(f'v_perm_b32 v{O+4+2*ch}, v{UD+2}, v{UD+3}, s{52+ch}')
            A(f'v_perm_b32 v{O+4+2*ch+1}, v{UD}, v{UD+1}, s{52+ch}')
        for a in range(4): A(f'v_pk_mul_f32 {vr(AC+2*a,2)}, {vr(AC+2*a,2)}, {vr(VP+2*a,2)}')
        A('s_mov_b64 vcc, s[54:55]')
        for ch in range(2):
            A(f'v_cvt_pk_bf16_f32 v{O+2*ch}, v{AC+6+ch}, v{AC+4+ch}')
            A(f'v_cvt_pk_bf16_f32 v{O+2*ch+1}, v{AC+2+ch}, v{AC+ch}')
        for tn in (1, 0):
            for e in range(2):
                A(f'v_cndmask_b32_dpp v{UN+4*tn+e}, v{O+4*tn+e}, v{O+4*tn+2+e}, vcc {dpp}')
        A('s_not_b64 vcc, vcc')
        for tn in (1, 0):
            for e in range(2):
                A(f'v_cndmask_b32_dpp v{UN+4*tn+2+e}, v{O+4*tn+2+e}, v{O+4*tn+e}, vcc {dpp}')
        A(f'v_add_u32 v{t7}, {WS_KVR}, v{VST}')
        V.issue(f"global_store_dwordx4 v{VST}, {vr(UN+4,4)}, {ptr('ws')} {o.get('sflag','sc1')}", 'st')
        V.issue(f"global_store_dwordx4 v{t7}, {vr(UN,4)}, {ptr('ws')} {o.get('sflag','sc1')}", 'st')
        if i == 0: A(f'v_add_u32 v{VST}, {8*PIT}, v{VST}')
    A.stamp('tst')
    X = 64
    if o['ssm'] == 'T':
        V.wait('ssmk')
        A(f'ds_write_b32 v{VSW}, v{ONE} offset:{F_S}')
    else: V.wait('gate')
    for r in range(2):
        A(f'v_dot2_f32_bf16 v{X+2*r}, v{GU+4*r}, v{GW}, 0\nv_dot2_f32_bf16 v{X+2*r+1}, v{GU+4*r+1}, v{GW+1}, 0')
    for r in range(2):
        A(f'v_dot2_f32_bf16 v{X+2*r}, v{GU+4*r+2}, v{GW+2}, v{X+2*r}\nv_dot2_f32_bf16 v{X+2*r+1}, v{GU+4*r+3}, v{GW+3}, v{X+2*r+1}')
    A(f'''s_lshl_b32 s94, s2, 12
s_lshl_b32 s95, s43, 4
s_add_u32 s94, s94, s95
s_add_u32 s94, s94, {WS_GT}
v_add_f32 v{X}, v{X}, v{X+1}
v_add_f32 v{X+2}, v{X+2}, v{X+3}
v_mov_b32 v{t7}, s94''')
    for sh in ('row_shr:1 row_mask:0xf bank_mask:0xf bound_ctrl:0', 'row_shr:2 row_mask:0xf bank_mask:0xf bound_ctrl:0', 'row_shr:4 row_mask:0xf bank_mask:0xf bound_ctrl:0',
               'row_shr:8 row_mask:0xf bank_mask:0xf bound_ctrl:0', 'row_bcast:15 row_mask:0xa bank_mask:0xf', 'row_bcast:31 row_mask:0xc bank_mask:0xf'):
        for r in range(2): A(f'v_add_f32_dpp v{X+2*r}, v{X+2*r}, v{X+2*r} {sh}')
    for r in range(2): rnd(A, X + 2 * r, X + 2 * r)
    for r in range(2): A(f'v_mul_f32 v{X+2*r}, {f2u(-L2E):#x}, v{X+2*r}')
    for r in range(2): A(f'v_exp_f32 v{X+2*r}, v{X+2*r}')
    for r in range(2): A(f'v_add_f32 v{X+2*r}, 1.0, v{X+2*r}')
    for r in range(2): A(f'v_rcp_f32 v{X+2*r}, v{X+2*r}')
    for r in range(2): A(f'v_mov_b32 v{X+2*r+1}, v{TAG}')
    for r in range(2): A(f'v_cvt_pk_bf16_f32 v{X+2*r}, v{X+2*r}, 0')
    A('s_mov_b32 exec_lo, 0\ns_brev_b32 exec_hi, 1')
    V.issue(f"global_store_dwordx4 v{t7}, {vr(X,4)}, {ptr('ws')} sc1", 'g')
    A('s_mov_b32 exec_lo, s70\ns_mov_b32 exec_hi, 0')
    V.wait('st')
    V.issue(f"global_store_dword v{VFL}, v{TAG}, {ptr('ws')}", 'fl')
    A(f's_mov_b64 exec, -1\ns_mov_b32 s94, 0\ns_mov_b64 s[66:67], -1')
    A.stamp('drain', True)
    A.fence()
    A.label('Lpoll')
    A(f'''global_load_dword v{t7}, v{t3}, {ptr('ws')} sc1
s_add_u32 s94, s94, 1
s_waitcnt vmcnt(0)
v_cmp_ne_u32 vcc, v{TAG}, v{t7}
s_and_b64 s[66:67], s[66:67], vcc
s_cbranch_scc0 Lpolled
s_and_b32 s95, s94, {o['gmask']}
s_cbranch_scc1 Lpoll
s_mov_b32 exec_lo, s70
s_mov_b32 exec_hi, 0
global_store_dword v{VFL}, v{TAG}, {ptr('ws')} offset:2048 sc1
s_mov_b64 exec, -1
global_load_dword v{t7}, v{t3}, {ptr('ws')} offset:2048 sc1
s_waitcnt vmcnt(0)
v_cmp_ne_u32 vcc, v{TAG}, v{t7}
s_and_b64 s[66:67], s[66:67], vcc
s_cbranch_scc0 Lpolled
s_cmp_lt_u32 s94, 0x800000
s_cbranch_scc1 Lpoll''')
    A.fence()
    A.label('Lpolled')
    A.stamp('polled', True)
    V.q = []
    src = [t1, t5, t4, t6]
    for cv in range(4):
        V.issue(f'global_load_dwordx4 {vr(SD+8*cv,4)}, v{src[cv]}, s[64:65] {o.get("lflag","sc1")}', f'u{cv}')
        V.issue(f'global_load_dword v{SD+4+8*cv}, v{src[cv]}, s[64:65] offset:16 {o.get("lflag","sc1")}', f'u{cv}')
    def gloads():
        for Pp in range(4):
            V.issue(f"global_load_dwordx4 {vr(GQ+4*Pp,4)}, v{H+8+Pp}, {ptr('ws')} sc1", 'gq')
    for cv in range(4):
        D = SD + 8 * cv; E = 8 + 4 * cv
        V.wait(f'u{cv}')
        A(f'v_cndmask_b32 v{D+4}, v{D+4}, 0, s[92:93]')
        A(f'ds_write_b128 v{t2}, {vr(D,4)} offset:{UXS*cv + UXC}')
        for e in range(4): A(f'v_alignbit_b32 v{E+e}, v{D+e+1}, v{D+e}, 16')
        A(f'ds_write_b128 v{t2}, {vr(E,4)} offset:{UXS*cv}')
    A(f'ds_write_b32 v{VSW}, v{ONE} offset:{F_U}')
    A.stamp('staged')
    A('s_setprio 0\ns_mov_b32 s94, 0')
    if o.get('gwait', True):
        A.fence()
        A.label('Lallst')
        A(f'''ds_read_b128 v[32:35], v{VSR} offset:{F_U}
s_add_u32 s94, s94, 1
s_waitcnt lgkmcnt(0)
v_and_b32 v32, v32, v33
v_and_b32 v34, v34, v35
v_and_b32 v32, v32, v34
v_cmp_ne_u32 vcc, 0, v32
s_cbranch_vccnz Lallok
s_cmp_lt_u32 s94, 24
s_cbranch_scc1 Lallst''')
        A.fence()
        A.label('Lallok')
    A(f'''s_mov_b32 exec_lo, s70
s_mov_b32 exec_hi, 0
global_store_dword v{VFL}, v{TAG}, {ptr('ws')} offset:2048 sc1
s_mov_b64 exec, -1
s_mov_b32 s94, 0''')
    A.fence()
    A.label('Lgld')
    gloads()
    A('s_waitcnt vmcnt(0)')
    A(f'v_xor_b32 v20, v{TAG}, v{GQ+1}')
    for i in range(1, 8):
        A(f'v_xor_b32 v21, v{TAG}, v{GQ+2*i+1}\nv_or_b32 v20, v20, v21')
    A(f'''v_cmp_ne_u32 vcc, 0, v20
s_cbranch_vccz Lgok
s_add_u32 s94, s94, 1
s_cmp_lt_u32 s94, 0x200000
s_cbranch_scc1 Lgld''')
    A.fence()
    A.label('Lgok')
    A.stamp('gok')
    for Pp in range(4):
        A(f'v_lshl_or_b32 v{20+Pp}, v{GQ+4*Pp+2}, 16, v{GQ+4*Pp}')
        A(f'ds_write_b32 v{H}, v{20+Pp} offset:{16384 + 1024*Pp}')
    A('s_mov_b32 s60, 0')
    A.fence()
    vP, vN, vO, DP, SP, R = H, H + 1, H + 2, H + 4, H + 6, 24
    Y = R; U = R + 4; G = R + 8; UP = R + 10; KV = R + 14; YA = R + 18; YB = R + 22; GG = R + 26; TA = R + 28; O = R + 34
    A.label('Lepi')
    A(f'''ds_read_b32 v20, v{H+12}
s_waitcnt lgkmcnt(0)
v_cmp_ne_u32 vcc, 0, v20
s_cbranch_vccz Lepi''')
    for cv in range(4): A(f'ds_read_b32 v{U+cv}, v{vN} offset:{UXS*cv}')
    A(f'ds_read_b32 v{G}, v{vP} offset:16384\ns_waitcnt lgkmcnt(0)')
    for ch in range(2):
        hi2f(A, UP + ch, U + 2 * ch); lo2f(A, UP + 2 + ch, U + 2 * ch)
        hi2f(A, KV + ch, U + 2 * ch + 1); lo2f(A, KV + 2 + ch, U + 2 * ch + 1)
    lo2f(A, GG, G); hi2f(A, GG + 1, G)
    for i in range(4): A(f'v_mul_f32 v{TA+i}, v{UP+i}, v{GG+(i>>1)}')
    for i in range(4): A(f'v_mul_f32 v{KV+i}, v{KV+i}, v{SP+(i&1)}')
    for i in range(4): A(f'v_sub_f32 v{UP+i}, v{UP+i}, v{TA+i}')
    for i in range(4): A(f'v_mul_f32 v{TA+i}, v{TA+i}, v{DP+(i&1)}')
    for i in range(4): A(f'v_fmac_f32 v{TA+i}, v{UP+i}, v{KV+i}')
    A.fence()
    A.label('Lyw')
    A(f'''ds_read_b128 v[20:23], v{H+3}
s_waitcnt lgkmcnt(0)
v_and_b32 v20, v20, v21
v_and_b32 v22, v22, v23
v_and_b32 v20, v20, v22
v_cmp_ne_u32 vcc, 0, v20
s_cbranch_vccnz Lgo
s_sleep {o['sleep']}
s_branch Lyw''')
    A.win = []
    A.label('Lgo')
    for cv in range(4): A(f'ds_read_b32 v{Y+cv}, v{vP} offset:{4096*cv}')
    A(f'''v_add_u32 v{H}, 0x400, v{H}
v_subrev_u32 v{H+1}, 0x400, v{H+1}
v_add_u32 v{H+3}, 32, v{H+3}
v_add_u32 v{H+12}, 4, v{H+12}
s_waitcnt lgkmcnt(0)''')
    for ch in range(2):
        lo2f(A, YA + ch, Y + 2 * ch); hi2f(A, YA + 2 + ch, Y + 2 * ch)
        lo2f(A, YB + ch, Y + 2 * ch + 1); hi2f(A, YB + 2 + ch, Y + 2 * ch + 1)
    for i in range(4): A(f'v_fmac_f32 v{TA+i}, v{YA+i}, v{GG+(i>>1)}')
    for i in range(4): A(f'v_fmac_f32 v{TA+i}, v{YB+i}, v{UP+i}')
    for a_ in range(2): A(f'v_cvt_pk_bf16_f32 v{O+a_}, v{TA+2*a_}, v{TA+2*a_+1}')
    A(f'buffer_store_dword v{O}, v{vO}, s[56:59], s60 offen')
    A(f'buffer_store_dword v{O+1}, v{vO}, s[56:59], s60 offen offset:1024')
    A('s_add_u32 s60, s60, 0x80000\ns_cmp_lt_u32 s60, 0x200000')
    A.fence()
    A('s_cbranch_scc1 Lepi')
    A(f'''s_cmp_lg_u32 s2, 0
s_cbranch_scc1 Lfin
s_barrier
s_cmp_lg_u32 s3, 4
s_cbranch_scc1 Lfin
v_mov_b32 v20, {WS_EP}
s_mov_b64 exec, 1
global_store_dword v20, v{TAG}, {ptr('ws')} sc1''')
    A.label('Lfin')
    A.stamp_flush(0, 3)
    A('s_endpgm')
    A.win = []
    A.label('Lkw')
    V.q = []
    POS = [5, 6]; VPAR = 7; VPW = 8; FSC = 9
    ACC = [148, 152, 156, 160]
    CA = 200
    GI = 20
    VSW = 26; VSR = 27; ONE = 28
    PL = 51
    V.q = ['par'] * 5 + (['tch'] * 2 if o.get('touch', True) else [])
    A.stamp('issued')
    c1, c2, c3 = 10, 11, 29
    A(f'''s_and_b32 s44, s3, 1                   ; hw = w&1
v_lshrrev_b32 v{t1}, 1, v0
v_lshlrev_b32 v{t1}, 4, v{t1}
v_and_b32 v{t6}, 1, v0
v_lshl_add_u32 v{t1}, v{t6}, 2, v{t1}
v_add_u32 v{t1}, {L_PAR}, v{t1}
s_mov_b32 s50, {f2u(14.0):#x}
v_lshlrev_b32 v{c1}, 3, v{IDX}
v_cvt_f32_u32 v{POS[0]}, v{c1}         ; pL = 8 j
v_subrev_u32 v{c1}, 8, v{IDX}
v_lshlrev_b32 v{c2}, 9, v{c1}
v_lshlrev_b32 v{c1}, 2, v{c1}
v_add_u32 v{c1}, 0x200, v{c1}
v_cmp_gt_u32 vcc, 10, v{IDX}
v_cndmask_b32 v{c1}, v{c2}, v{c1}, vcc
v_cmp_gt_u32 vcc, 8, v{IDX}
v_cndmask_b32 v{c1}, v{c1}, v{IDX}, vcc
v_cvt_f32_u32 v{POS[1]}, v{c1}         ; pR
s_lshl_b32 s94, s3, 9
s_add_u32 s94, s94, {L_PAR}
v_lshlrev_b32 v{VPAR}, 5, v{KG}
v_add_u32 v{VPAR}, s94, v{VPAR}
v_mov_b32 v33, v{POS[0]}
v_mov_b32 v32, v{POS[0]}
v_mov_b32 v34, v{POS[1]}
v_mov_b32 v35, v{POS[1]}
v_mov_b32 v36, s50
v_mov_b32 v37, s50
s_mov_b32 s51, 0
s_lshl_b32 s94, s3, 2
s_add_u32 s94, s94, {L_FLG}
v_mov_b32 v{VSW}, s94
s_lshl_b32 s94, s42, 3
s_add_u32 s94, s94, {L_FLG}
v_mov_b32 v{VSR}, s94
v_mov_b32 v{ONE}, 1''')
    for a in ACC:
        for i in range(4): A(f'v_mov_b32 v{a+i}, 0')
    A(f'''s_mul_i32 s45, s42, 3072
s_add_u32 s45, s45, {L_KC}
v_lshlrev_b32 v{c3}, 2, v{LANE}
v_add_u32 v{c3}, {704*4}, v{c3}        ; dummy
v_lshlrev_b32 v{c1}, 5, v{IDX}
v_lshl_add_u32 v{c1}, v{KG}, 4, v{c1}
v_lshrrev_b32 v{c2}, 1, v{c1}
v_add_u32 v{c2}, 0x400, v{c2}
v_lshlrev_b32 v{t2}, 3, v{IDX}
v_add_u32 v{t2}, {384*4}, v{t2}
v_lshlrev_b32 v{t3}, 2, v{IDX}
v_add_u32 v{t3}, {512*4}, v{t3}
v_cmp_eq_u32 vcc, 2, v{KG}
v_cmp_eq_u32 s[92:93], 3, v{KG}
v_cndmask_b32 v{CA}, v{c1}, v{t2}, vcc
v_add_u32 v{t4}, 0x200, v{t3}
v_cndmask_b32 v{CA}, v{CA}, v{t4}, s[92:93]
v_cndmask_b32 v{CA+1}, v{c1}, v{t2}, vcc
v_add_u32 v{CA+1}, 4, v{CA+1}
v_cndmask_b32 v{CA+1}, v{CA+1}, v{c3}, s[92:93]
v_add_u32 v{t4}, 8, v{c1}
v_cndmask_b32 v{CA+2}, v{t4}, v{t3}, vcc
v_cndmask_b32 v{CA+2}, v{CA+2}, v{c3}, s[92:93]
v_add_u32 v{t4}, 12, v{c1}
v_add_u32 v{t5}, 0x100, v{t3}
v_cndmask_b32 v{CA+3}, v{t4}, v{t5}, vcc
v_cndmask_b32 v{CA+3}, v{CA+3}, v{c3}, s[92:93]
v_mov_b32 v{t4}, 0x200
v_mov_b32 v{t5}, 0x80
v_cndmask_b32 v{t5}, v{t4}, v{t5}, vcc
v_cndmask_b32 v{t7}, v{t5}, 64, s[92:93]         ; step r0
v_cndmask_b32 v{t5}, v{t5}, 0, s[92:93]          ; step r1
v_cndmask_b32 v{t4}, v{t4}, 64, vcc
v_cndmask_b32 v{t4}, v{t4}, 0, s[92:93]          ; step r2,r3
v_add_u32 v{CA+4}, v{CA}, v{t7}
v_add_u32 v{CA+5}, v{CA+1}, v{t5}
v_add_u32 v{CA+6}, v{CA+2}, v{t4}
v_add_u32 v{CA+7}, v{CA+3}, v{t4}
v_add_u32 v{CA+8}, v{CA+4}, v{t7}
v_add_u32 v{CA+9}, v{CA+5}, v{t5}
v_add_u32 v{CA+10}, v{CA+6}, v{t4}
v_add_u32 v{CA+11}, v{CA+7}, v{t4}
v_add_u32 v{CA+12}, v{CA+8}, v{t7}
v_add_u32 v{CA+13}, v{CA+9}, v{t5}
v_add_u32 v{CA+14}, v{CA+10}, v{t4}
v_add_u32 v{CA+15}, v{CA+11}, v{t4}
v_cmp_gt_u32 vcc, 2, v{KG}
v_cndmask_b32 v{CA+8}, v{CA+8}, v{c2}, vcc
v_cndmask_b32 v{CA+9}, v{CA+9}, v{c3}, vcc
v_add_u32 v{t4}, 4, v{c2}
v_cndmask_b32 v{CA+10}, v{CA+10}, v{t4}, vcc
v_cndmask_b32 v{CA+11}, v{CA+11}, v{c3}, vcc
v_add_u32 v{t4}, 0x100, v{c2}
v_cndmask_b32 v{CA+12}, v{CA+12}, v{t4}, vcc
v_cndmask_b32 v{CA+13}, v{CA+13}, v{c3}, vcc
v_add_u32 v{t4}, 0x104, v{c2}
v_cndmask_b32 v{CA+14}, v{CA+14}, v{t4}, vcc
v_cndmask_b32 v{CA+15}, v{CA+15}, v{c3}, vcc''')
    A('s_cmp_eq_u32 s44, 0\ns_cselect_b64 s[92:93], -1, 0')
    for i in range(8): A(f'v_cndmask_b32 v{CA+i}, v{CA+8+i}, v{CA+i}, s[92:93]\nv_add_u32 v{CA+i}, s45, v{CA+i}')
    A(f'v_and_b32 v{c1}, 0x7f, v0\nv_lshlrev_b32 v{c1}, 1, v{c1}\ns_sub_u32 s94, s45, {133*128*4}')
    for n, m in enumerate((1, 2, 4)):
        for e in range(2):
            g = GI + 2 * n + e
            A(f'''v_add_u32 v{g}, {256*m+e}, v{c1}
v_cvt_f32_u32 v{g}, v{g}
v_cvt_pk_bf16_f32 v{g}, v{g}, 0
v_lshl_add_u32 v{g}, v{g}, 2, s94''')
    V.wait('par')
    A.stamp('par')
    for i in range(5): A(f'v_lshlrev_b32 v{PL+i}, 16, v{PL+i}')
    A(f'v_max_f32 v{t5}, |v{PL+3}|, |v{PL+4}|')
    bfexp(A, PL, PL, t2, t3, 48, 49)
    for sh in (1, 2): A(f'v_max_f32_dpp v{t5}, v{t5}, v{t5} row_shr:{sh} row_mask:0xf bank_mask:0xf')
    bfexp(A, PL + 1, PL + 1, t2, t3, 48, 49)
    for sh in (4, 8): A(f'v_max_f32_dpp v{t5}, v{t5}, v{t5} row_shr:{sh} row_mask:0xf bank_mask:0xf')
    A(f'''v_mul_f32 v{PL+1}, v{PL+1}, v{PL}
v_mul_f32 v{PL+2}, v{PL+2}, v{PL}
v_max_f32_dpp v{t5}, v{t5}, v{t5} row_bcast:15 row_mask:0xa bank_mask:0xf
v_mul_f32 v64, {f2u(-L2E):#x}, v{PL+1}
v_mul_f32 v65, {f2u(INV2PI):#x}, v{PL+2}
v_max_f32_dpp v{t5}, v{t5}, v{t5} row_bcast:31 row_mask:0xc bank_mask:0xf
v_mul_f32 v68, 0x43000000, v65
v_mul_f32 v69, 0x43000000, v64
v_readlane_b32 s94, v{t5}, 63
v_fract_f32 v68, v68
v_exp_f32 v69, v69
v_cos_f32 v70, v68
v_sin_f32 v71, v68
s_lshr_b32 s94, s94, 23
s_max_u32 s94, s94, 13
s_sub_u32 s95, 267, s94
s_lshl_b32 s95, s95, 23
s_sub_i32 s94, s94, 153
v_mul_f32 v66, s95, v{PL+3}
v_mul_f32 v67, s95, v{PL+4}
v_ldexp_f32 v{FSC}, v{PL}, s94
v_mul_f32 v70, v69, v70
v_mul_f32 v71, v69, v71
v_rndne_f32 v74, v65
v_sub_f32 v65, v65, v74
v_mul_f32 v72, v70, v70
v_mul_f32 v73, v70, v71
v_fma_f32 v72, -v71, v71, v72
v_add_f32 v73, v73, v73
ds_write2_b32 v{t1}, v64, v65 offset0:0 offset1:2
v_add_u32 v{t6}, 0x800, v{t1}
ds_write2_b32 v{t6}, v66, v67 offset0:0 offset1:2
v_add_u32 v{t6}, 0x1000, v{t1}
ds_write2_b32 v{t6}, v70, v71 offset0:0 offset1:2
v_add_u32 v{t6}, 0x1800, v{t1}
ds_write2_b32 v{t6}, v72, v73 offset0:0 offset1:2''')
    A('s_waitcnt lgkmcnt(0)')
    A.stamp('kstart', True)
    A.fence()
    PRB = [64, 164]
    XA = [96, 100]; LB = [104, 196]
    T = 108
    def pread(buf):
        for jp in range(2):
            for pl in range(4): A(f'ds_read_b128 {vr(PRB[buf]+16*jp+4*pl,4)}, v{VPAR} offset:{2048*pl + 16*jp + 128*buf}')
    pread(0)
    A.label('Lkgen')
    if o['ssm'] == 'Kmid':
        A('s_cmp_lg_u32 s51, 1\ns_cbranch_scc1 Lnossm')
        ssm_dma(38)
        A.fence()
        A.label('Lnossm')
    for buf in range(2):
        PR = PRB[buf]
        def two(fmt, fmt1=None):
            for jp in range(2):
                t = T + 20 * jp; p_ = PR + 16 * jp
                names = dict(a=p_, b=p_+2, cr=p_+4, ci=p_+6, wr=p_+8, wi=p_+10, zr=p_+12, zi=p_+14, thL=t, thR=t+2, mL=t+4, mR=t+6, cL=t+8, sL=t+10, cR=t+12, sR=t+14, p=t+16, q=t+18, x=t, y=t+2)
                if fmt1 is None:
                    A(fmt.format(**{k: vr(v, 2) for k, v in names.items()}))
                else:
                    for e in range(2):
                        A(fmt1.format(j=2*jp+e, **{k: f'v{v+e}' for k, v in names.items()}))
        one = lambda f: two(None, f)
        def cvt(dst, o1, o2, neg=''):
            for k in range(4): A(f'v_cvt_pk_f16_f32 v{dst+k}, v{T+20*(k>>1)+o1+(k&1)}, {neg}v{T+20*(k>>1)+o2+(k&1)}')
        NEG = ' neg_lo:[1,0,0] neg_hi:[1,0,0]'
        A('s_waitcnt lgkmcnt(0)')
        if buf == 1: A(f'v_add_u32 v{VPAR}, 0x100, v{VPAR}')
        pread(1 - buf)
        two('v_pk_mul_f32 {thR}, {b}, v[34:35]'); two('v_pk_mul_f32 {thL}, {b}, v[32:33]')
        two('v_pk_fma_f32 {mL}, {a}, v[32:33], v[36:37]'); two('v_pk_mul_f32 {mR}, {a}, v[34:35]')
        one('v_fract_f32 {thR}, {thR}')
        one('v_exp_f32 {mL}, {mL}'); one('v_cos_f32 {cL}, {thL}'); one('v_sin_f32 {sL}, {thL}')
        one('v_cos_f32 {cR}, {thR}')
        two('v_pk_mul_f32 {cL}, {mL}, {cL}'); two('v_pk_mul_f32 {sL}, {mL}, {sL}')
        one('v_sin_f32 {sR}, {thR}')
        two('v_pk_mul_f32 {p}, {cL}, {wr}'); two('v_pk_mul_f32 {q}, {cL}, {wi}')
        one('v_exp_f32 {mR}, {mR}')
        two('v_pk_mul_f32 {x}, {cr}, {cR}'); two('v_pk_mul_f32 {y}, {cr}, {sR}')
        two('v_pk_fma_f32 {p}, {sL}, {wi}, {p}' + NEG); two('v_pk_fma_f32 {q}, {sL}, {wr}, {q}')
        two('v_pk_fma_f32 {x}, {ci}, {sR}, {x}' + NEG); two('v_pk_fma_f32 {y}, {ci}, {cR}, {y}')
        cvt(LB[0], 8, 10)
        two('v_pk_mul_f32 {x}, {mR}, {x}'); two('v_pk_mul_f32 {y}, {mR}, {y}')
        cvt(LB[1], 16, 18)
        two('v_pk_mul_f32 {cR}, {x}, {zr}'); two('v_pk_mul_f32 {sR}, {x}, {zi}')
        cvt(XA[0], 0, 2, '-')
        two('v_pk_fma_f32 {cR}, {y}, {zi}, {cR}' + NEG); two('v_pk_fma_f32 {sR}, {y}, {zr}, {sR}')
        for bb in range(2): A(f'v_mfma_f32_16x16x32_f16 {vr(ACC[bb],4)}, {vr(XA[0],4)}, {vr(LB[bb],4)}, {vr(ACC[bb],4)}')
        cvt(XA[1], 12, 14, '-')
        if buf == 1: A('s_add_u32 s51, s51, 1\ns_cmp_lt_u32 s51, 2')
        for bb in range(2): A(f'v_mfma_f32_16x16x32_f16 {vr(ACC[2+bb],4)}, {vr(XA[1],4)}, {vr(LB[bb],4)}, {vr(ACC[2+bb],4)}')
    A('s_cbranch_scc1 Lkgen')
    A.stamp('k1')
    if o['ssm'] == 'Kend': ssm_dma(38)
    A(f'''v_and_b32 v{t3}, 0x7f, v0
v_lshlrev_b32 v{t3}, 2, v{t3}
s_mul_i32 s94, s42, {2*KLS}
s_add_u32 s94, s94, {L_KL + 64}
v_add_u32 v{t4}, s94, v{t3}
v_add_u32 v{t5}, {KLC - 4}, v{t4}
v_lshl_add_u32 v{t3}, v{t3}, 1, s45
s_lshl_b32 s95, s3, 11
s_add_u32 s95, s95, {L_RED}
v_add_u32 v{t1}, s95, v{t0}
s_xor_b32 s95, s3, 1
s_lshl_b32 s95, s95, 11
s_add_u32 s95, s95, {L_RED}
v_add_u32 v{t2}, s95, v{t0}
s_waitcnt lgkmcnt(0)''')
    for i in range(8): A(f'v_cndmask_b32 v{64+i}, v{148+i}, v{156+i}, s[92:93]')
    for i in range(8): A(f'v_mul_f32 v{64+i}, v{FSC}, v{64+i}')
    A(f'ds_write_b128 v{t1}, v[64:67]\nds_write_b128 v{t1}, v[68:71] offset:1024')
    A(f'ds_write_b32 v{VSW}, v{ONE} offset:{F_K}')
    for i in range(8): A(f'v_cndmask_b32 v{72+i}, v{156+i}, v{148+i}, s[92:93]')
    sync(F_K, 2, None, VSR, ONE, 30)
    A(f'ds_read_b128 v[64:67], v{t2}\nds_read_b128 v[68:71], v{t2} offset:1024')
    for i in range(8):
        if i % 4 == 0: A(f's_waitcnt lgkmcnt({1 if i == 0 else 4})')
        A(f'v_fma_f32 v{72+i}, v{72+i}, v{FSC}, v{64+i}')
        A(f'ds_write_b32 v{CA+i}, v{72+i}')
    sync(F_K + 16, 2, VSW, VSR, ONE, 30)
    A.stamp('kred', True)
    RD = 64
    A(f'ds_read_b64 v[64:65], v{t3}')
    srcs = {1: (GI, 0), 2: (GI + 2, 0), 3: (GI + 2, 256), 4: (GI + 4, 0), 5: (GI + 4, 128), 6: (GI + 4, 256), 7: (GI + 4, 384)}
    for m in range(1, 8):
        g, off = srcs[m]
        A(f'ds_read_b32 v{RD+2*m}, v{g} offset:{off}\nds_read_b32 v{RD+2*m+1}, v{g+1} offset:{off}')
    for m in range(8):
        if m in (0, 4): A(f's_waitcnt lgkmcnt({8 if m == 0 else 0})')
        A(f'v_cvt_pk_bf16_f32 v{80+m}, v{RD+2*m}, v{RD+2*m+1}')
        if m == 3: A('s_waitcnt lgkmcnt(0)')
    for m in range(8):
        A(f'ds_write_b32 v{t4}, v{80+m} offset:{512*m}\nds_write_b32 v{t5}, v{80+m} offset:{512*m}')
        if m == 5: A('s_waitcnt lgkmcnt(4)')
    if o['ssm'] != 'T': V.wait('ssmk')
    sync(F_K + 32, 2, VSW, VSR, ONE, 30)
    if o['ssm'] == 'T': sync(F_S, 2, None, VSR, ONE, 30)
    A.stamp('kdone', True)
    A(f'''s_mul_i32 s94, s3, {KLS}
s_add_u32 s94, s94, {L_KL}
v_lshl_add_u32 v4, v{KG}, 2, v{IDX}
v_lshlrev_b32 v4, 2, v4
v_and_b32 v{t4}, 1, v{IDX}
v_mov_b32 v{t5}, {KLC}
v_cmp_eq_u32 vcc, 1, v{t4}
v_cndmask_b32 v{t5}, v{t5}, 4, vcc
v_add3_u32 v4, v4, v{t5}, s94          ; vK
v_mul_u32_u24 v5, {UXC}, v{t4}
v_lshrrev_b32 v{t4}, 1, v{IDX}
v_lshlrev_b32 v{t4}, 6, v{t4}
v_sub_u32 v5, v5, v{t4}
v_lshl_add_u32 v5, v{KG}, 4, v5
s_mul_i32 s94, s3, {UXS}
s_add_u32 s94, s94, {L_UX + 448}
v_add_u32 v5, s94, v5                  ; vU
s_lshl_b32 s94, s3, 12
s_add_u32 s94, s94, {L_Y}
v_lshlrev_b32 v6, 2, v{IDX}
v_lshl_add_u32 v6, v{KG}, 7, v6
v_add_u32 v6, s94, v6                  ; vY
v_mov_b32 v7, v{VSW}
v_mov_b32 v1, 1
v_mov_b32 v2, {L_FLG + F_U}''')
    if o['prio']: A(f"s_setprio {o['prio']}")
    mfma_phase(A, 4, 5, 6, 7, 1, 2, o)
    A.stamp_flush(0, 3)
    A.label('Lend')
    A('s_endpgm')
    HDR = open('gated_mix__ssm_conv_s4d__ssm_conv_h3__prompt.s.ref').read().split('; Override launch')[0]
    s = HDR + f'; @launch grid=(256,1,1) block=(512,1,1) lds={L_END}\n.amdgcn_target "amdgcn-amd-amdhsa--gfx950"\n.text\n' + A.text()
    s += '.section .rodata,"a"\n' + kdesc(KN, 256)
    if o.get('align', 4): s = align(s, nopmin=o.get('align', 4))[0]
    if o.get('ont', True):
        import re
        s = re.sub(r'(buffer_store_dword v\d+, v\d+, s\[56:59\], s60 offen[a-z:0-9 ]*)$', r'\1 nt', s, flags=re.M)
    open(path, 'w').write(s)
    return L_END, A.nops

SETS = dict(a=['issued', 'par', 'kstart', 'k1', 'tile', 'bar1'], b=['tst', 'drain', 'polled', 'staged', 'kred', 'kdone'],
            c=['kpre', 'ug0', 'ug1', 'ug2', 'ug3', 'gok'], d=['ug0', 'pass0', 'pass1', 'pass2', 'polled', 'staged'])
if __name__ == '__main__':
    out = sys.argv[1]
    print(gen(out))
    if len(sys.argv) > 2:
        for k, v in SETS.items(): gen(out.replace('.s', f'_{k}.s'), v)
        gen(out.replace('.s', '_x0.s'), None, dict(XT=0))
        gen(out.replace('.s', '_x32.s'), None, dict(XT=32))
        gen(out.replace('.s', '_n99.s'), None, dict(NPRE=99))
        gen(out.replace('.s', '_n32.s'), None, dict(NPRE=32))
        gen(out.replace('.s', '_late.s'), None, dict(late=True))
        gen(out.replace('.s', '_km.s'), None, dict(ssm='Kmid'))
        gen(out.replace('.s', '_cyc.s'), ['ug0', 'ug1', 'ug2', 'ug3', 'pass2', 'pass1'], dict(cyc=True))
        gen(out.replace('.s', '_gw0.s'), None, dict(gwait=False))
        gen(out.replace('.s', '_tp1.s'), None, dict(tprio=0))
        gen(out.replace('.s', '_sl4.s'), None, dict(sleep=4, gwait=False))
        for nm in ('tile', 'drain', 'staged', 'par', 'k1', 'kdone', 'ug0', 'ug3', 'END', 'issued', 'polled', 'gok'):
            gen(out.replace('.s', f'_e{nm}.s'), [nm], dict(enc=True))
```

```python
from asmlib import *
import k2

def mfma_phase(A, vK, vU, vY, vF, vOne, vUF, o, base=8):
    NUR = o.get('NUR', 8); NKR = o.get('NKR', 4); LA = o.get('LA', 14); NPRE = o.get('NPRE', 99); MAXQ = o.get('MAXQ', 13)
    XT = o.get('XT', 24)
    ml = []
    for Pp in range(4):
        t0, t1 = 2 * Pp, 2 * Pp + 1
        tail = []
        for c in range(8):
            for b in range(t1, -1, -1):
                e = 8 * b - c
                m1 = (Pp, t1, e, 8 * (t1 - b) + c)
                defer = Pp == 3 and XT and (b == t1 or (t1 - b) <= XT // 8)
                if defer: tail.append((4, t1, e, m1[3]))
                else: ml.append(m1)
                if b <= t0: ml.append((Pp, t0, e, 8 * (t0 - b) + c))
        ml += tail
    seg_end = {}
    for mi, x in enumerate(ml): seg_end[x[1]] = mi
    ACC = base; TMP = ACC + 16; UR = TMP + 4; KR = UR + 4 * NUR; KC = KR + 4 * NKR
    NC = (252 - KC) // 4
    NPRE = min(NPRE, NC)
    FR = 252
    UFS = o.get('UFS', 4)
    class R: pass
    loads = []; cur = {}
    uring = [None] * NUR; kring = [None] * NKR; ui = 0; ki = 0
    use = []
    late = []
    def mk(kind, idx, reg, mi, prev, key):
        r = R(); r.kind = kind; r.idx = idx; r.reg = reg; r.first = mi; r.last = mi; r.prev = prev; r.key = key; r.issued = False
        if prev is not None: cur.pop(prev.key, None)
        cur[key] = r; return r
    for mi, (Pp, t, e, s) in enumerate(ml):
        ku = ('U', e, Pp)
        if ku not in cur:
            uring[ui % NUR] = mk('U', e, UR + 4 * (ui % NUR), mi, uring[ui % NUR], ku); loads.append(uring[ui % NUR]); ui += 1
        cur[ku].last = mi
        if s < NC:
            kk = ('K', s)
            if kk not in cur:
                r = mk('K', s, KC + 4 * s, mi, None, kk)
                if s < NPRE: r.issued = True
                else: late.append(r)
        else:
            kk = ('K', s, Pp)
            if kk not in cur:
                kring[ki % NKR] = mk('K', s, KR + 4 * (ki % NKR), mi, kring[ki % NKR], kk); loads.append(kring[ki % NKR]); ki += 1
        cur[kk].last = mi
        use.append((cur[ku], cur[kk]))
    for sg in range(NPRE):
        A(f'ds_read_b64 {vr(KC+4*sg,2)}, v{vK} offset:{64*sg}')
        A(f'ds_read_b64 {vr(KC+4*sg+2,2)}, v{vK} offset:{64*sg+8}')
        if sg % 3 == 2 and sg > 3: A('s_waitcnt lgkmcnt(8)')
    A.stamp('kpre')
    fifo = []
    def wait_for(recs):
        n = None
        for r in recs:
            for pos, x in enumerate(fifo):
                if x is r:
                    k = len(fifo) - 1 - pos
                    n = k if n is None else min(n, k)
        if n is not None:
            A(f's_waitcnt lgkmcnt({n})')
            del fifo[:len(fifo) - n]
    flagrec = {}
    def gate_pre(g):
        r = object(); flagrec[g] = r
        A(f'ds_read_b32 v{FR}, v{vUF} offset:{UFS*g}'); fifo.append(r)
    def gate(g):
        if g in flagrec:
            wait_for([flagrec[g]])
            A(f'v_cmp_ne_u32 vcc, 0, v{FR}\ns_cbranch_vccnz Lugd{g}')
        else:
            del fifo[:]
        w = list(A.win)
        A.label(f'Lug{g}')
        A(f'''ds_read_b32 v{FR}, v{vUF} offset:{UFS*g}
s_waitcnt lgkmcnt(0)
v_cmp_ne_u32 vcc, 0, v{FR}
s_cbranch_vccz Lug{g}''')
        if g in flagrec:
            A.label(f'Lugd{g}')
            A.win = w
        A.stamp(f'ug{g}', g == 0)
    def issue(r):
        while len(fifo) >= MAXQ - (0 if r.kind == 'U' else 1): wait_for([fifo[0]])
        if r.kind == 'U':
            A(f"ds_read_b128 {vr(r.reg,4)}, v{vU} offset:{64*(56-r.idx)}"); fifo.append(r)
        else:
            A(f"ds_read_b64 {vr(r.reg,2)}, v{vK} offset:{64*r.idx}"); fifo.append(object())
            A(f"ds_read_b64 {vr(r.reg+2,2)}, v{vK} offset:{64*r.idx+8}"); fifo.append(r)
        r.issued = True
    grp = lambda r: max(0, (r.idx + 7) // 16)
    firstneed = {}
    for r in loads:
        if r.kind == 'U': firstneed.setdefault(grp(r), r.first)
    have = -1
    li = 0; lj = 0; started = set(); pass_end = {}
    for mi, (Pp, t, e, s) in enumerate(ml): pass_end[Pp] = mi
    def ywrite(t):
        a = ACC + 4 * (t & 3); tm = TMP + 2 * (t & 1)
        A(f'v_cvt_pk_bf16_f32 v{tm}, v{a}, v{a+1}\nv_cvt_pk_bf16_f32 v{tm+1}, v{a+2}, v{a+3}')
        A(f'ds_write2_b32 v{vY}, v{tm}, v{tm+1} offset0:{128*(t&1)} offset1:{128*(t&1)+16}'); fifo.append(object())
        A(f'ds_write_b32 v{vF}, v{vOne} offset:{16*t}'); fifo.append(object())
        if t & 1 and t < 7: A(f'v_add_u32 v{vY}, 0x400, v{vY}')
    wr_at = {}
    for t in range(7):
        at = max(seg_end[t], seg_end[t ^ 1] if t < 6 else 0) + 4
        if t == 6 and at >= len(ml): at = -6
        wr_at.setdefault(at, []).append(t)
    for mi, (Pp, t, e, s) in enumerate(ml):
        if mi in wr_at:
            lim = MAXQ - 5
            while len(fifo) > lim: wait_for([fifo[len(fifo) - lim - 1]])
            for tt in wr_at[mi]: ywrite(tt)
            A.stamp(f'pass{wr_at[mi][0] // 2}')
        for g in (1, 2, 3):
            if g not in flagrec and have == g - 1 and mi >= firstneed[g] - LA - 6 and len(fifo) < MAXQ - 1: gate_pre(g)
        issued = 0
        while li < len(loads):
            r = loads[li]
            if r.prev is not None and r.prev.last >= mi: break
            must = r.first <= mi
            if not must and (r.first > mi + LA or issued >= o.get('PER', 2) or len(fifo) >= MAXQ - 1): break
            if r.kind == 'U':
                while have < grp(r):
                    have += 1; gate(have)
            issue(r); li += 1; issued += 1
        while lj < len(late) and (late[lj].first <= mi + 6 or (issued == 0 and len(fifo) < MAXQ - 3 and have >= 0)):
            issue(late[lj]); lj += 1; issued += 1
            if not (lj < len(late) and late[lj].first <= mi + 6): break
        ru, rk = use[mi]
        assert ru.issued and rk.issued
        wait_for([ru, rk])
        a = ACC + 4 * (t & 3)
        c = vr(a, 4) if t in started else '0'
        started.add(t)
        A(f"v_mfma_f32_16x16x32_bf16 {vr(a,4)}, {vr(ru.reg,4)}, {vr(rk.reg,4)}, {c}")
    if -6 in wr_at: ywrite(6)
    ywrite(7)

def bench(path, o, old=False):
    import fused14 as F
    from align import align
    KN = F.KN
    A = Asm()
    A.raw(f'.globl {KN}\n.p2align 8\n.type {KN},@function\n{KN}:')
    A(f'''s_cmp_ge_u32 s2, 256
s_cbranch_scc1 Lend
s_load_dwordx2 s[4:5], s[0:1], 120
v_lshrrev_b32 v40, 6, v0
v_readfirstlane_b32 s3, v40
v_and_b32 v2, 15, v0
v_bfe_u32 v3, v0, 4, 2
s_mul_i32 s94, s3, {F.KLS}
v_lshl_add_u32 v4, v3, 2, v2
v_lshlrev_b32 v4, 2, v4
v_and_b32 v44, 1, v2
v_mov_b32 v45, {F.KLC}
v_cmp_eq_u32 vcc, 1, v44
v_cndmask_b32 v45, v45, 4, vcc
v_add3_u32 v4, v4, v45, s94
v_mul_u32_u24 v5, {F.UXC}, v44
v_lshrrev_b32 v44, 1, v2
v_lshlrev_b32 v44, 6, v44
v_sub_u32 v5, v5, v44
v_lshl_add_u32 v5, v3, 4, v5
s_mul_i32 s94, s3, {F.UXS}
s_add_u32 s94, s94, {F.L_UX + 448}
v_add_u32 v5, s94, v5
s_lshl_b32 s94, s3, 12
s_add_u32 s94, s94, {F.L_Y}
v_lshlrev_b32 v6, 2, v2
v_lshl_add_u32 v6, v3, 7, v6
v_add_u32 v6, s94, v6
v_mov_b32 v7, {F.L_FLG}
v_mov_b32 v1, 1
v_mov_b32 v2, {F.L_FLG + F.F_U}
ds_write_b32 v2, v1
ds_write_b32 v2, v1 offset:4
ds_write_b32 v2, v1 offset:8
ds_write_b32 v2, v1 offset:12
s_waitcnt lgkmcnt(0)
s_barrier
s_memtime s[20:21]
s_waitcnt lgkmcnt(0)''')
    if old:
        import fused4
        fused4.mfma_phase(A, 4, 5, 6, 7, 1, 2, o)
    else:
        mfma_phase(A, 4, 5, 6, 7, 1, 2, o)
    A(f'''s_waitcnt lgkmcnt(0)
s_memtime s[22:23]
s_waitcnt lgkmcnt(0)
s_sub_u32 s24, s22, s20
s_mov_b32 s12, s4
s_mov_b32 s13, s5
s_mov_b32 s14, 256
s_mov_b32 s15, 0x00020000
v_lshrrev_b32 v1, 6, v0
v_lshlrev_b32 v1, 2, v1
v_mov_b32 v2, s24
s_cmp_lg_u32 s2, 37
s_cbranch_scc1 Lend
buffer_store_dword v2, v1, s[12:15], 0 offen''')
    A.label('Lend')
    A('s_endpgm')
    s = f'; @launch grid=(256,1,1) block=(256,1,1) lds={F.L_END}\n.amdgcn_target "amdgcn-amd-amdhsa--gfx950"\n.text\n' + A.text() + '.section .rodata,"a"\n' + kdesc(KN, 256)
    if o.get('align'): s = align(s, nopmin=o['align'])[0]
    open(path, 'w').write(s)
if __name__ == '__main__':
    E = 'exp/'
    bench(E + 'mm_x0.s', dict(NPRE=16, XT=0))
    bench(E + 'mm_x24.s', dict(NPRE=16, XT=24))
    bench(E + 'mm_x32.s', dict(NPRE=16, XT=32))
```

```python
import sys, struct
from asmlib import *
from k1 import f2u, L2E, L2E_HI, L2E_LO, INV2PI, load_ptrs, P, ptr, rnd, lo2f, hi2f, bfexp
import k2, k1
k1.HIMASK[0] = 's88'
from align import align
from fused4 import VM
from mfma2 import mfma_phase
KN = 'gated_mix__ssm_conv_s4d__ssm_conv_h3__prompt_kernel'

WS_UR = 0; WS_KVR = 0x240080; WS_IN = 5 << 20; WS_GT = WS_IN + 1024; WS_EP = WS_IN + (1 << 20)
KLC = 4224; KLS = 2 * KLC
UXC = 4576; UXS = 2 * UXC
L_KL = 0
L_UX = 4 * KLS
L_Y = L_UX + 4 * UXS
L_G = L_Y + 16384
L_RED = L_G + 4096
L_KC = L_RED + 8192
L_TK = L_KC + 6144
L_TV = L_TK + 9 * 1040
L_TU = L_TV + 8 * 1040
L_PAR = L_TU + 8 * 1040
L_PARW = L_PAR + 4096
L_FLG = L_PARW + 4096
L_END = L_FLG + 512
F_U = 128; F_T = 192; F_K = 208; F_S = 256
assert all(x % 16 == 0 for x in (L_UX, L_Y, L_RED, L_KC, L_TK, L_TV, L_TU, L_PAR, L_PARW, L_FLG))

def gen(path, stamps=None, opts=None):
    o = dict(NPRE=20, prefetch=True, prio=2, sleep=1, tprio=3, ssm='T', gmask=15)
    o.update(opts or {})
    A = Asm(); A.stamps = bool(stamps); A.stamp_sel = stamps
    if o.get('cyc'): A.stamp_op = 's_memtime'
    A.dbgflush = o.get('dbg', False)
    A.encflush = o.get('enc', False)
    V = VM(A)
    PIT = o.get('pitch', 4096)
    A.raw(f'.globl {KN}\n.p2align 8\n.type {KN},@function\n{KN}:')
    A('s_cmp_ge_u32 s2, 256\ns_cbranch_scc1 Lend')
    A.stamp_init()
    load_ptrs(A)
    A('s_mov_b32 s88, 0xffff0000')
    LANE, IDX, KG = 1, 2, 3
    t0, t1, t2, t3, t4, t5, t6, t7 = 40, 41, 42, 43, 44, 45, 46, 47
    if o['prefetch']:
        A(f'''s_cmp_ge_u32 s2, {o.get('pfwg', 256)}
s_cbranch_scc1 Lnopf
s_getpc_b64 s[68:69]
v_lshlrev_b32 v49, 4, v0
v_add_u32 v50, 0x2000, v49
v_min_u32 v50, Lend-{KN}-16, v50
s_and_b32 s68, s68, 0xffffff00
global_load_dwordx4 v[56:59], v49, s[68:69]
global_load_dwordx4 v[60:63], v50, s[68:69]
Lnopf:''')
    A(f'''v_lshrrev_b32 v{t0}, 6, v0
v_readfirstlane_b32 s3, v{t0}          ; wave
v_and_b32 v{LANE}, 63, v0
v_and_b32 v{IDX}, 15, v0
v_bfe_u32 v{KG}, v0, 4, 2
v_lshlrev_b32 v{t0}, 4, v{LANE}        ; lane*16
s_and_b32 s4, s2, 7                    ; s
s_lshr_b32 s5, s2, 3                   ; jq
s_lshl_b32 s6, s4, 6
s_lshl_b32 s7, s5, 1
s_add_u32 s6, s6, s7                   ; d0
s_and_b32 s43, s3, 3                   ; w&3
s_cmp_ge_u32 s3, 4
s_cbranch_scc1 Ltw''')
    PL = 51
    A(f'''s_lshl_b32 s70, s6, 8
v_lshlrev_b32 v{t1}, 1, v0
v_add_u32 v{t1}, s70, v{t1}
s_lshr_b32 s42, s3, 1                  ; ch
s_add_u32 s7, s42, s6                  ; d
s_lshl_b32 s71, s7, 1
v_mov_b32 v{t2}, s71
s_mov_b32 s48, {f2u(L2E_HI):#x}
s_mov_b32 s49, {f2u(L2E_LO):#x}
s_waitcnt lgkmcnt(0)''')
    V.issue(f"global_load_ushort v{PL}, v{t2}, {ptr('logdt')}", 'par')
    V.issue(f"global_load_ushort v{PL+1}, v{t1}, {ptr('logA')} {o.get('pnt','')}", 'par')
    V.issue(f"global_load_ushort v{PL+2}, v{t1}, {ptr('Aim')} {o.get('pnt','')}", 'par')
    V.issue(f"global_load_ushort v{PL+3}, v{t1}, {ptr('Cr')} {o.get('pnt','')}", 'par')
    V.issue(f"global_load_ushort v{PL+4}, v{t1}, {ptr('Ci')} {o.get('pnt','')}", 'par')
    if o.get('touch', True):
        A(f'''v_and_b32 v{t2}, 1, v0
v_lshlrev_b32 v{t2}, 21, v{t2}
v_bfe_u32 v{t3}, v0, 1, 2
v_lshl_add_u32 v{t2}, v{t3}, 16, v{t2}
s_lshl_b32 s70, s4, 18
v_add_u32 v{t2}, s70, v{t2}
v_lshlrev_b32 v{t3}, 19, v{t3}
global_load_dword v253, v{t2}, {ptr('ws')}
global_load_dword v254, v{t3}, {ptr('out')}''')
    A('s_barrier\ns_branch Lkw')
    A.win = []
    A.label('Ltw')

    def ssm_dma(t5):
        A(f'''s_lshr_b32 s94, s43, 1
s_add_u32 s95, s94, s6
s_lshl_b32 s95, s95, 12
s_add_u32 s60, s{P['ssmk']}, s95
s_addc_u32 s61, s{P['ssmk']+1}, 0
s_mov_b32 s62, 4096
s_mov_b32 s63, 0x00020000
s_mul_i32 s94, s94, {2*KLS}
s_and_b32 s95, s43, 1
s_mul_i32 s97, s95, {KLC}
s_add_u32 s94, s94, s97
s_add_u32 s94, s94, {L_KL + KLS}
s_lshl_b32 s95, s95, 2
v_lshlrev_b32 v{t5}, 2, v{LANE}
s_sub_u32 s96, s95, 64
v_add_u32 v{t5}, s96, v{t5}
s_add_u32 m0, s94, 64''')
        for i in range(4):
            V.issue(f'buffer_load_dwordx4 v{t0}, s[60:63], s95 offen offset:{1024*i} {o.get("snt","")} lds', 'ssmk')
        A('s_mov_b32 m0, s94\ns_mov_b64 exec, 0xffff')
        V.issue(f'buffer_load_dword v{t5}, s[60:63], 0 offen lds', 'ssmk')
        A('s_mov_b64 exec, -1')
    nsync = [0]
    def sync(off, n, vaddr_w, vaddr_r, vone, tmp):
        k = nsync[0]; nsync[0] += 1
        if vaddr_w is not None: A(f'ds_write_b32 v{vaddr_w}, v{vone} offset:{off}')
        A.fence()
        A.label(f'Lsy{k}')
        if n == 2:
            A(f'ds_read_b64 {vr(tmp,2)}, v{vaddr_r} offset:{off}\ns_waitcnt lgkmcnt(0)\nv_and_b32 v{tmp}, v{tmp}, v{tmp+1}')
        else:
            A(f'ds_read_b128 {vr(tmp,4)}, v{vaddr_r} offset:{off}\ns_waitcnt lgkmcnt(0)\nv_and_b32 v{tmp}, v{tmp}, v{tmp+1}\nv_and_b32 v{tmp+2}, v{tmp+2}, v{tmp+3}\nv_and_b32 v{tmp}, v{tmp}, v{tmp+2}')
        A(f'v_cmp_ne_u32 vcc, 0, v{tmp}\ns_cbranch_vccz Lsy{k}')
    V.q = []
    TAG = 4
    SK = 8; GU = 16; GW = 24
    VST = 36; VTA = 37; VTB = 38; VFL = 39
    VSW = 28; VSR = 29; ONE = 30
    if o['tprio']: A(f"s_setprio {o['tprio']}")
    A(f'''v_lshrrev_b32 v{t4}, 3, v{LANE}
v_lshlrev_b32 v{t4}, 10, v{t4}
v_and_b32 v{t5}, 7, v0
v_lshl_add_u32 v{t4}, v{t5}, 4, v{t4}
s_lshl_b32 s70, s5, 16
s_lshl_b32 s71, s4, 7
s_add_u32 s70, s70, s71
s_sub_u32 s71, s70, 0x2000
v_add_u32 v{t5}, s71, v{t4}
s_lshl_b32 s71, s43, 14
s_add_u32 s70, s70, s71
v_add_u32 v{t4}, s70, v{t4}
v_add_u32 v{t1}, 0x2000, v{t4}
s_mul_i32 s70, s43, 2080
s_lshl_b32 s71, s43, 4
s_lshl_b64 s[92:93], 0xffff, s71
v_mov_b32 v{t3}, {WS_EP}
s_lshl_b32 s94, s4, 9
s_lshl_b32 s95, s43, 7
s_add_u32 s94, s94, s95
v_lshlrev_b32 v{t6}, 4, v{KG}
v_add_u32 v{t6}, s94, v{t6}
s_lshl_b32 s94, s2, 13
s_lshl_b32 s95, s43, 11
s_add_u32 s94, s94, s95
v_add_u32 v{t7}, s94, v{t0}
v_mov_b32 v108, 0
v_mov_b32 v109, 0
v_mov_b32 v110, 0
v_mov_b32 v111, 0
v_add_u32 v{t2}, {L_FLG}, v{t0}
s_mov_b64 exec, 0xffffffff
ds_write_b128 v{t2}, v[108:111]
s_lshr_b32 s94, s43, 1
s_mul_i32 s94, s94, {2*KLS}
s_and_b32 s95, s43, 1
s_mul_i32 s95, s95, {KLC}
s_add_u32 s94, s94, s95
v_add_u32 v{t2}, s94, v{t0}
s_mov_b64 exec, 15
ds_write_b128 v{t2}, v[108:111] offset:{L_KL}
s_mov_b64 exec, -1
s_waitcnt lgkmcnt(0)
{'s_barrier' if o.get('early_bar', True) else ''}
s_mov_b32 s44, s{P['k']}
s_mov_b32 s45, s{P['k']+1}
s_mov_b32 s46, 0x200000
s_mov_b32 s47, 0x00020000''')
    V.issue(f"global_load_dwordx4 {vr(SK,4)}, v{t6}, {ptr('shk')}", 'sk')
    V.issue(f"global_load_dwordx4 {vr(SK+4,4)}, v{t6}, {ptr('shk')} offset:64", 'sk')
    V.issue(f"global_load_dword v{TAG}, v{t3}, {ptr('ws')}", 'sk')
    if o.get('stag'):
        A('s_lshr_b32 s94, s5, 3')
        A.label('Lstag')
        A(f's_cmp_eq_u32 s94, 0\ns_cbranch_scc1 Lstagd\ns_sleep {o["stag"]}\ns_sub_u32 s94, s94, 1\ns_branch Lstag')
        A.label('Lstagd')
    for g, va in ((0, t4), (1, t1)):
        A(f's_add_u32 m0, s70, {L_TK + 1040 + 1040*g}')
        V.issue(f"global_load_lds_dwordx4 v{va}, {ptr('k')} {o.get('tnt','') if 'k' in o.get('tntw','kvu') else ''}", 'tile')
        A(f's_add_u32 m0, s70, {L_TV + 1040*g}')
        V.issue(f"global_load_lds_dwordx4 v{va}, {ptr('v')} {o.get('tnt','') if 'v' in o.get('tntw','kvu') else ''}", 'tile')
        A(f's_add_u32 m0, s70, {L_TU + 1040*g}')
        V.issue(f"global_load_lds_dwordx4 v{va}, {ptr('u')} {o.get('tnt','') if 'u' in o.get('tntw','kvu') else ''}", 'tile')
    A(f's_mov_b32 m0, {L_TK}\ns_mov_b64 exec, s[92:93]')
    V.issue(f'buffer_load_dwordx4 v{t5}, s[44:47], 0 offen lds', 'tile')
    A('s_mov_b64 exec, -1')
    if not o.get('early_bar', True): A('s_barrier')
    def gate_loads():
        V.issue(f"global_load_dwordx4 {vr(GU,4)}, v48, {ptr('u')} {o.get('gnt','')}", 'gate')
        V.issue(f"global_load_dwordx4 {vr(GU+4,4)}, v48, {ptr('u')} offset:1024 {o.get('gnt','')}", 'gate')
        V.issue(f"global_load_dwordx4 {vr(GW,4)}, v{t0}, {ptr('gw')}", 'gate')
    A(f'v_mov_b32 v48, v{t7}')
    if not o.get('late', False): gate_loads()
    A(f'''s_lshl_b32 s94, s2, 12
s_lshl_b32 s95, s43, 7
s_add_u32 s94, s94, s95
s_add_u32 s94, s94, {WS_IN}
v_and_b32 v7, 3, v0
v_lshlrev_b32 v7, 10, v7
v_add_u32 v7, s94, v7''')
    V.issue(f"global_load_dword v7, v7, {ptr('ws')} sc1", 'warm')
    if o['ssm'] == 'T' and not o.get('late', False): ssm_dma(t5)
    A.stamp('issued')
    c1, c2 = 5, 6
    H = 120; GQ = 96; SD = 64
    A(f'''s_mov_b32 s52, 0x05040100
s_mov_b32 s53, 0x07060302
v_and_b32 v31, 7, v{IDX}
v_sub_u32 v{c1}, 7, v31                ; grp
v_mul_u32_u24 v{VTA}, 1040, v{c1}
v_lshrrev_b32 v{c2}, 3, v{IDX}         ; par
v_lshl_add_u32 v{VTA}, v{c2}, 9, v{VTA}
v_lshl_add_u32 v{VTA}, v{KG}, 2, v{VTA}
s_lshl_b32 s94, s43, 5
s_add_u32 s94, s94, {L_TK}
v_add_u32 v{VTA}, s94, v{VTA}
v_lshl_add_u32 v{VTB}, v{c2}, 4, v{VTA}
v_lshl_add_u32 v{VST}, v{KG}, 1, v{c2}
v_mul_u32_u24 v{VST}, {PIT}, v{VST}
v_lshlrev_b32 v{c1}, 4, v{c1}
v_sub_u32 v{VST}, v{VST}, v{c1}
s_lshl_b32 s94, s4, 6
s_lshl_b32 s95, s43, 4
s_add_u32 s94, s94, s95
s_mul_i32 s94, s94, {PIT}
s_lshl_b32 s95, s5, 7
s_sub_u32 s94, s94, s95
s_add_u32 s94, s94, {3968 + 112}
v_add_u32 v{VST}, s94, v{VST}
v_cmp_eq_u32 s[54:55], 1, v{c2}
s_lshl_b32 s94, s43, 3
v_and_b32 v{c1}, 7, v0
v_add_u32 v{VFL}, s94, v{c1}
v_lshlrev_b32 v{VFL}, 15, v{VFL}
s_lshl_b32 s94, s4, 12
s_lshr_b32 s95, s5, 3
s_lshl_b32 s95, s95, 7
s_add_u32 s94, s94, s95
s_and_b32 s95, s5, 7
s_lshl_b32 s96, s95, 2
s_add_u32 s94, s94, s96
s_add_u32 s94, s94, {WS_IN}
v_bfe_u32 v{c1}, v0, 3, 1
v_mul_u32_u24 v{c1}, 132, v{c1}
v_add3_u32 v{VFL}, v{VFL}, v{c1}, s94
s_cmp_eq_u32 s95, 7
s_movk_i32 s70, 0xff
s_cselect_b32 s70, 0xffff, s70
s_cmp_eq_u32 s5, 31
s_cselect_b32 s70, 0xff, s70
s_lshl_b32 s94, s43, 2
s_add_u32 s94, s94, {L_FLG}
v_mov_b32 v{VSW}, s94
v_mov_b32 v{VSR}, {L_FLG}
v_mov_b32 v{ONE}, 1
s_mul_i32 s94, s43, {UXS}
s_add_u32 s94, s94, {L_UX + 4096}
v_add_u32 v{c1}, s94, v{t0}
s_mov_b32 exec_lo, 0x0fffffff
s_mov_b32 exec_hi, 0
ds_write_b128 v{c1}, v[108:111]
ds_write_b128 v{c1}, v[108:111] offset:{UXC}
s_mov_b64 exec, -1
v_subrev_u32 v5, 0x100, v0             ; ht
v_lshrrev_b32 v{H+8}, 2, v5
v_lshlrev_b32 v{H+8}, 12, v{H+8}
v_and_b32 v6, 3, v5
v_lshl_add_u32 v{H+8}, v6, 4, v{H+8}
v_add_u32 v{H+8}, {WS_GT}, v{H+8}
v_add_u32 v{H+9}, 0x40000, v{H+8}
v_add_u32 v{H+10}, 0x80000, v{H+8}
v_add_u32 v{H+11}, 0xc0000, v{H+8}
s_lshl_b32 s95, s6, 1
s_load_dword s98, {ptr('Dskip')}, s95
s_load_dword s99, {ptr('ssmD')}, s95
s_mov_b32 s56, s{P['out']}
s_mov_b32 s57, s{P['out']+1}
s_mov_b32 s58, 0x200000
s_mov_b32 s59, 0x00020000
v_lshlrev_b32 v6, 2, v5
v_add_u32 v{H}, {L_Y}, v6              ; vP
v_sub_u32 v{H+1}, {L_UX + UXC + 4092}, v6 ; vN
v_lshlrev_b32 v{H+2}, 11, v5
v_add_u32 v{H+2}, s95, v{H+2}          ; vO
s_lshr_b32 s94, s43, 1
s_lshl_b32 s94, s94, 4
s_add_u32 s94, s94, {L_FLG}
v_mov_b32 v{H+3}, s94
v_mov_b32 v{H+12}, {L_FLG + F_U}
v_min_u32 v{t3}, 8, v{IDX}
v_min_u32 v{t4}, 7, v{IDX}
v_cmp_eq_u32 vcc, 0, v{KG}
v_cndmask_b32 v{t3}, v{t3}, v{t4}, vcc
v_lshlrev_b32 v{t3}, 2, v{t3}
v_lshl_add_u32 v{t3}, v{KG}, 7, v{t3}
s_lshl_b32 s94, s2, 12
s_add_u32 s94, s94, {WS_IN}
v_add_u32 v{t3}, s94, v{t3}
s_lshr_b32 s94, s43, 1
s_add_u32 s94, s94, s6
s_mul_i32 s94, s94, {PIT}
s_and_b32 s95, s43, 1
s_mul_i32 s95, s95, {WS_KVR}
s_add_u32 s94, s94, s95
s_add_u32 s64, s{P['ws']}, s94
s_addc_u32 s65, s{P['ws']+1}, 0
s_mul_i32 s94, s43, {UXS}
s_add_u32 s94, s94, {L_UX}
v_add_u32 v{t2}, s94, v{t0}
v_cmp_eq_u32 s[92:93], 63, v{LANE}
s_waitcnt lgkmcnt(0)
s_lshl_b32 s100, s98, 16
s_and_b32 s101, s98, 0xffff0000
v_mov_b32 v{H+4}, s100
v_mov_b32 v{H+5}, s101
s_lshl_b32 s100, s99, 16
s_and_b32 s101, s99, 0xffff0000
v_mov_b32 v{H+6}, s100
v_mov_b32 v{H+7}, s101''')
    WS2 = [188, 196]
    V.wait('sk')
    for i in range(2):
        for t in range(4):
            for ee in range(2):
                (hi2f if t & 1 else lo2f)(A, WS2[i] + 2 * t + ee, SK + 4 * i + 2 * ee + (t >> 1))
    A(f'v_add_u32 v{TAG}, 1, v{TAG}')
    V.wait('tile')
    A.stamp('tile')
    if o.get('late', False):
        A(f'ds_write_b32 v{VSW}, v{ONE} offset:{F_T}')
        gate_loads()
        if o['ssm'] == 'T': ssm_dma(35)
    sync(F_T, 4, VSW, VSR, ONE, 32)
    A.stamp('bar1', True)
    dpp = 'row_ror:8 row_mask:0xf bank_mask:0xf'
    KD = [140, 156]
    def tread(i):
        k = KD[i]
        for r in range(3): A(f'ds_read_b32 v{k+r}, v{VTB} offset:{512 + 128*(r+1) + 16*i}')
        for r in range(4): A(f'ds_read_b32 v{k+3+r}, v{VTA} offset:{1040 + 128*r + 16*i}')
        for r in range(4): A(f'ds_read_b32 v{k+7+r}, v{VTA} offset:{L_TV - L_TK + 128*r + 16*i}')
        for r in range(4): A(f'ds_read_b32 v{k+11+r}, v{VTA} offset:{L_TU - L_TK + 128*r + 16*i}')
    W = 64; KP = 72; VP = 86; AC = 94; O = 102; UNS = [172, 180]
    tread(0)
    for i in range(2):
        k = KD[i]; VD = k + 7; UD = k + 11; UN = UNS[i]
        W = WS2[i]
        A('s_waitcnt lgkmcnt(0)')
        if i == 0: tread(1)
        for r in range(7): lo2f(A, KP + 2 * r, k + r); hi2f(A, KP + 2 * r + 1, k + r)
        for a in range(4): A(f'v_pk_mul_f32 {vr(AC+2*a,2)}, {vr(KP+2*a,2)}, {vr(W+6,2)}')
        for r in range(4): lo2f(A, VP + 2 * r, VD + r); hi2f(A, VP + 2 * r + 1, VD + r)
        for tp in range(1, 4):
            for a in range(4): A(f'v_pk_fma_f32 {vr(AC+2*a,2)}, {vr(KP+2*(a+tp),2)}, {vr(W+2*(3-tp),2)}, {vr(AC+2*a,2)}')
        for ch in range(2):
            A(f'v_perm_b32 v{O+4+2*ch}, v{UD+2}, v{UD+3}, s{52+ch}')
            A(f'v_perm_b32 v{O+4+2*ch+1}, v{UD}, v{UD+1}, s{52+ch}')
        for a in range(4): A(f'v_pk_mul_f32 {vr(AC+2*a,2)}, {vr(AC+2*a,2)}, {vr(VP+2*a,2)}')
        A('s_mov_b64 vcc, s[54:55]')
        for ch in range(2):
            A(f'v_cvt_pk_bf16_f32 v{O+2*ch}, v{AC+6+ch}, v{AC+4+ch}')
            A(f'v_cvt_pk_bf16_f32 v{O+2*ch+1}, v{AC+2+ch}, v{AC+ch}')
        for tn in (1, 0):
            for e in range(2):
                A(f'v_cndmask_b32_dpp v{UN+4*tn+e}, v{O+4*tn+e}, v{O+4*tn+2+e}, vcc {dpp}')
        A('s_not_b64 vcc, vcc')
        for tn in (1, 0):
            for e in range(2):
                A(f'v_cndmask_b32_dpp v{UN+4*tn+2+e}, v{O+4*tn+2+e}, v{O+4*tn+e}, vcc {dpp}')
        A(f'v_add_u32 v{t7}, {WS_KVR}, v{VST}')
        V.issue(f"global_store_dwordx4 v{VST}, {vr(UN+4,4)}, {ptr('ws')} {o.get('sflag','sc1')}", 'st')
        V.issue(f"global_store_dwordx4 v{t7}, {vr(UN,4)}, {ptr('ws')} {o.get('sflag','sc1')}", 'st')
        if i == 0: A(f'v_add_u32 v{VST}, {8*PIT}, v{VST}')
    A.stamp('tst')
    X = 64
    if o['ssm'] == 'T':
        V.wait('ssmk')
        A(f'ds_write_b32 v{VSW}, v{ONE} offset:{F_S}')
    else: V.wait('gate')
    for r in range(2):
        A(f'v_dot2_f32_bf16 v{X+2*r}, v{GU+4*r}, v{GW}, 0\nv_dot2_f32_bf16 v{X+2*r+1}, v{GU+4*r+1}, v{GW+1}, 0')
    for r in range(2):
        A(f'v_dot2_f32_bf16 v{X+2*r}, v{GU+4*r+2}, v{GW+2}, v{X+2*r}\nv_dot2_f32_bf16 v{X+2*r+1}, v{GU+4*r+3}, v{GW+3}, v{X+2*r+1}')
    A(f'''s_lshl_b32 s94, s2, 12
s_lshl_b32 s95, s43, 4
s_add_u32 s94, s94, s95
s_add_u32 s94, s94, {WS_GT}
v_add_f32 v{X}, v{X}, v{X+1}
v_add_f32 v{X+2}, v{X+2}, v{X+3}
v_mov_b32 v{t7}, s94''')
    for sh in ('row_shr:1 row_mask:0xf bank_mask:0xf bound_ctrl:0', 'row_shr:2 row_mask:0xf bank_mask:0xf bound_ctrl:0', 'row_shr:4 row_mask:0xf bank_mask:0xf bound_ctrl:0',
               'row_shr:8 row_mask:0xf bank_mask:0xf bound_ctrl:0', 'row_bcast:15 row_mask:0xa bank_mask:0xf', 'row_bcast:31 row_mask:0xc bank_mask:0xf'):
        for r in range(2): A(f'v_add_f32_dpp v{X+2*r}, v{X+2*r}, v{X+2*r} {sh}')
    for r in range(2): rnd(A, X + 2 * r, X + 2 * r)
    for r in range(2): A(f'v_mul_f32 v{X+2*r}, {f2u(-L2E):#x}, v{X+2*r}')
    for r in range(2): A(f'v_exp_f32 v{X+2*r}, v{X+2*r}')
    for r in range(2): A(f'v_add_f32 v{X+2*r}, 1.0, v{X+2*r}')
    for r in range(2): A(f'v_rcp_f32 v{X+2*r}, v{X+2*r}')
    for r in range(2): A(f'v_mov_b32 v{X+2*r+1}, v{TAG}')
    for r in range(2): A(f'v_cvt_pk_bf16_f32 v{X+2*r}, v{X+2*r}, 0')
    A('s_mov_b32 exec_lo, 0\ns_brev_b32 exec_hi, 1')
    V.issue(f"global_store_dwordx4 v{t7}, {vr(X,4)}, {ptr('ws')} sc1", 'g')
    A('s_mov_b32 exec_lo, s70\ns_mov_b32 exec_hi, 0')
    V.wait('st')
    V.issue(f"global_store_dword v{VFL}, v{TAG}, {ptr('ws')}", 'fl')
    A(f's_mov_b64 exec, -1\ns_mov_b32 s94, 0\ns_mov_b64 s[66:67], -1')
    A.stamp('drain', True)
    npoll = [0]
    def poll_once(after=None):
        k = npoll[0]; npoll[0] += 1
        A(f'''global_load_dword v{t7}, v{t3}, {ptr('ws')} sc1
s_add_u32 s94, s94, 1
s_waitcnt vmcnt(0)
v_cmp_ne_u32 vcc, v{TAG}, v{t7}
s_and_b64 s[66:67], s[66:67], vcc
s_cmp_le_u32 s94, {o['gmask']}
s_cbranch_scc1 Lpn{k}
s_mov_b32 exec_lo, s70
s_mov_b32 exec_hi, 0
global_store_dword v{VFL}, v{TAG}, {ptr('ws')} offset:2048 sc1
s_mov_b64 exec, -1
global_load_dword v{t7}, v{t3}, {ptr('ws')} offset:2048 sc1
s_waitcnt vmcnt(0)
v_cmp_ne_u32 vcc, v{TAG}, v{t7}
s_and_b64 s[66:67], s[66:67], vcc
s_cmp_lt_u32 s94, 0x800000
s_cbranch_scc1 Lpn{k}
s_mov_b64 s[66:67], 0''')
        A.fence()
        A.label(f'Lpn{k}')
    def uload(g):
        V.issue(f'global_load_dwordx4 {vr(SD+8*g,4)}, v{t0}, s[64:65] offset:{3072-1024*g} sc1', f'u{g}')
        V.issue(f'global_load_dword v{SD+4+8*g}, v{t0}, s[64:65] offset:{3072-1024*g+16} sc1', f'u{g}')
    def stage(g):
        D = SD + 8 * g; E = 8 + 4 * g
        if g == 0: A(f'v_cndmask_b32 v{D+4}, v{D+4}, 0, s[92:93]')
        A(f'ds_write_b128 v{t2}, {vr(D,4)} offset:{UXC + 3072 - 1024*g}')
        for e in range(4): A(f'v_alignbit_b32 v{E+e}, v{D+e+1}, v{D+e}, 16')
        A(f'ds_write_b128 v{t2}, {vr(E,4)} offset:{3072 - 1024*g}')
        A(f'ds_write_b32 v{VSW}, v{ONE} offset:{F_U + 16*g}')
    def gloads():
        for Pp in range(4):
            V.issue(f"global_load_dwordx4 {vr(GQ+4*Pp,4)}, v{H+8+Pp}, {ptr('ws')} sc1", 'gq')
    A.fence()
    A.label('Lpoll')
    poll_once()
    A('s_and_b32 s95, s66, 0xffff\ns_cbranch_scc1 Lpoll')
    A.stamp('polled', True)
    V.q = []
    uload(0)
    A('s_mov_b32 s96, 0\ns_cmp_eq_u64 s[66:67], 0\ns_cbranch_scc1 Lpall')
    A.fence()
    A.label('Lp2')
    poll_once()
    A('s_cmp_lg_u32 s96, 0\ns_cbranch_scc1 Lp3\ns_mov_b32 s96, 1')
    stage(0)
    A.fence()
    A.label('Lp3')
    A('s_cmp_lg_u64 s[66:67], 0\ns_cbranch_scc1 Lp2')
    A.fence()
    A.label('Lpall')
    for g in (1, 2, 3): uload(g)
    gloads()
    A('s_cmp_lg_u32 s96, 0\ns_cbranch_scc1 Ls0d')
    V.wait('u0')
    stage(0)
    A.fence()
    A.label('Ls0d')
    A.stamp('staged')
    for g in (1, 2, 3):
        V.wait(f'u{g}')
        stage(g)
    A(f'''s_setprio 0
s_mov_b32 exec_lo, s70
s_mov_b32 exec_hi, 0
global_store_dword v{VFL}, v{TAG}, {ptr('ws')} offset:2048 sc1
s_mov_b64 exec, -1
s_mov_b32 s94, 0
s_waitcnt vmcnt(1)
s_branch Lgchk''')
    A.win = []
    A.label('Lgld')
    gloads()
    A('s_waitcnt vmcnt(0)')
    A.label('Lgchk')
    A(f'v_xor_b32 v20, v{TAG}, v{GQ+1}')
    for i in range(1, 8):
        A(f'v_xor_b32 v21, v{TAG}, v{GQ+2*i+1}\nv_or_b32 v20, v20, v21')
    A(f'''v_cmp_ne_u32 vcc, 0, v20
s_cbranch_vccz Lgok
s_add_u32 s94, s94, 1
s_cmp_lt_u32 s94, 0x200000
s_cbranch_scc1 Lgld''')
    A.fence()
    A.label('Lgok')
    A.stamp('gok')
    for Pp in range(4):
        A(f'v_lshl_or_b32 v{20+Pp}, v{GQ+4*Pp+2}, 16, v{GQ+4*Pp}')
        A(f'ds_write_b32 v{H}, v{20+Pp} offset:{16384 + 1024*Pp}')
    A('s_mov_b32 s60, 0')
    A.fence()
    vP, vN, vO, DP, SP, R = H, H + 1, H + 2, H + 4, H + 6, 24
    Y = R; U = R + 4; G = R + 8; UP = R + 10; KV = R + 14; YA = R + 18; YB = R + 22; GG = R + 26; TA = R + 28; O = R + 34
    A.label('Lepi')
    A(f'''ds_read_b128 v[20:23], v{H+12}
s_waitcnt lgkmcnt(0)
v_and_b32 v20, v20, v21
v_and_b32 v22, v22, v23
v_and_b32 v20, v20, v22
v_cmp_ne_u32 vcc, 0, v20
s_cbranch_vccz Lepi''')
    for cv in range(4): A(f'ds_read_b32 v{U+cv}, v{vN} offset:{UXS*cv}')
    A(f'ds_read_b32 v{G}, v{vP} offset:16384\ns_waitcnt lgkmcnt(0)')
    for ch in range(2):
        hi2f(A, UP + ch, U + 2 * ch); lo2f(A, UP + 2 + ch, U + 2 * ch)
        hi2f(A, KV + ch, U + 2 * ch + 1); lo2f(A, KV + 2 + ch, U + 2 * ch + 1)
    lo2f(A, GG, G); hi2f(A, GG + 1, G)
    for i in range(4): A(f'v_mul_f32 v{TA+i}, v{UP+i}, v{GG+(i>>1)}')
    for i in range(4): A(f'v_mul_f32 v{KV+i}, v{KV+i}, v{SP+(i&1)}')
    for i in range(4): A(f'v_sub_f32 v{UP+i}, v{UP+i}, v{TA+i}')
    for i in range(4): A(f'v_mul_f32 v{TA+i}, v{TA+i}, v{DP+(i&1)}')
    for i in range(4): A(f'v_fmac_f32 v{TA+i}, v{UP+i}, v{KV+i}')
    A.fence()
    A.label('Lyw')
    A(f'''ds_read_b128 v[20:23], v{H+3}
s_waitcnt lgkmcnt(0)
v_and_b32 v20, v20, v21
v_and_b32 v22, v22, v23
v_and_b32 v20, v20, v22
v_cmp_ne_u32 vcc, 0, v20
s_cbranch_vccnz Lgo
s_sleep {o['sleep']}
s_branch Lyw''')
    A.win = []
    A.label('Lgo')
    for cv in range(4): A(f'ds_read_b32 v{Y+cv}, v{vP} offset:{4096*cv}')
    A(f'''v_add_u32 v{H}, 0x400, v{H}
v_subrev_u32 v{H+1}, 0x400, v{H+1}
v_add_u32 v{H+3}, 32, v{H+3}
v_add_u32 v{H+12}, 16, v{H+12}
s_waitcnt lgkmcnt(0)''')
    for ch in range(2):
        lo2f(A, YA + ch, Y + 2 * ch); hi2f(A, YA + 2 + ch, Y + 2 * ch)
        lo2f(A, YB + ch, Y + 2 * ch + 1); hi2f(A, YB + 2 + ch, Y + 2 * ch + 1)
    for i in range(4): A(f'v_fmac_f32 v{TA+i}, v{YA+i}, v{GG+(i>>1)}')
    for i in range(4): A(f'v_fmac_f32 v{TA+i}, v{YB+i}, v{UP+i}')
    for a_ in range(2): A(f'v_cvt_pk_bf16_f32 v{O+a_}, v{TA+2*a_}, v{TA+2*a_+1}')
    A(f'buffer_store_dword v{O}, v{vO}, s[56:59], s60 offen')
    A(f'buffer_store_dword v{O+1}, v{vO}, s[56:59], s60 offen offset:1024')
    A('s_add_u32 s60, s60, 0x80000\ns_cmp_lt_u32 s60, 0x200000')
    A.fence()
    A('s_cbranch_scc1 Lepi')
    A(f'''s_cmp_lg_u32 s2, 0
s_cbranch_scc1 Lfin
s_barrier
s_cmp_lg_u32 s3, 4
s_cbranch_scc1 Lfin
v_mov_b32 v20, {WS_EP}
s_mov_b64 exec, 1
global_store_dword v20, v{TAG}, {ptr('ws')} sc1''')
    A.label('Lfin')
    A.stamp_flush(0, 3)
    A('s_endpgm')
    A.win = []
    A.label('Lkw')
    V.q = []
    POS = [5, 6]; VPAR = 7; VPW = 8; FSC = 9
    ACC = [148, 152, 156, 160]
    CA = 200
    GI = 20
    VSW = 26; VSR = 27; ONE = 28
    PL = 51
    V.q = ['par'] * 5 + (['tch'] * 2 if o.get('touch', True) else [])
    A.stamp('issued')
    c1, c2, c3 = 10, 11, 29
    A(f'''s_and_b32 s44, s3, 1                   ; hw = w&1
v_lshrrev_b32 v{t1}, 1, v0
v_lshlrev_b32 v{t1}, 4, v{t1}
v_and_b32 v{t6}, 1, v0
v_lshl_add_u32 v{t1}, v{t6}, 2, v{t1}
v_add_u32 v{t1}, {L_PAR}, v{t1}
s_mov_b32 s50, {f2u(14.0):#x}
v_lshlrev_b32 v{c1}, 3, v{IDX}
v_cvt_f32_u32 v{POS[0]}, v{c1}         ; pL = 8 j
v_subrev_u32 v{c1}, 8, v{IDX}
v_lshlrev_b32 v{c2}, 9, v{c1}
v_lshlrev_b32 v{c1}, 2, v{c1}
v_add_u32 v{c1}, 0x200, v{c1}
v_cmp_gt_u32 vcc, 10, v{IDX}
v_cndmask_b32 v{c1}, v{c2}, v{c1}, vcc
v_cmp_gt_u32 vcc, 8, v{IDX}
v_cndmask_b32 v{c1}, v{c1}, v{IDX}, vcc
v_cvt_f32_u32 v{POS[1]}, v{c1}         ; pR
s_lshl_b32 s94, s3, 9
s_add_u32 s94, s94, {L_PAR}
v_lshlrev_b32 v{VPAR}, 5, v{KG}
v_add_u32 v{VPAR}, s94, v{VPAR}
v_mov_b32 v33, v{POS[0]}
v_mov_b32 v32, v{POS[0]}
v_mov_b32 v34, v{POS[1]}
v_mov_b32 v35, v{POS[1]}
v_mov_b32 v36, s50
v_mov_b32 v37, s50
s_mov_b32 s51, 0
s_lshl_b32 s94, s3, 2
s_add_u32 s94, s94, {L_FLG}
v_mov_b32 v{VSW}, s94
s_lshl_b32 s94, s42, 3
s_add_u32 s94, s94, {L_FLG}
v_mov_b32 v{VSR}, s94
v_mov_b32 v{ONE}, 1''')
    for a in ACC:
        for i in range(4): A(f'v_mov_b32 v{a+i}, 0')
    A(f'''s_mul_i32 s45, s42, 3072
s_add_u32 s45, s45, {L_KC}
v_lshlrev_b32 v{c3}, 2, v{LANE}
v_add_u32 v{c3}, {704*4}, v{c3}        ; dummy
v_lshlrev_b32 v{c1}, 5, v{IDX}
v_lshl_add_u32 v{c1}, v{KG}, 4, v{c1}
v_lshrrev_b32 v{c2}, 1, v{c1}
v_add_u32 v{c2}, 0x400, v{c2}
v_lshlrev_b32 v{t2}, 3, v{IDX}
v_add_u32 v{t2}, {384*4}, v{t2}
v_lshlrev_b32 v{t3}, 2, v{IDX}
v_add_u32 v{t3}, {512*4}, v{t3}
v_cmp_eq_u32 vcc, 2, v{KG}
v_cmp_eq_u32 s[92:93], 3, v{KG}
v_cndmask_b32 v{CA}, v{c1}, v{t2}, vcc
v_add_u32 v{t4}, 0x200, v{t3}
v_cndmask_b32 v{CA}, v{CA}, v{t4}, s[92:93]
v_cndmask_b32 v{CA+1}, v{c1}, v{t2}, vcc
v_add_u32 v{CA+1}, 4, v{CA+1}
v_cndmask_b32 v{CA+1}, v{CA+1}, v{c3}, s[92:93]
v_add_u32 v{t4}, 8, v{c1}
v_cndmask_b32 v{CA+2}, v{t4}, v{t3}, vcc
v_cndmask_b32 v{CA+2}, v{CA+2}, v{c3}, s[92:93]
v_add_u32 v{t4}, 12, v{c1}
v_add_u32 v{t5}, 0x100, v{t3}
v_cndmask_b32 v{CA+3}, v{t4}, v{t5}, vcc
v_cndmask_b32 v{CA+3}, v{CA+3}, v{c3}, s[92:93]
v_mov_b32 v{t4}, 0x200
v_mov_b32 v{t5}, 0x80
v_cndmask_b32 v{t5}, v{t4}, v{t5}, vcc
v_cndmask_b32 v{t7}, v{t5}, 64, s[92:93]         ; step r0
v_cndmask_b32 v{t5}, v{t5}, 0, s[92:93]          ; step r1
v_cndmask_b32 v{t4}, v{t4}, 64, vcc
v_cndmask_b32 v{t4}, v{t4}, 0, s[92:93]          ; step r2,r3
v_add_u32 v{CA+4}, v{CA}, v{t7}
v_add_u32 v{CA+5}, v{CA+1}, v{t5}
v_add_u32 v{CA+6}, v{CA+2}, v{t4}
v_add_u32 v{CA+7}, v{CA+3}, v{t4}
v_add_u32 v{CA+8}, v{CA+4}, v{t7}
v_add_u32 v{CA+9}, v{CA+5}, v{t5}
v_add_u32 v{CA+10}, v{CA+6}, v{t4}
v_add_u32 v{CA+11}, v{CA+7}, v{t4}
v_add_u32 v{CA+12}, v{CA+8}, v{t7}
v_add_u32 v{CA+13}, v{CA+9}, v{t5}
v_add_u32 v{CA+14}, v{CA+10}, v{t4}
v_add_u32 v{CA+15}, v{CA+11}, v{t4}
v_cmp_gt_u32 vcc, 2, v{KG}
v_cndmask_b32 v{CA+8}, v{CA+8}, v{c2}, vcc
v_cndmask_b32 v{CA+9}, v{CA+9}, v{c3}, vcc
v_add_u32 v{t4}, 4, v{c2}
v_cndmask_b32 v{CA+10}, v{CA+10}, v{t4}, vcc
v_cndmask_b32 v{CA+11}, v{CA+11}, v{c3}, vcc
v_add_u32 v{t4}, 0x100, v{c2}
v_cndmask_b32 v{CA+12}, v{CA+12}, v{t4}, vcc
v_cndmask_b32 v{CA+13}, v{CA+13}, v{c3}, vcc
v_add_u32 v{t4}, 0x104, v{c2}
v_cndmask_b32 v{CA+14}, v{CA+14}, v{t4}, vcc
v_cndmask_b32 v{CA+15}, v{CA+15}, v{c3}, vcc''')
    A('s_cmp_eq_u32 s44, 0\ns_cselect_b64 s[92:93], -1, 0')
    for i in range(8): A(f'v_cndmask_b32 v{CA+i}, v{CA+8+i}, v{CA+i}, s[92:93]\nv_add_u32 v{CA+i}, s45, v{CA+i}')
    A(f'v_and_b32 v{c1}, 0x7f, v0\nv_lshlrev_b32 v{c1}, 1, v{c1}\ns_sub_u32 s94, s45, {133*128*4}')
    for n, m in enumerate((1, 2, 4)):
        for e in range(2):
            g = GI + 2 * n + e
            A(f'''v_add_u32 v{g}, {256*m+e}, v{c1}
v_cvt_f32_u32 v{g}, v{g}
v_cvt_pk_bf16_f32 v{g}, v{g}, 0
v_lshl_add_u32 v{g}, v{g}, 2, s94''')
    V.wait('par')
    A.stamp('par')
    for i in range(5): A(f'v_lshlrev_b32 v{PL+i}, 16, v{PL+i}')
    A(f'v_max_f32 v{t5}, |v{PL+3}|, |v{PL+4}|')
    bfexp(A, PL, PL, t2, t3, 48, 49)
    for sh in (1, 2): A(f'v_max_f32_dpp v{t5}, v{t5}, v{t5} row_shr:{sh} row_mask:0xf bank_mask:0xf')
    bfexp(A, PL + 1, PL + 1, t2, t3, 48, 49)
    for sh in (4, 8): A(f'v_max_f32_dpp v{t5}, v{t5}, v{t5} row_shr:{sh} row_mask:0xf bank_mask:0xf')
    A(f'''v_mul_f32 v{PL+1}, v{PL+1}, v{PL}
v_mul_f32 v{PL+2}, v{PL+2}, v{PL}
v_max_f32_dpp v{t5}, v{t5}, v{t5} row_bcast:15 row_mask:0xa bank_mask:0xf
v_mul_f32 v64, {f2u(-L2E):#x}, v{PL+1}
v_mul_f32 v65, {f2u(INV2PI):#x}, v{PL+2}
v_max_f32_dpp v{t5}, v{t5}, v{t5} row_bcast:31 row_mask:0xc bank_mask:0xf
v_mul_f32 v68, 0x43000000, v65
v_mul_f32 v69, 0x43000000, v64
v_readlane_b32 s94, v{t5}, 63
v_fract_f32 v68, v68
v_exp_f32 v69, v69
v_cos_f32 v70, v68
v_sin_f32 v71, v68
s_lshr_b32 s94, s94, 23
s_max_u32 s94, s94, 13
s_sub_u32 s95, 267, s94
s_lshl_b32 s95, s95, 23
s_sub_i32 s94, s94, 153
v_mul_f32 v66, s95, v{PL+3}
v_mul_f32 v67, s95, v{PL+4}
v_ldexp_f32 v{FSC}, v{PL}, s94
v_mul_f32 v70, v69, v70
v_mul_f32 v71, v69, v71
v_rndne_f32 v74, v65
v_sub_f32 v65, v65, v74
v_mul_f32 v72, v70, v70
v_mul_f32 v73, v70, v71
v_fma_f32 v72, -v71, v71, v72
v_add_f32 v73, v73, v73
ds_write2_b32 v{t1}, v64, v65 offset0:0 offset1:2
v_add_u32 v{t6}, 0x800, v{t1}
ds_write2_b32 v{t6}, v66, v67 offset0:0 offset1:2
v_add_u32 v{t6}, 0x1000, v{t1}
ds_write2_b32 v{t6}, v70, v71 offset0:0 offset1:2
v_add_u32 v{t6}, 0x1800, v{t1}
ds_write2_b32 v{t6}, v72, v73 offset0:0 offset1:2''')
    A('s_waitcnt lgkmcnt(0)')
    A.stamp('kstart', True)
    A.fence()
    PRB = [64, 164]
    XA = [96, 100]; LB = [104, 196]
    T = 108
    def pread(buf):
        for jp in range(2):
            for pl in range(4): A(f'ds_read_b128 {vr(PRB[buf]+16*jp+4*pl,4)}, v{VPAR} offset:{2048*pl + 16*jp + 128*buf}')
    pread(0)
    A.label('Lkgen')
    if o['ssm'] == 'Kmid':
        A('s_cmp_lg_u32 s51, 1\ns_cbranch_scc1 Lnossm')
        ssm_dma(38)
        A.fence()
        A.label('Lnossm')
    for buf in range(2):
        PR = PRB[buf]
        def two(fmt, fmt1=None):
            for jp in range(2):
                t = T + 20 * jp; p_ = PR + 16 * jp
                names = dict(a=p_, b=p_+2, cr=p_+4, ci=p_+6, wr=p_+8, wi=p_+10, zr=p_+12, zi=p_+14, thL=t, thR=t+2, mL=t+4, mR=t+6, cL=t+8, sL=t+10, cR=t+12, sR=t+14, p=t+16, q=t+18, x=t, y=t+2)
                if fmt1 is None:
                    A(fmt.format(**{k: vr(v, 2) for k, v in names.items()}))
                else:
                    for e in range(2):
                        A(fmt1.format(j=2*jp+e, **{k: f'v{v+e}' for k, v in names.items()}))
        one = lambda f: two(None, f)
        def cvt(dst, o1, o2, neg=''):
            for k in range(4): A(f'v_cvt_pk_f16_f32 v{dst+k}, v{T+20*(k>>1)+o1+(k&1)}, {neg}v{T+20*(k>>1)+o2+(k&1)}')
        NEG = ' neg_lo:[1,0,0] neg_hi:[1,0,0]'
        A('s_waitcnt lgkmcnt(0)')
        if buf == 1: A(f'v_add_u32 v{VPAR}, 0x100, v{VPAR}')
        pread(1 - buf)
        two('v_pk_mul_f32 {thR}, {b}, v[34:35]'); two('v_pk_mul_f32 {thL}, {b}, v[32:33]')
        two('v_pk_fma_f32 {mL}, {a}, v[32:33], v[36:37]'); two('v_pk_mul_f32 {mR}, {a}, v[34:35]')
        one('v_fract_f32 {thR}, {thR}')
        one('v_exp_f32 {mL}, {mL}'); one('v_cos_f32 {cL}, {thL}'); one('v_sin_f32 {sL}, {thL}')
        one('v_cos_f32 {cR}, {thR}')
        two('v_pk_mul_f32 {cL}, {mL}, {cL}'); two('v_pk_mul_f32 {sL}, {mL}, {sL}')
        one('v_sin_f32 {sR}, {thR}')
        two('v_pk_mul_f32 {p}, {cL}, {wr}'); two('v_pk_mul_f32 {q}, {cL}, {wi}')
        one('v_exp_f32 {mR}, {mR}')
        two('v_pk_mul_f32 {x}, {cr}, {cR}'); two('v_pk_mul_f32 {y}, {cr}, {sR}')
        two('v_pk_fma_f32 {p}, {sL}, {wi}, {p}' + NEG); two('v_pk_fma_f32 {q}, {sL}, {wr}, {q}')
        two('v_pk_fma_f32 {x}, {ci}, {sR}, {x}' + NEG); two('v_pk_fma_f32 {y}, {ci}, {cR}, {y}')
        cvt(LB[0], 8, 10)
        two('v_pk_mul_f32 {x}, {mR}, {x}'); two('v_pk_mul_f32 {y}, {mR}, {y}')
        cvt(LB[1], 16, 18)
        two('v_pk_mul_f32 {cR}, {x}, {zr}'); two('v_pk_mul_f32 {sR}, {x}, {zi}')
        cvt(XA[0], 0, 2, '-')
        two('v_pk_fma_f32 {cR}, {y}, {zi}, {cR}' + NEG); two('v_pk_fma_f32 {sR}, {y}, {zr}, {sR}')
        for bb in range(2): A(f'v_mfma_f32_16x16x32_f16 {vr(ACC[bb],4)}, {vr(XA[0],4)}, {vr(LB[bb],4)}, {vr(ACC[bb],4)}')
        cvt(XA[1], 12, 14, '-')
        if buf == 1: A('s_add_u32 s51, s51, 1\ns_cmp_lt_u32 s51, 2')
        for bb in range(2): A(f'v_mfma_f32_16x16x32_f16 {vr(ACC[2+bb],4)}, {vr(XA[1],4)}, {vr(LB[bb],4)}, {vr(ACC[2+bb],4)}')
    A('s_cbranch_scc1 Lkgen')
    A.stamp('k1')
    if o['ssm'] == 'Kend': ssm_dma(38)
    A(f'''v_and_b32 v{t3}, 0x7f, v0
v_lshlrev_b32 v{t3}, 2, v{t3}
s_mul_i32 s94, s42, {2*KLS}
s_add_u32 s94, s94, {L_KL + 64}
v_add_u32 v{t4}, s94, v{t3}
v_add_u32 v{t5}, {KLC - 4}, v{t4}
v_lshl_add_u32 v{t3}, v{t3}, 1, s45
s_lshl_b32 s95, s3, 11
s_add_u32 s95, s95, {L_RED}
v_add_u32 v{t1}, s95, v{t0}
s_xor_b32 s95, s3, 1
s_lshl_b32 s95, s95, 11
s_add_u32 s95, s95, {L_RED}
v_add_u32 v{t2}, s95, v{t0}
s_waitcnt lgkmcnt(0)''')
    for i in range(8): A(f'v_cndmask_b32 v{64+i}, v{148+i}, v{156+i}, s[92:93]')
    for i in range(8): A(f'v_mul_f32 v{64+i}, v{FSC}, v{64+i}')
    A(f'ds_write_b128 v{t1}, v[64:67]\nds_write_b128 v{t1}, v[68:71] offset:1024')
    A(f'ds_write_b32 v{VSW}, v{ONE} offset:{F_K}')
    for i in range(8): A(f'v_cndmask_b32 v{72+i}, v{156+i}, v{148+i}, s[92:93]')
    sync(F_K, 2, None, VSR, ONE, 30)
    A(f'ds_read_b128 v[64:67], v{t2}\nds_read_b128 v[68:71], v{t2} offset:1024')
    for i in range(8):
        if i % 4 == 0: A(f's_waitcnt lgkmcnt({1 if i == 0 else 4})')
        A(f'v_fma_f32 v{72+i}, v{72+i}, v{FSC}, v{64+i}')
        A(f'ds_write_b32 v{CA+i}, v{72+i}')
    sync(F_K + 16, 2, VSW, VSR, ONE, 30)
    A.stamp('kred', True)
    RD = 64
    A(f'ds_read_b64 v[64:65], v{t3}')
    srcs = {1: (GI, 0), 2: (GI + 2, 0), 3: (GI + 2, 256), 4: (GI + 4, 0), 5: (GI + 4, 128), 6: (GI + 4, 256), 7: (GI + 4, 384)}
    for m in range(1, 8):
        g, off = srcs[m]
        A(f'ds_read_b32 v{RD+2*m}, v{g} offset:{off}\nds_read_b32 v{RD+2*m+1}, v{g+1} offset:{off}')
    for m in range(8):
        if m in (0, 4): A(f's_waitcnt lgkmcnt({8 if m == 0 else 0})')
        A(f'v_cvt_pk_bf16_f32 v{80+m}, v{RD+2*m}, v{RD+2*m+1}')
        if m == 3: A('s_waitcnt lgkmcnt(0)')
    for m in range(8):
        A(f'ds_write_b32 v{t4}, v{80+m} offset:{512*m}\nds_write_b32 v{t5}, v{80+m} offset:{512*m}')
        if m == 5: A('s_waitcnt lgkmcnt(4)')
    if o['ssm'] != 'T': V.wait('ssmk')
    sync(F_K + 32, 2, VSW, VSR, ONE, 30)
    if o['ssm'] == 'T': sync(F_S, 2, None, VSR, ONE, 30)
    A.stamp('kdone', True)
    A(f'''s_mul_i32 s94, s3, {KLS}
s_add_u32 s94, s94, {L_KL}
v_lshl_add_u32 v4, v{KG}, 2, v{IDX}
v_lshlrev_b32 v4, 2, v4
v_and_b32 v{t4}, 1, v{IDX}
v_mov_b32 v{t5}, {KLC}
v_cmp_eq_u32 vcc, 1, v{t4}
v_cndmask_b32 v{t5}, v{t5}, 4, vcc
v_add3_u32 v4, v4, v{t5}, s94          ; vK
v_mul_u32_u24 v5, {UXC}, v{t4}
v_lshrrev_b32 v{t4}, 1, v{IDX}
v_lshlrev_b32 v{t4}, 6, v{t4}
v_sub_u32 v5, v5, v{t4}
v_lshl_add_u32 v5, v{KG}, 4, v5
s_mul_i32 s94, s3, {UXS}
s_add_u32 s94, s94, {L_UX + 448}
v_add_u32 v5, s94, v5                  ; vU
s_lshl_b32 s94, s3, 12
s_add_u32 s94, s94, {L_Y}
v_lshlrev_b32 v6, 2, v{IDX}
v_lshl_add_u32 v6, v{KG}, 7, v6
v_add_u32 v6, s94, v6                  ; vY
v_mov_b32 v7, v{VSW}
v_mov_b32 v1, 1
v_add_u32 v2, {F_U}, v{VSW}''')
    if o['prio']: A(f"s_setprio {o['prio']}")
    o['UFS'] = 16
    mfma_phase(A, 4, 5, 6, 7, 1, 2, o)
    A.stamp_flush(0, 3)
    A.label('Lend')
    A('s_endpgm')
    HDR = open('gated_mix__ssm_conv_s4d__ssm_conv_h3__prompt.s.ref').read().split('; Override launch')[0]
    s = HDR + f'; @launch grid=(256,1,1) block=(512,1,1) lds={L_END}\n.amdgcn_target "amdgcn-amd-amdhsa--gfx950"\n.text\n' + A.text()
    s += '.section .rodata,"a"\n' + kdesc(KN, 256)
    if o.get('align', 4): s = align(s, nopmin=o.get('align', 4))[0]
    if o.get('ont', True):
        import re
        s = re.sub(r'(buffer_store_dword v\d+, v\d+, s\[56:59\], s60 offen[a-z:0-9 ]*)$', r'\1 nt', s, flags=re.M)
    open(path, 'w').write(s)
    return L_END, A.nops

SETS = dict(a=['issued', 'par', 'kstart', 'k1', 'tile', 'bar1'], b=['tst', 'drain', 'polled', 'staged', 'kred', 'kdone'],
            c=['kpre', 'ug0', 'ug1', 'ug2', 'ug3', 'gok'], d=['ug0', 'pass0', 'pass1', 'pass2', 'polled', 'staged'])
if __name__ == '__main__':
    out = sys.argv[1]
    print(gen(out))
    if len(sys.argv) > 2:
        for k, v in SETS.items(): gen(out.replace('.s', f'_{k}.s'), v)
        gen(out.replace('.s', '_late.s'), None, dict(late=True))
        gen(out.replace('.s', '_lb.s'), None, dict(early_bar=False))
```

```python
import re

TRANS = ('v_exp_f32', 'v_log_f32', 'v_rcp_f32', 'v_rsq_f32', 'v_sqrt_f32', 'v_sin_f32', 'v_cos_f32')
NODST_S = ('s_cmp', 's_waitcnt', 's_barrier', 's_nop', 's_branch', 's_cbranch', 's_endpgm', 's_setprio', 's_sleep', 's_bitcmp')

def regs_of(tok):
    tok = tok.strip()
    tok = tok.lstrip('-')
    m = re.fullmatch(r'\|?abs\((.*)\)\|?', tok)
    if m: tok = m.group(1)
    tok = tok.strip('|')
    m = re.fullmatch(r'([vsa])(\d+)', tok)
    if m: return [(m.group(1), int(m.group(2)))]
    m = re.fullmatch(r'([vsa])\[(\d+):(\d+)\]', tok)
    if m: return [(m.group(1), i) for i in range(int(m.group(2)), int(m.group(3)) + 1)]
    if tok == 'vcc': return [('s', 106), ('s', 107)]
    if tok == 'vcc_lo': return [('s', 106)]
    if tok == 'vcc_hi': return [('s', 107)]
    if tok == 'exec': return [('s', 126), ('s', 127)]
    if tok == 'm0': return [('s', 124)]
    return []

class Ins:
    def __init__(self, text):
        self.text = text
        t = text.split(';')[0].strip()
        parts = t.split(None, 1)
        self.op = parts[0]
        rest = parts[1] if len(parts) > 1 else ''
        ops = []; cur = ''; depth = 0
        for ch in rest:
            if ch in '[(': depth += 1
            if ch in '])': depth -= 1
            if ch == ',' and depth == 0: ops.append(cur); cur = ''
            else: cur += ch
        if cur.strip(): ops.append(cur)
        mods = ''
        if ops:
            last = ops[-1].strip().split(None, 1)
            ops[-1] = last[0]
            mods = last[1] if len(last) > 1 else ''
        self.mods = mods
        ops = [o.strip() for o in ops]
        self.ops = ops
        op = self.op
        self.cls = 'other'
        d = []; s = []
        if op.startswith('v_mfma'):
            self.cls = 'sgemm' if op.endswith('_f32') and 'x4_f32' in op or op.endswith('x2_f32') else 'xdl'
            d = regs_of(ops[0]); self.srcA = regs_of(ops[1]); self.srcB = regs_of(ops[2]); self.srcC = regs_of(ops[3])
            s = self.srcA + self.srcB + self.srcC
            if '16x16x32' in op: self.passes = 4
            elif '32x32x16' in op: self.passes = 8
            elif '16x16x4_f32' in op: self.passes = 8
            elif '32x32x2_f32' in op: self.passes = 16
            else: raise Exception('unknown mfma ' + op)
        elif op.startswith('v_'):
            self.cls = 'valu'
            d = regs_of(ops[0])
            rs = ops[1:]
            if op.startswith(('v_add_co', 'v_sub_co', 'v_addc_co', 'v_subb_co', 'v_subrev_co', 'v_mad_u64', 'v_div_scale')):
                d += regs_of(ops[1]); rs = ops[2:]
            for o in rs: s += regs_of(o)
            if op.startswith(('v_fmac', 'v_pk_fmac', 'v_dot2c')) or 'dpp' in op or 'd16' in op or op.startswith('v_writelane'): s += regs_of(ops[0])
            if op.startswith('v_permlane') : d += regs_of(ops[1]); s += regs_of(ops[0])
            if op.startswith('v_cmpx'): d += regs_of('exec')
        elif op.startswith('ds_'):
            self.cls = 'ds'
            if op.startswith(('ds_read', 'ds_bpermute', 'ds_permute', 'ds_swizzle')) or '_rtn' in op:
                d = regs_of(ops[0])
                for o in ops[1:]: s += regs_of(o)
                if 'd16' in op: s += regs_of(ops[0])
            else:
                for o in ops: s += regs_of(o)
        elif op.startswith(('buffer_', 'global_')):
            self.cls = 'vmem'
            islds = re.search(r'\blds\b', mods) is not None or '_lds_' in op
            self.islds = islds
            if ('load' in op) and not islds:
                d = regs_of(ops[0])
                for o in ops[1:]: s += regs_of(o)
            else:
                for o in ops: s += regs_of(o)
                if 'atomic' in op and 'sc0' in mods: d = regs_of(ops[0])
            if islds: s += regs_of('m0')
        elif op.startswith(('s_load', 's_buffer_load', 's_memtime', 's_memrealtime')):
            self.cls = 'smem'
            d = regs_of(ops[0])
            for o in ops[1:]: s += regs_of(o)
        elif op.startswith('s_'):
            self.cls = 'salu'
            if op.startswith(NODST_S):
                for o in ops: s += regs_of(o)
            else:
                d = regs_of(ops[0])
                for o in ops[1:]: s += regs_of(o)
                if 'saveexec' in op: d += regs_of('exec')
        self.d = set(d); self.s = set(s)
        self.trans = op.replace('_e32', '').replace('_e64', '') in TRANS
        self.dpp = 'dpp' in op or 'row_' in mods or 'quad_perm' in mods
        self.states = 1
        if op == 's_nop': self.states = int(ops[0], 0) + 1

def need(p, c):
    n = 0
    pv = {r for r in p.d if r[0] in 'va'}; ps = {r for r in p.d if r[0] == 's'}
    if p.cls == 'valu':
        if c.cls in ('xdl', 'sgemm') and pv & c.s: n = max(n, 2)
        if c.cls in ('xdl', 'sgemm') and ('s', 126) in ps: n = max(n, 4)
        if p.trans and c.cls in ('valu',) and not c.trans and pv & (c.s | c.d): n = max(n, 1)
        if p.trans and c.cls in ('valu',) and c.trans and pv & (c.s): n = max(n, 1)
        if p.trans and c.cls in ('ds', 'vmem') and pv & c.s: n = max(n, 1)
        if c.cls == 'valu' and c.dpp and pv & c.s: n = max(n, 2)
        if c.cls == 'valu' and c.dpp and ('s', 126) in ps: n = max(n, 5)
        if c.cls == 'valu' and c.op.startswith('v_permlane') and pv & c.s: n = max(n, 2)
        if c.cls == 'valu' and c.op.startswith(('v_readlane', 'v_readfirstlane')) and pv & c.s: n = max(n, 1)
        if ps:
            if c.cls == 'vmem' and ps & c.s: n = max(n, 5)
            if c.cls == 'valu' and ps & c.s:
                n = max(n, 4 if c.op.startswith(('v_readlane', 'v_writelane')) else 2)
            if c.cls in ('salu', 'smem') and ps & c.s: n = max(n, 1)
            if ('s', 126) in ps and c.cls == 'valu' and c.op.startswith(('v_readlane', 'v_readfirstlane', 'v_writelane', 'v_permlane')): n = max(n, 4)
        if 'sdwa' in p.op or 'op_sel' in p.mods:
            if c.cls == 'valu' and pv & (c.s | c.d): n = max(n, 1)
    if p.cls == 'salu':
        if ('s', 124) in p.d and c.cls == 'vmem' and getattr(c, 'islds', False): n = max(n, 1)
    if p.cls == 'vmem' and 'store' in p.op and ('x4' in p.op or 'x3' in p.op):
        data = set(regs_of(p.ops[0])) if p.op.startswith('buffer') else set(regs_of(p.ops[1]))
        if data & c.d: n = max(n, 2)
    if p.cls in ('xdl', 'sgemm'):
        idx = {2: 0, 4: 1, 8: 2, 16: 3}[p.passes]
        if p.cls == 'xdl':
            if c.cls in ('xdl', 'sgemm'):
                if pv & set(c.srcA + c.srcB): n = max(n, [5, 8, 12, 20][idx])
                if pv & set(c.srcC):
                    if c.cls == 'xdl' and set(c.srcC) == pv and c.passes == p.passes: n = max(n, [2, 0, 0, 0][idx])
                    else: n = max(n, [4, 6, 10, 18][idx])
                elif pv & c.d: n = max(n, [5, 8, 12, 20][idx])
            elif pv & (c.s | c.d): n = max(n, [5, 8, 12, 20][idx])
            if c.cls == 'valu' and set(p.srcC) & c.d: n = max(n, [1, 3, 7, 15][idx])
        else:
            if c.cls in ('xdl', 'sgemm'):
                if pv & set(c.srcA + c.srcB): n = max(n, [4, 6, 10, 18][idx])
                if pv & set(c.srcC):
                    if c.cls == 'sgemm' and set(c.srcC) == pv: n = max(n, [2, 0, 0, 0][idx])
                    else: n = max(n, [2, 4, 8, 16][idx])
                elif pv & c.d: n = max(n, [4, 6, 10, 18][idx])
            elif pv & (c.s | c.d): n = max(n, [4, 6, 10, 18][idx])
    return n

class Asm:
    def __init__(self):
        self.lines = []
        self.win = []
        self.nops = 0
    def raw(self, text):
        self.lines.append(text)
    def label(self, name):
        self.lines.append(name + ':')
    def comment(self, t):
        self.lines.append('    ; ' + t)
    def fence(self):
        worst = 0; dist = 0
        for p in reversed(self.win):
            w = 0
            if p.cls == 'valu': w = 5
            if p.cls in ('xdl', 'sgemm'): w = {2: 5, 4: 8, 8: 12, 16: 20}[p.passes]
            if p.cls == 'vmem': w = 2
            if p.cls == 'salu': w = 1 if ('s', 124) in p.d else 0
            worst = max(worst, w - dist)
            dist += p.states
        while worst > 0:
            k = min(worst, 16)
            self('s_nop %d' % (k - 1))
            worst -= k
        self.win = []
    def __call__(self, text):
        for ln in text.strip().split('\n'):
            ln = ln.strip()
            if not ln: continue
            if ln.startswith(';'): self.lines.append('    ' + ln); continue
            if ln.endswith(':'): self.label(ln[:-1]); continue
            c = Ins(ln)
            req = 0; dist = 0
            for p in reversed(self.win):
                req = max(req, need(p, c) - dist)
                dist += p.states
                if dist > 24: break
            while req > 0:
                k = min(req, 16)
                nop = Ins('s_nop %d' % (k - 1))
                self.lines.append('    s_nop %d' % (k - 1)); self.win.append(nop); self.nops += 1
                req -= k
            self.lines.append('    ' + ln)
            self.win.append(c)
            if len(self.win) > 40: self.win = self.win[-30:]
    stamps = False
    stamp_op = 's_memrealtime'
    stamp_sel = None
    def stamp(self, i, wait=False):
        if not self.stamps: return
        if isinstance(i, str):
            if i not in self.stamp_sel: return
            i = 1 + self.stamp_sel.index(i)
        self(f'{self.stamp_op} s[{72+2*i}:{73+2*i}]')
        if wait: self('s_waitcnt lgkmcnt(0)')
    def stamp_init(self):
        if self.stamps:
            for i in range(8): self(f's_mov_b64 s[{72+2*i}:{73+2*i}], 0')
            self('s_mov_b32 s90, s2')
            self.stamp(0)
    def stamp_flush(self, ki, wave_sreg):
        if not self.stamps: return
        if getattr(self, 'encflush', False):
            self.nflush = getattr(self, 'nflush', 0) + 1
            k = self.nflush
            self('s_waitcnt vmcnt(0) lgkmcnt(0)')
            if self.stamp_sel[0].startswith('FIX'):
                if k == 2: return
                self(f'''Lenc{k}:
s_memrealtime s[76:77]
s_waitcnt lgkmcnt(0)
s_sub_u32 s76, s76, s72
s_cmp_lt_u32 s76, {self.stamp_sel[0][3:]}
s_cbranch_scc1 Lenc{k}''')
                return
            if self.stamp_sel[0] == 'END':
                if k == 2: return
                self.stamp(1)
            self.stamp(7)
            self(f'''s_waitcnt lgkmcnt(0)
s_cmp_eq_u32 s74, 0
s_cbranch_scc1 Lenc_done{k}
s_sub_u32 s74, s74, s72
s_mul_i32 s74, s74, 10
Lenc{k}:
s_memrealtime s[76:77]
s_waitcnt lgkmcnt(0)
s_sub_u32 s76, s76, s86
s_cmp_lt_u32 s76, s74
s_cbranch_scc1 Lenc{k}
Lenc_done{k}:''')
            return
        if getattr(self, 'dbgflush', False):
            self.nflush = getattr(self, 'nflush', 0) + 1
            return self.stamp_flush_dbg(0 if self.nflush == 1 else 8)
        self('s_waitcnt vmcnt(0) lgkmcnt(0)')
        self.stamp(7)
        self('s_mov_b64 exec, 1')
        self('s_waitcnt lgkmcnt(0)')
        for i in range(8): self(f'v_mov_b32 v{8+i}, s{72+2*i}')
        self(f"""s_lshl_b32 s91, s90, 4
s_add_u32 s91, s91, s{wave_sreg}
s_lshl_b32 s91, s91, 5
s_add_u32 s91, s91, {0x8000000 + ki*0x100000}
v_mov_b32 v16, s91
global_store_dwordx4 v16, v[8:11], s[40:41]
global_store_dwordx4 v16, v[12:15], s[40:41] offset:16""")
    def stamp_flush_dbg(self, base):
        self('s_waitcnt vmcnt(0) lgkmcnt(0)')
        self.stamp(7)
        self('s_mov_b64 exec, 1')
        self('s_waitcnt lgkmcnt(0)')
        self('s_not_b32 s72, s72')
        self('v_mov_b32 v16, 0')
        for i in range(8):
            self(f'v_mov_b32 v8, s{72+2*i}')
            self(f'global_atomic_umax v16, v8, s[38:39] offset:{4*(0 if i == 0 else base+i)}')
    def text(self):
        return '\n'.join(self.lines) + '\n'

def vr(a, n=1):
    return 'v%d' % a if n == 1 else 'v[%d:%d]' % (a, a + n - 1)
def sr(a, n=1):
    return 's%d' % a if n == 1 else 's[%d:%d]' % (a, a + n - 1)

def kdesc(name, vgpr, sgpr=102, extra=''):
    acc = (vgpr + 3) // 4 * 4
    return f""".p2align 6
.amdhsa_kernel {name}
  .amdhsa_next_free_vgpr {vgpr}
  .amdhsa_next_free_sgpr {sgpr}
  .amdhsa_accum_offset {acc}
  .amdhsa_group_segment_fixed_size 0
  .amdhsa_kernarg_size 136
  .amdhsa_user_sgpr_count 2
  .amdhsa_user_sgpr_kernarg_segment_ptr 1
  .amdhsa_system_sgpr_workgroup_id_x 1
  .amdhsa_float_denorm_mode_32 3
{extra}.end_amdhsa_kernel
"""
```

```python
import sys, struct
from asmlib import *
from k1 import f2u, L2E, L2E_HI, L2E_LO, INV2PI, load_ptrs, P, ptr, rnd, lo2f, hi2f, bfexp
import k2, k1
k1.HIMASK[0] = 's88'
from align import align
from fused4 import VM
from mfma2 import mfma_phase
KN = 'gated_mix__ssm_conv_s4d__ssm_conv_h3__prompt_kernel'

WS_UR = 0; WS_KVR = 0x240080; WS_IN = 5 << 20; WS_GT = WS_IN + 1024; WS_EP = WS_IN + (1 << 20)
KLC = 4224; KLS = 2 * KLC
UXC = 4576; UXS = 2 * UXC
L_KL = 0
L_UX = 4 * KLS
L_Y = L_UX + 4 * UXS
L_G = L_Y + 16384
L_RED = L_G + 4096
L_KC = L_RED + 8192
L_TK = L_KC + 6144
L_TV = L_TK + 9 * 1040
L_TU = L_TV + 8 * 1040
L_PAR = L_TU + 8 * 1040
L_PARW = L_PAR + 4096
L_FLG = L_PARW + 4096
L_END = L_FLG + 512
F_U = 128; F_T = 192; F_K = 208; F_S = 256
assert all(x % 16 == 0 for x in (L_UX, L_Y, L_RED, L_KC, L_TK, L_TV, L_TU, L_PAR, L_PARW, L_FLG))

def gen(path, stamps=None, opts=None):
    o = dict(lateg=True, ont=False, NPRE=20, prefetch=True, prio=2, sleep=1, tprio=3, ssm='T', gmask=15)
    o.update(opts or {})
    A = Asm(); A.stamps = bool(stamps); A.stamp_sel = stamps
    if o.get('cyc'): A.stamp_op = 's_memtime'
    A.dbgflush = o.get('dbg', False)
    A.encflush = o.get('enc', False)
    V = VM(A)
    PIT = o.get('pitch', 4096)
    A.raw(f'.globl {KN}\n.p2align 8\n.type {KN},@function\n{KN}:')
    A('s_cmp_ge_u32 s2, 256\ns_cbranch_scc1 Lend')
    A.stamp_init()
    load_ptrs(A)
    A('s_mov_b32 s88, 0xffff0000')
    LANE, IDX, KG = 1, 2, 3
    t0, t1, t2, t3, t4, t5, t6, t7 = 40, 41, 42, 43, 44, 45, 46, 47
    if o['prefetch'] == 'T': A('s_getpc_b64 s[68:69]\ns_and_b32 s68, s68, 0xffffff00')
    if o['prefetch'] is True:
        A(f'''s_cmp_ge_u32 s2, {o.get('pfwg', 256)}
s_cbranch_scc1 Lnopf
s_getpc_b64 s[68:69]
v_lshlrev_b32 v49, 4, v0
v_add_u32 v50, 0x2000, v49
v_min_u32 v50, Lend-{KN}-16, v50
s_and_b32 s68, s68, 0xffffff00
global_load_dwordx4 v[56:59], v49, s[68:69]
global_load_dwordx4 v[60:63], v50, s[68:69]
Lnopf:''')
    A(f'''v_lshrrev_b32 v{t0}, 6, v0
v_readfirstlane_b32 s3, v{t0}          ; wave
v_and_b32 v{LANE}, 63, v0
v_and_b32 v{IDX}, 15, v0
v_bfe_u32 v{KG}, v0, 4, 2
v_lshlrev_b32 v{t0}, 4, v{LANE}        ; lane*16
s_and_b32 s4, s2, 7                    ; s
s_lshr_b32 s5, s2, 3                   ; jq
s_lshl_b32 s6, s4, 6
s_lshl_b32 s7, s5, 1
s_add_u32 s6, s6, s7                   ; d0
s_and_b32 s43, s3, 3                   ; w&3
s_cmp_ge_u32 s3, 4
s_cbranch_scc1 Ltw''')
    PL = 51
    A(f'''s_lshl_b32 s70, s6, 8
v_lshlrev_b32 v{t1}, 1, v0
v_add_u32 v{t1}, s70, v{t1}
s_lshr_b32 s42, s3, 1                  ; ch
s_add_u32 s7, s42, s6                  ; d
s_lshl_b32 s71, s7, 1
v_mov_b32 v{t2}, s71
s_mov_b32 s48, {f2u(L2E_HI):#x}
s_mov_b32 s49, {f2u(L2E_LO):#x}
s_waitcnt lgkmcnt(0)''')
    V.issue(f"global_load_ushort v{PL}, v{t2}, {ptr('logdt')}", 'par')
    V.issue(f"global_load_ushort v{PL+1}, v{t1}, {ptr('logA')} {o.get('pnt','')}", 'par')
    V.issue(f"global_load_ushort v{PL+2}, v{t1}, {ptr('Aim')} {o.get('pnt','')}", 'par')
    V.issue(f"global_load_ushort v{PL+3}, v{t1}, {ptr('Cr')} {o.get('pnt','')}", 'par')
    V.issue(f"global_load_ushort v{PL+4}, v{t1}, {ptr('Ci')} {o.get('pnt','')}", 'par')
    if o.get('touch', True):
        A(f'''v_and_b32 v{t2}, 1, v0
v_lshlrev_b32 v{t2}, 21, v{t2}
v_bfe_u32 v{t3}, v0, 1, 2
v_lshl_add_u32 v{t2}, v{t3}, 16, v{t2}
s_lshl_b32 s70, s4, 18
v_add_u32 v{t2}, s70, v{t2}
v_lshlrev_b32 v{t3}, 19, v{t3}
global_load_dword v253, v{t2}, {ptr('ws')}
global_load_dword v254, v{t3}, {ptr('out')}''')
    A('s_barrier\ns_branch Lkw')
    A.win = []
    A.label('Ltw')

    def ssm_dma(t5):
        A(f'''s_lshr_b32 s94, s43, 1
s_add_u32 s95, s94, s6
s_lshl_b32 s95, s95, 12
s_add_u32 s60, s{P['ssmk']}, s95
s_addc_u32 s61, s{P['ssmk']+1}, 0
s_mov_b32 s62, 4096
s_mov_b32 s63, 0x00020000
s_mul_i32 s94, s94, {2*KLS}
s_and_b32 s95, s43, 1
s_mul_i32 s97, s95, {KLC}
s_add_u32 s94, s94, s97
s_add_u32 s94, s94, {L_KL + KLS}
s_lshl_b32 s95, s95, 2
v_lshlrev_b32 v{t5}, 2, v{LANE}
s_sub_u32 s96, s95, 64
v_add_u32 v{t5}, s96, v{t5}
s_add_u32 m0, s94, 64''')
        for i in range(4):
            V.issue(f'buffer_load_dwordx4 v{t0}, s[60:63], s95 offen offset:{1024*i} {o.get("snt","")} lds', 'ssmk')
        A('s_mov_b32 m0, s94\ns_mov_b64 exec, 0xffff')
        V.issue(f'buffer_load_dword v{t5}, s[60:63], 0 offen lds', 'ssmk')
        A('s_mov_b64 exec, -1')
    nsync = [0]
    def sync(off, n, vaddr_w, vaddr_r, vone, tmp):
        k = nsync[0]; nsync[0] += 1
        if vaddr_w is not None: A(f'ds_write_b32 v{vaddr_w}, v{vone} offset:{off}')
        A.fence()
        A.label(f'Lsy{k}')
        if n == 2:
            A(f'ds_read_b64 {vr(tmp,2)}, v{vaddr_r} offset:{off}\ns_waitcnt lgkmcnt(0)\nv_and_b32 v{tmp}, v{tmp}, v{tmp+1}')
        else:
            A(f'ds_read_b128 {vr(tmp,4)}, v{vaddr_r} offset:{off}\ns_waitcnt lgkmcnt(0)\nv_and_b32 v{tmp}, v{tmp}, v{tmp+1}\nv_and_b32 v{tmp+2}, v{tmp+2}, v{tmp+3}\nv_and_b32 v{tmp}, v{tmp}, v{tmp+2}')
        A(f'v_cmp_ne_u32 vcc, 0, v{tmp}\ns_cbranch_vccz Lsy{k}')
    V.q = []
    TAG = 4
    SK = 8; GU = 16; GW = 24
    VST = 36; VTA = 37; VTB = 38; VFL = 39
    VSW = 28; VSR = 29; ONE = 30
    if o['tprio'] and not o.get('lateprio', False): A(f"s_setprio {o['tprio']}")
    A(f'''v_lshrrev_b32 v{t4}, 3, v{LANE}
v_lshlrev_b32 v{t4}, 10, v{t4}
v_and_b32 v{t5}, 7, v0
v_lshl_add_u32 v{t4}, v{t5}, 4, v{t4}
s_lshl_b32 s70, s5, 16
s_lshl_b32 s71, s4, 7
s_add_u32 s70, s70, s71
s_sub_u32 s71, s70, 0x2000
v_add_u32 v{t5}, s71, v{t4}
s_lshl_b32 s71, s43, 14
s_add_u32 s70, s70, s71
v_add_u32 v{t4}, s70, v{t4}
v_add_u32 v{t1}, 0x2000, v{t4}
s_mul_i32 s70, s43, 2080
s_lshl_b32 s71, s43, 4
s_lshl_b64 s[92:93], 0xffff, s71
v_mov_b32 v{t3}, {WS_EP}
s_lshl_b32 s94, s4, 9
s_lshl_b32 s95, s43, 7
s_add_u32 s94, s94, s95
v_lshlrev_b32 v{t6}, 4, v{KG}
v_add_u32 v{t6}, s94, v{t6}
s_lshl_b32 s94, s2, 13
s_lshl_b32 s95, s43, 11
s_add_u32 s94, s94, s95
v_add_u32 v{t7}, s94, v{t0}
v_mov_b32 v108, 0
v_mov_b32 v109, 0
v_mov_b32 v110, 0
v_mov_b32 v111, 0
v_add_u32 v{t2}, {L_FLG}, v{t0}
s_mov_b64 exec, 0xffffffff
ds_write_b128 v{t2}, v[108:111]
s_lshr_b32 s94, s43, 1
s_mul_i32 s94, s94, {2*KLS}
s_and_b32 s95, s43, 1
s_mul_i32 s95, s95, {KLC}
s_add_u32 s94, s94, s95
v_add_u32 v{t2}, s94, v{t0}
s_mov_b64 exec, 15
ds_write_b128 v{t2}, v[108:111] offset:{L_KL}
s_mov_b64 exec, -1
s_waitcnt lgkmcnt(0)
{'s_barrier' if o.get('early_bar', True) else ''}
s_mov_b32 s44, s{P['k']}
s_mov_b32 s45, s{P['k']+1}
s_mov_b32 s46, 0x200000
s_mov_b32 s47, 0x00020000''')
    if o['prefetch'] == 'T':
        A(f'v_subrev_u32 v49, 0x100, v0\nv_lshlrev_b32 v49, 4, v49')
        for i in range(4):
            A(f'v_add_u32 v50, {4096*i}, v49\nv_min_u32 v50, Lend-{KN}-16, v50')
            V.issue('global_load_dwordx4 v[56:59], v50, s[68:69]', 'pf')
    V.issue(f"global_load_dwordx4 {vr(SK,4)}, v{t6}, {ptr('shk')}", 'sk')
    V.issue(f"global_load_dwordx4 {vr(SK+4,4)}, v{t6}, {ptr('shk')} offset:64", 'sk')
    V.issue(f"global_load_dword v{TAG}, v{t3}, {ptr('ws')}", 'sk')
    if o.get('stag'):
        A('s_lshr_b32 s94, s5, 3')
        A.label('Lstag')
        A(f's_cmp_eq_u32 s94, 0\ns_cbranch_scc1 Lstagd\ns_sleep {o["stag"]}\ns_sub_u32 s94, s94, 1\ns_branch Lstag')
        A.label('Lstagd')
    for g, va in ((0, t4), (1, t1)):
        A(f's_add_u32 m0, s70, {L_TK + 1040 + 1040*g}')
        V.issue(f"global_load_lds_dwordx4 v{va}, {ptr('k')} {o.get('tnt','') if 'k' in o.get('tntw','kvu') else ''}", 'tile')
        A(f's_add_u32 m0, s70, {L_TV + 1040*g}')
        V.issue(f"global_load_lds_dwordx4 v{va}, {ptr('v')} {o.get('tnt','') if 'v' in o.get('tntw','kvu') else ''}", 'tile')
        A(f's_add_u32 m0, s70, {L_TU + 1040*g}')
        V.issue(f"global_load_lds_dwordx4 v{va}, {ptr('u')} {o.get('tnt','') if 'u' in o.get('tntw','kvu') else ''}", 'tile')
    A(f's_mov_b32 m0, {L_TK}\ns_mov_b64 exec, s[92:93]')
    V.issue(f'buffer_load_dwordx4 v{t5}, s[44:47], 0 offen lds', 'tile')
    A('s_mov_b64 exec, -1')
    if not o.get('early_bar', True): A('s_barrier')
    def gate_loads():
        V.issue(f"global_load_dwordx4 {vr(GU,4)}, v48, {ptr('u')} {o.get('gnt','')}", 'gate')
        V.issue(f"global_load_dwordx4 {vr(GU+4,4)}, v48, {ptr('u')} offset:1024 {o.get('gnt','')}", 'gate')
        V.issue(f"global_load_dwordx4 {vr(GW,4)}, v{t0}, {ptr('gw')}", 'gate')
    A(f'v_mov_b32 v48, v{t7}')
    c1, c2 = 5, 6
    H = 120; GQ = 96; SD = 64
    A(f'''s_lshl_b32 s95, s6, 1
s_load_dword s98, {ptr('Dskip')}, s95
s_load_dword s99, {ptr('ssmD')}, s95
s_mov_b32 s52, 0x05040100
s_mov_b32 s53, 0x07060302
v_and_b32 v31, 7, v{IDX}
v_sub_u32 v{c1}, 7, v31                ; grp
v_mul_u32_u24 v{VTA}, 1040, v{c1}
v_lshrrev_b32 v{c2}, 3, v{IDX}         ; par
v_lshl_add_u32 v{VTA}, v{c2}, 9, v{VTA}
v_lshl_add_u32 v{VTA}, v{KG}, 2, v{VTA}
s_lshl_b32 s94, s43, 5
s_add_u32 s94, s94, {L_TK}
v_add_u32 v{VTA}, s94, v{VTA}
v_lshl_add_u32 v{VTB}, v{c2}, 4, v{VTA}
v_lshl_add_u32 v{VST}, v{KG}, 1, v{c2}
v_mul_u32_u24 v{VST}, {PIT}, v{VST}
v_lshlrev_b32 v{c1}, 4, v{c1}
v_sub_u32 v{VST}, v{VST}, v{c1}
s_lshl_b32 s94, s4, 6
s_lshl_b32 s95, s43, 4
s_add_u32 s94, s94, s95
s_mul_i32 s94, s94, {PIT}
s_lshl_b32 s95, s5, 7
s_sub_u32 s94, s94, s95
s_add_u32 s94, s94, {3968 + 112}
v_add_u32 v{VST}, s94, v{VST}
v_cmp_eq_u32 s[54:55], 1, v{c2}
s_lshl_b32 s94, s43, 2
s_add_u32 s94, s94, {L_FLG}
v_mov_b32 v{VSW}, s94
v_mov_b32 v{VSR}, {L_FLG}
v_mov_b32 v{ONE}, 1''')
    A(f'''; flag addr: consumers q = 8h + (lane&7); lanes 8..15 secondary
s_lshl_b32 s94, s43, 3
v_and_b32 v{c1}, 7, v0
v_add_u32 v{VFL}, s94, v{c1}
v_lshlrev_b32 v{VFL}, 15, v{VFL}
s_lshl_b32 s94, s4, 12
s_lshr_b32 s95, s5, 3
s_lshl_b32 s95, s95, 7
s_add_u32 s94, s94, s95
s_and_b32 s95, s5, 7
s_lshl_b32 s96, s95, 2
s_add_u32 s94, s94, s96
s_add_u32 s94, s94, {WS_IN}
v_bfe_u32 v{c1}, v0, 3, 1
v_mul_u32_u24 v{c1}, 132, v{c1}
v_add3_u32 v{VFL}, v{VFL}, v{c1}, s94
s_cmp_eq_u32 s95, 7
s_movk_i32 s70, 0xff
s_cselect_b32 s70, 0xffff, s70
s_cmp_eq_u32 s5, 31
s_cselect_b32 s70, 0xff, s70
s_mul_i32 s94, s43, {UXS}
s_add_u32 s94, s94, {L_UX + 4096}
v_add_u32 v{c1}, s94, v{t0}
s_mov_b32 exec_lo, 0x0fffffff
s_mov_b32 exec_hi, 0
ds_write_b128 v{c1}, v[108:111]
ds_write_b128 v{c1}, v[108:111] offset:{UXC}
s_mov_b64 exec, -1
v_subrev_u32 v5, 0x100, v0             ; ht
v_lshrrev_b32 v{H+8}, 2, v5
v_lshlrev_b32 v{H+8}, 12, v{H+8}
v_and_b32 v6, 3, v5
v_lshl_add_u32 v{H+8}, v6, 4, v{H+8}
v_add_u32 v{H+8}, {WS_GT}, v{H+8}
v_add_u32 v{H+9}, 0x40000, v{H+8}
v_add_u32 v{H+10}, 0x80000, v{H+8}
v_add_u32 v{H+11}, 0xc0000, v{H+8}
s_lshl_b32 s95, s6, 1
s_mov_b32 s56, s{P['out']}
s_mov_b32 s57, s{P['out']+1}
s_mov_b32 s58, 0x200000
s_mov_b32 s59, 0x00020000
v_lshlrev_b32 v6, 2, v5
v_add_u32 v{H}, {L_Y}, v6              ; vP
v_sub_u32 v{H+1}, {L_UX + UXC + 4092}, v6 ; vN
v_lshlrev_b32 v{H+2}, 11, v5
v_add_u32 v{H+2}, s95, v{H+2}          ; vO
s_lshr_b32 s94, s43, 1
s_lshl_b32 s94, s94, 4
s_add_u32 s94, s94, {L_FLG}
v_mov_b32 v{H+3}, s94
v_mov_b32 v{H+12}, {L_FLG + F_U}
v_min_u32 v{t3}, 8, v{IDX}
v_min_u32 v{t4}, 7, v{IDX}
v_cmp_eq_u32 vcc, 0, v{KG}
v_cndmask_b32 v{t3}, v{t3}, v{t4}, vcc
v_lshlrev_b32 v{t3}, 2, v{t3}
v_lshl_add_u32 v{t3}, v{KG}, 7, v{t3}
s_lshl_b32 s94, s2, 12
s_add_u32 s94, s94, {WS_IN}
v_add_u32 v{t3}, s94, v{t3}
s_lshr_b32 s94, s43, 1
s_add_u32 s94, s94, s6
s_mul_i32 s94, s94, {PIT}
s_and_b32 s95, s43, 1
s_mul_i32 s95, s95, {WS_KVR}
s_add_u32 s94, s94, s95
s_add_u32 s64, s{P['ws']}, s94
s_addc_u32 s65, s{P['ws']+1}, 0
s_mul_i32 s94, s43, {UXS}
s_add_u32 s94, s94, {L_UX}
v_add_u32 v{t2}, s94, v{t0}
v_cmp_eq_u32 s[92:93], 63, v{LANE}
s_waitcnt lgkmcnt(0)
s_lshl_b32 s100, s98, 16
s_and_b32 s101, s98, 0xffff0000
v_mov_b32 v{H+4}, s100
v_mov_b32 v{H+5}, s101
s_lshl_b32 s100, s99, 16
s_and_b32 s101, s99, 0xffff0000
v_mov_b32 v{H+6}, s100
v_mov_b32 v{H+7}, s101''')
    if not o.get('late', False) and not o.get('lateg'): gate_loads()
    A(f'''s_lshl_b32 s94, s2, 12
s_lshl_b32 s95, s43, 7
s_add_u32 s94, s94, s95
s_add_u32 s94, s94, {WS_IN}
v_and_b32 v7, 3, v0
v_lshlrev_b32 v7, 10, v7
v_add_u32 v7, s94, v7''')
    V.issue(f"global_load_dword v7, v7, {ptr('ws')} sc1", 'warm')
    if o['ssm'] == 'T' and not o.get('late', False): ssm_dma(35)
    A.stamp('issued')
    WS2 = [188, 196]
    V.wait('sk')
    for i in range(2):
        for t in range(4):
            for ee in range(2):
                (hi2f if t & 1 else lo2f)(A, WS2[i] + 2 * t + ee, SK + 4 * i + 2 * ee + (t >> 1))
    A(f'v_add_u32 v{TAG}, 1, v{TAG}')
    if o['tprio'] and o.get('lateprio', False): A(f"s_setprio {o['tprio']}")
    V.wait('tile')
    A.stamp('tile')
    if o.get('lateg'):
        A(f'ds_write_b32 v{VSW}, v{ONE} offset:{F_T}')
        gate_loads()
    if o.get('late', False):
        A(f'ds_write_b32 v{VSW}, v{ONE} offset:{F_T}')
        gate_loads()
        if o['ssm'] == 'T': ssm_dma(35)
    sync(F_T, 4, VSW, VSR, ONE, 32)
    A.stamp('bar1', True)
    dpp = 'row_ror:8 row_mask:0xf bank_mask:0xf'
    KD = [140, 156]
    def tread(i):
        k = KD[i]
        for r in range(3): A(f'ds_read_b32 v{k+r}, v{VTB} offset:{512 + 128*(r+1) + 16*i}')
        for r in range(4): A(f'ds_read_b32 v{k+3+r}, v{VTA} offset:{1040 + 128*r + 16*i}')
        for r in range(4): A(f'ds_read_b32 v{k+7+r}, v{VTA} offset:{L_TV - L_TK + 128*r + 16*i}')
        for r in range(4): A(f'ds_read_b32 v{k+11+r}, v{VTA} offset:{L_TU - L_TK + 128*r + 16*i}')
    W = 64; KP = 72; VP = 86; AC = 94; O = 102; UNS = [172, 180]
    tread(0)
    for i in range(2):
        k = KD[i]; VD = k + 7; UD = k + 11; UN = UNS[i]
        W = WS2[i]
        A('s_waitcnt lgkmcnt(0)')
        if i == 0: tread(1)
        for r in range(7): lo2f(A, KP + 2 * r, k + r); hi2f(A, KP + 2 * r + 1, k + r)
        for a in range(4): A(f'v_pk_mul_f32 {vr(AC+2*a,2)}, {vr(KP+2*a,2)}, {vr(W+6,2)}')
        for r in range(4): lo2f(A, VP + 2 * r, VD + r); hi2f(A, VP + 2 * r + 1, VD + r)
        for tp in range(1, 4):
            for a in range(4): A(f'v_pk_fma_f32 {vr(AC+2*a,2)}, {vr(KP+2*(a+tp),2)}, {vr(W+2*(3-tp),2)}, {vr(AC+2*a,2)}')
        for ch in range(2):
            A(f'v_perm_b32 v{O+4+2*ch}, v{UD+2}, v{UD+3}, s{52+ch}')
            A(f'v_perm_b32 v{O+4+2*ch+1}, v{UD}, v{UD+1}, s{52+ch}')
        for a in range(4): A(f'v_pk_mul_f32 {vr(AC+2*a,2)}, {vr(AC+2*a,2)}, {vr(VP+2*a,2)}')
        A('s_mov_b64 vcc, s[54:55]')
        for ch in range(2):
            A(f'v_cvt_pk_bf16_f32 v{O+2*ch}, v{AC+6+ch}, v{AC+4+ch}')
            A(f'v_cvt_pk_bf16_f32 v{O+2*ch+1}, v{AC+2+ch}, v{AC+ch}')
        for tn in (1, 0):
            for e in range(2):
                A(f'v_cndmask_b32_dpp v{UN+4*tn+e}, v{O+4*tn+e}, v{O+4*tn+2+e}, vcc {dpp}')
        A('s_not_b64 vcc, vcc')
        for tn in (1, 0):
            for e in range(2):
                A(f'v_cndmask_b32_dpp v{UN+4*tn+2+e}, v{O+4*tn+2+e}, v{O+4*tn+e}, vcc {dpp}')
        A(f'v_add_u32 v{t7}, {WS_KVR}, v{VST}')
        V.issue(f"global_store_dwordx4 v{VST}, {vr(UN+4,4)}, {ptr('ws')} {o.get('sflag','sc1')}", 'st')
        V.issue(f"global_store_dwordx4 v{t7}, {vr(UN,4)}, {ptr('ws')} {o.get('sflag','sc1')}", 'st')
        if i == 0: A(f'v_add_u32 v{VST}, {8*PIT}, v{VST}')
    A.stamp('tst')
    if o.get('dip', False): A('s_setprio 0')
    X = 64
    if o['ssm'] == 'T':
        V.wait('ssmk', 'gate')
        A(f'ds_write_b32 v{VSW}, v{ONE} offset:{F_S}')
    else: V.wait('gate')
    for r in range(2):
        A(f'v_dot2_f32_bf16 v{X+2*r}, v{GU+4*r}, v{GW}, 0\nv_dot2_f32_bf16 v{X+2*r+1}, v{GU+4*r+1}, v{GW+1}, 0')
    for r in range(2):
        A(f'v_dot2_f32_bf16 v{X+2*r}, v{GU+4*r+2}, v{GW+2}, v{X+2*r}\nv_dot2_f32_bf16 v{X+2*r+1}, v{GU+4*r+3}, v{GW+3}, v{X+2*r+1}')
    A(f'''s_lshl_b32 s94, s2, 12
s_lshl_b32 s95, s43, 4
s_add_u32 s94, s94, s95
s_add_u32 s94, s94, {WS_GT}
v_add_f32 v{X}, v{X}, v{X+1}
v_add_f32 v{X+2}, v{X+2}, v{X+3}
v_mov_b32 v{t7}, s94''')
    for sh in ('row_shr:1 row_mask:0xf bank_mask:0xf bound_ctrl:0', 'row_shr:2 row_mask:0xf bank_mask:0xf bound_ctrl:0', 'row_shr:4 row_mask:0xf bank_mask:0xf bound_ctrl:0',
               'row_shr:8 row_mask:0xf bank_mask:0xf bound_ctrl:0', 'row_bcast:15 row_mask:0xa bank_mask:0xf', 'row_bcast:31 row_mask:0xc bank_mask:0xf'):
        for r in range(2): A(f'v_add_f32_dpp v{X+2*r}, v{X+2*r}, v{X+2*r} {sh}')
    for r in range(2): rnd(A, X + 2 * r, X + 2 * r)
    for r in range(2): A(f'v_mul_f32 v{X+2*r}, {f2u(-L2E):#x}, v{X+2*r}')
    for r in range(2): A(f'v_exp_f32 v{X+2*r}, v{X+2*r}')
    for r in range(2): A(f'v_add_f32 v{X+2*r}, 1.0, v{X+2*r}')
    for r in range(2): A(f'v_rcp_f32 v{X+2*r}, v{X+2*r}')
    for r in range(2): A(f'v_mov_b32 v{X+2*r+1}, v{TAG}')
    for r in range(2): A(f'v_cvt_pk_bf16_f32 v{X+2*r}, v{X+2*r}, 0')
    A('s_mov_b32 exec_lo, 0\ns_brev_b32 exec_hi, 1')
    V.issue(f"global_store_dwordx4 v{t7}, {vr(X,4)}, {ptr('ws')} sc1", 'g')
    A('s_mov_b32 exec_lo, s70\ns_mov_b32 exec_hi, 0')
    if o.get('dip', False): A(f"s_setprio {o['tprio']}")
    V.wait('st')
    V.issue(f"global_store_dword v{VFL}, v{TAG}, {ptr('ws')}", 'fl')
    A(f's_mov_b64 exec, -1\ns_mov_b32 s94, 0\ns_mov_b64 s[66:67], -1')
    A.stamp('drain', True)
    npoll = [0]
    def poll_once(after=None):
        k = npoll[0]; npoll[0] += 1
        A(f'''global_load_dword v{t7}, v{t3}, {ptr('ws')} sc1
s_add_u32 s94, s94, 1
s_waitcnt vmcnt(0)
v_cmp_ne_u32 vcc, v{TAG}, v{t7}
s_and_b64 s[66:67], s[66:67], vcc
s_cmp_le_u32 s94, {o['gmask']}
s_cbranch_scc1 Lpn{k}
s_mov_b32 exec_lo, s70
s_mov_b32 exec_hi, 0
global_store_dword v{VFL}, v{TAG}, {ptr('ws')} offset:2048 sc1
s_mov_b64 exec, -1
global_load_dword v{t7}, v{t3}, {ptr('ws')} offset:2048 sc1
s_waitcnt vmcnt(0)
v_cmp_ne_u32 vcc, v{TAG}, v{t7}
s_and_b64 s[66:67], s[66:67], vcc
s_cmp_lt_u32 s94, 0x800000
s_cbranch_scc1 Lpn{k}
s_mov_b64 s[66:67], 0''')
        A.fence()
        A.label(f'Lpn{k}')
    def uload(g):
        V.issue(f'global_load_dwordx4 {vr(SD+8*g,4)}, v{t0}, s[64:65] offset:{3072-1024*g} sc1', f'u{g}')
        V.issue(f'global_load_dword v{SD+4+8*g}, v{t0}, s[64:65] offset:{3072-1024*g+16} sc1', f'u{g}')
    def stage(g):
        D = SD + 8 * g; E = 8 + 4 * g
        if g == 0: A(f'v_cndmask_b32 v{D+4}, v{D+4}, 0, s[92:93]')
        A(f'ds_write_b128 v{t2}, {vr(D,4)} offset:{UXC + 3072 - 1024*g}')
        for e in range(4): A(f'v_alignbit_b32 v{E+e}, v{D+e+1}, v{D+e}, 16')
        A(f'ds_write_b128 v{t2}, {vr(E,4)} offset:{3072 - 1024*g}')
        A(f'ds_write_b32 v{VSW}, v{ONE} offset:{F_U + 16*g}')
    def gloads():
        for Pp in range(4):
            V.issue(f"global_load_dwordx4 {vr(GQ+4*Pp,4)}, v{H+8+Pp}, {ptr('ws')} sc1", 'gq')
    A.fence()
    A.label('Lpoll')
    poll_once()
    A('s_and_b32 s95, s66, 0xffff\ns_cbranch_scc1 Lpoll')
    A.stamp('polled', True)
    V.q = []
    uload(0)
    A('s_mov_b32 s96, 0\ns_cmp_eq_u64 s[66:67], 0\ns_cbranch_scc1 Lpall')
    A.fence()
    A.label('Lp2')
    poll_once()
    A('s_cmp_lg_u32 s96, 0\ns_cbranch_scc1 Lp3\ns_mov_b32 s96, 1')
    stage(0)
    A.fence()
    A.label('Lp3')
    A('s_cmp_lg_u64 s[66:67], 0\ns_cbranch_scc1 Lp2')
    A.fence()
    A.label('Lpall')
    for g in (1, 2, 3): uload(g)
    gloads()
    A('s_cmp_lg_u32 s96, 0\ns_cbranch_scc1 Ls0d')
    V.wait('u0')
    stage(0)
    A.fence()
    A.label('Ls0d')
    A.stamp('staged')
    for g in (1, 2, 3):
        V.wait(f'u{g}')
        stage(g)
    A(f'''s_setprio 0
s_mov_b32 exec_lo, s70
s_mov_b32 exec_hi, 0
global_store_dword v{VFL}, v{TAG}, {ptr('ws')} offset:2048 sc1
s_mov_b64 exec, -1
s_mov_b32 s94, 0
s_waitcnt vmcnt(1)
s_branch Lgchk''')
    A.win = []
    A.label('Lgld')
    gloads()
    A('s_waitcnt vmcnt(0)')
    A.label('Lgchk')
    A(f'v_xor_b32 v20, v{TAG}, v{GQ+1}')
    for i in range(1, 8):
        A(f'v_xor_b32 v21, v{TAG}, v{GQ+2*i+1}\nv_or_b32 v20, v20, v21')
    A(f'''v_cmp_ne_u32 vcc, 0, v20
s_cbranch_vccz Lgok
s_add_u32 s94, s94, 1
s_cmp_lt_u32 s94, 0x200000
s_cbranch_scc1 Lgld''')
    A.fence()
    A.label('Lgok')
    A.stamp('gok')
    for Pp in range(4):
        A(f'v_lshl_or_b32 v{20+Pp}, v{GQ+4*Pp+2}, 16, v{GQ+4*Pp}')
        A(f'ds_write_b32 v{H}, v{20+Pp} offset:{16384 + 1024*Pp}')
    A('s_mov_b32 s60, 0')
    A.fence()
    vP, vN, vO, DP, SP, R = H, H + 1, H + 2, H + 4, H + 6, 24
    Y = R; U = R + 4; G = R + 8; UP = R + 10; KV = R + 14; YA = R + 18; YB = R + 22; GG = R + 26; TA = R + 28; O = R + 34
    A.label('Lepi')
    A(f'''ds_read_b128 v[20:23], v{H+12}
s_waitcnt lgkmcnt(0)
v_and_b32 v20, v20, v21
v_and_b32 v22, v22, v23
v_and_b32 v20, v20, v22
v_cmp_ne_u32 vcc, 0, v20
s_cbranch_vccz Lepi''')
    for cv in range(4): A(f'ds_read_b32 v{U+cv}, v{vN} offset:{UXS*cv}')
    A(f'ds_read_b32 v{G}, v{vP} offset:16384\ns_waitcnt lgkmcnt(0)')
    for ch in range(2):
        hi2f(A, UP + ch, U + 2 * ch); lo2f(A, UP + 2 + ch, U + 2 * ch)
        hi2f(A, KV + ch, U + 2 * ch + 1); lo2f(A, KV + 2 + ch, U + 2 * ch + 1)
    lo2f(A, GG, G); hi2f(A, GG + 1, G)
    for i in range(4): A(f'v_mul_f32 v{TA+i}, v{UP+i}, v{GG+(i>>1)}')
    for i in range(4): A(f'v_mul_f32 v{KV+i}, v{KV+i}, v{SP+(i&1)}')
    for i in range(4): A(f'v_sub_f32 v{UP+i}, v{UP+i}, v{TA+i}')
    for i in range(4): A(f'v_mul_f32 v{TA+i}, v{TA+i}, v{DP+(i&1)}')
    for i in range(4): A(f'v_fmac_f32 v{TA+i}, v{UP+i}, v{KV+i}')
    A.fence()
    A.label('Lyw')
    A(f'''ds_read_b128 v[20:23], v{H+3}
s_waitcnt lgkmcnt(0)
v_and_b32 v20, v20, v21
v_and_b32 v22, v22, v23
v_and_b32 v20, v20, v22
v_cmp_ne_u32 vcc, 0, v20
s_cbranch_vccnz Lgo
s_sleep {o['sleep']}
s_branch Lyw''')
    A.win = []
    A.label('Lgo')
    for cv in range(4): A(f'ds_read_b32 v{Y+cv}, v{vP} offset:{4096*cv}')
    A(f'''v_add_u32 v{H}, 0x400, v{H}
v_subrev_u32 v{H+1}, 0x400, v{H+1}
v_add_u32 v{H+3}, 32, v{H+3}
v_add_u32 v{H+12}, 16, v{H+12}
s_waitcnt lgkmcnt(0)''')
    for ch in range(2):
        lo2f(A, YA + ch, Y + 2 * ch); hi2f(A, YA + 2 + ch, Y + 2 * ch)
        lo2f(A, YB + ch, Y + 2 * ch + 1); hi2f(A, YB + 2 + ch, Y + 2 * ch + 1)
    for i in range(4): A(f'v_fmac_f32 v{TA+i}, v{YA+i}, v{GG+(i>>1)}')
    for i in range(4): A(f'v_fmac_f32 v{TA+i}, v{YB+i}, v{UP+i}')
    for a_ in range(2): A(f'v_cvt_pk_bf16_f32 v{O+a_}, v{TA+2*a_}, v{TA+2*a_+1}')
    A(f'buffer_store_dword v{O}, v{vO}, s[56:59], s60 offen')
    A(f'buffer_store_dword v{O+1}, v{vO}, s[56:59], s60 offen offset:1024')
    A('s_add_u32 s60, s60, 0x80000\ns_cmp_lt_u32 s60, 0x200000')
    A.fence()
    A('s_cbranch_scc1 Lepi')
    A(f'''s_cmp_lg_u32 s2, 0
s_cbranch_scc1 Lfin
s_barrier
s_cmp_lg_u32 s3, 4
s_cbranch_scc1 Lfin
v_mov_b32 v20, {WS_EP}
s_mov_b64 exec, 1
global_store_dword v20, v{TAG}, {ptr('ws')} sc1''')
    A.label('Lfin')
    A.stamp_flush(0, 3)
    A('s_endpgm')
    A.win = []
    A.label('Lkw')
    V.q = []
    POS = [5, 6]; VPAR = 7; VPW = 8; FSC = 9
    ACC = [148, 152, 156, 160]
    CA = 200
    GI = 20
    VSW = 26; VSR = 27; ONE = 28
    PL = 51
    V.q = ['par'] * 5 + (['tch'] * 2 if o.get('touch', True) else [])
    A.stamp('issued')
    c1, c2, c3 = 10, 11, 29
    A(f'''s_and_b32 s44, s3, 1                   ; hw = w&1
v_lshrrev_b32 v{t1}, 1, v0
v_lshlrev_b32 v{t1}, 4, v{t1}
v_and_b32 v{t6}, 1, v0
v_lshl_add_u32 v{t1}, v{t6}, 2, v{t1}
v_add_u32 v{t1}, {L_PAR}, v{t1}
s_mov_b32 s50, {f2u(14.0):#x}
v_lshlrev_b32 v{c1}, 3, v{IDX}
v_cvt_f32_u32 v{POS[0]}, v{c1}         ; pL = 8 j
v_subrev_u32 v{c1}, 8, v{IDX}
v_lshlrev_b32 v{c2}, 9, v{c1}
v_lshlrev_b32 v{c1}, 2, v{c1}
v_add_u32 v{c1}, 0x200, v{c1}
v_cmp_gt_u32 vcc, 10, v{IDX}
v_cndmask_b32 v{c1}, v{c2}, v{c1}, vcc
v_cmp_gt_u32 vcc, 8, v{IDX}
v_cndmask_b32 v{c1}, v{c1}, v{IDX}, vcc
v_cvt_f32_u32 v{POS[1]}, v{c1}         ; pR
s_lshl_b32 s94, s3, 9
s_add_u32 s94, s94, {L_PAR}
v_lshlrev_b32 v{VPAR}, 5, v{KG}
v_add_u32 v{VPAR}, s94, v{VPAR}
v_mov_b32 v33, v{POS[0]}
v_mov_b32 v32, v{POS[0]}
v_mov_b32 v34, v{POS[1]}
v_mov_b32 v35, v{POS[1]}
v_mov_b32 v36, s50
v_mov_b32 v37, s50
s_mov_b32 s51, 0
s_lshl_b32 s94, s3, 2
s_add_u32 s94, s94, {L_FLG}
v_mov_b32 v{VSW}, s94
s_lshl_b32 s94, s42, 3
s_add_u32 s94, s94, {L_FLG}
v_mov_b32 v{VSR}, s94
v_mov_b32 v{ONE}, 1''')
    for a in ACC:
        for i in range(4): A(f'v_mov_b32 v{a+i}, 0')
    A(f'''s_mul_i32 s45, s42, 3072
s_add_u32 s45, s45, {L_KC}
v_lshlrev_b32 v{c3}, 2, v{LANE}
v_add_u32 v{c3}, {704*4}, v{c3}        ; dummy
v_lshlrev_b32 v{c1}, 5, v{IDX}
v_lshl_add_u32 v{c1}, v{KG}, 4, v{c1}
v_lshrrev_b32 v{c2}, 1, v{c1}
v_add_u32 v{c2}, 0x400, v{c2}
v_lshlrev_b32 v{t2}, 3, v{IDX}
v_add_u32 v{t2}, {384*4}, v{t2}
v_lshlrev_b32 v{t3}, 2, v{IDX}
v_add_u32 v{t3}, {512*4}, v{t3}
v_cmp_eq_u32 vcc, 2, v{KG}
v_cmp_eq_u32 s[92:93], 3, v{KG}
v_cndmask_b32 v{CA}, v{c1}, v{t2}, vcc
v_add_u32 v{t4}, 0x200, v{t3}
v_cndmask_b32 v{CA}, v{CA}, v{t4}, s[92:93]
v_cndmask_b32 v{CA+1}, v{c1}, v{t2}, vcc
v_add_u32 v{CA+1}, 4, v{CA+1}
v_cndmask_b32 v{CA+1}, v{CA+1}, v{c3}, s[92:93]
v_add_u32 v{t4}, 8, v{c1}
v_cndmask_b32 v{CA+2}, v{t4}, v{t3}, vcc
v_cndmask_b32 v{CA+2}, v{CA+2}, v{c3}, s[92:93]
v_add_u32 v{t4}, 12, v{c1}
v_add_u32 v{t5}, 0x100, v{t3}
v_cndmask_b32 v{CA+3}, v{t4}, v{t5}, vcc
v_cndmask_b32 v{CA+3}, v{CA+3}, v{c3}, s[92:93]
v_mov_b32 v{t4}, 0x200
v_mov_b32 v{t5}, 0x80
v_cndmask_b32 v{t5}, v{t4}, v{t5}, vcc
v_cndmask_b32 v{t7}, v{t5}, 64, s[92:93]         ; step r0
v_cndmask_b32 v{t5}, v{t5}, 0, s[92:93]          ; step r1
v_cndmask_b32 v{t4}, v{t4}, 64, vcc
v_cndmask_b32 v{t4}, v{t4}, 0, s[92:93]          ; step r2,r3
v_add_u32 v{CA+4}, v{CA}, v{t7}
v_add_u32 v{CA+5}, v{CA+1}, v{t5}
v_add_u32 v{CA+6}, v{CA+2}, v{t4}
v_add_u32 v{CA+7}, v{CA+3}, v{t4}
v_add_u32 v{CA+8}, v{CA+4}, v{t7}
v_add_u32 v{CA+9}, v{CA+5}, v{t5}
v_add_u32 v{CA+10}, v{CA+6}, v{t4}
v_add_u32 v{CA+11}, v{CA+7}, v{t4}
v_add_u32 v{CA+12}, v{CA+8}, v{t7}
v_add_u32 v{CA+13}, v{CA+9}, v{t5}
v_add_u32 v{CA+14}, v{CA+10}, v{t4}
v_add_u32 v{CA+15}, v{CA+11}, v{t4}
v_cmp_gt_u32 vcc, 2, v{KG}
v_cndmask_b32 v{CA+8}, v{CA+8}, v{c2}, vcc
v_cndmask_b32 v{CA+9}, v{CA+9}, v{c3}, vcc
v_add_u32 v{t4}, 4, v{c2}
v_cndmask_b32 v{CA+10}, v{CA+10}, v{t4}, vcc
v_cndmask_b32 v{CA+11}, v{CA+11}, v{c3}, vcc
v_add_u32 v{t4}, 0x100, v{c2}
v_cndmask_b32 v{CA+12}, v{CA+12}, v{t4}, vcc
v_cndmask_b32 v{CA+13}, v{CA+13}, v{c3}, vcc
v_add_u32 v{t4}, 0x104, v{c2}
v_cndmask_b32 v{CA+14}, v{CA+14}, v{t4}, vcc
v_cndmask_b32 v{CA+15}, v{CA+15}, v{c3}, vcc''')
    A('s_cmp_eq_u32 s44, 0\ns_cselect_b64 s[92:93], -1, 0')
    for i in range(8): A(f'v_cndmask_b32 v{CA+i}, v{CA+8+i}, v{CA+i}, s[92:93]\nv_add_u32 v{CA+i}, s45, v{CA+i}')
    A(f'v_and_b32 v{c1}, 0x7f, v0\nv_lshlrev_b32 v{c1}, 1, v{c1}\ns_sub_u32 s94, s45, {133*128*4}')
    for n, m in enumerate((1, 2, 4)):
        for e in range(2):
            g = GI + 2 * n + e
            A(f'''v_add_u32 v{g}, {256*m+e}, v{c1}
v_cvt_f32_u32 v{g}, v{g}
v_cvt_pk_bf16_f32 v{g}, v{g}, 0
v_lshl_add_u32 v{g}, v{g}, 2, s94''')
    V.wait('par')
    A.stamp('par')
    for i in range(5): A(f'v_lshlrev_b32 v{PL+i}, 16, v{PL+i}')
    A(f'v_max_f32 v{t5}, |v{PL+3}|, |v{PL+4}|')
    bfexp(A, PL, PL, t2, t3, 48, 49)
    for sh in (1, 2): A(f'v_max_f32_dpp v{t5}, v{t5}, v{t5} row_shr:{sh} row_mask:0xf bank_mask:0xf')
    bfexp(A, PL + 1, PL + 1, t2, t3, 48, 49)
    for sh in (4, 8): A(f'v_max_f32_dpp v{t5}, v{t5}, v{t5} row_shr:{sh} row_mask:0xf bank_mask:0xf')
    A(f'''v_mul_f32 v{PL+1}, v{PL+1}, v{PL}
v_mul_f32 v{PL+2}, v{PL+2}, v{PL}
v_max_f32_dpp v{t5}, v{t5}, v{t5} row_bcast:15 row_mask:0xa bank_mask:0xf
v_mul_f32 v64, {f2u(-L2E):#x}, v{PL+1}
v_mul_f32 v65, {f2u(INV2PI):#x}, v{PL+2}
v_max_f32_dpp v{t5}, v{t5}, v{t5} row_bcast:31 row_mask:0xc bank_mask:0xf
v_mul_f32 v68, 0x43000000, v65
v_mul_f32 v69, 0x43000000, v64
v_readlane_b32 s94, v{t5}, 63
v_fract_f32 v68, v68
v_exp_f32 v69, v69
v_cos_f32 v70, v68
v_sin_f32 v71, v68
s_lshr_b32 s94, s94, 23
s_max_u32 s94, s94, 13
s_sub_u32 s95, 267, s94
s_lshl_b32 s95, s95, 23
s_sub_i32 s94, s94, 153
v_mul_f32 v66, s95, v{PL+3}
v_mul_f32 v67, s95, v{PL+4}
v_ldexp_f32 v{FSC}, v{PL}, s94
v_mul_f32 v70, v69, v70
v_mul_f32 v71, v69, v71
v_rndne_f32 v74, v65
v_sub_f32 v65, v65, v74
v_mul_f32 v72, v70, v70
v_mul_f32 v73, v70, v71
v_fma_f32 v72, -v71, v71, v72
v_add_f32 v73, v73, v73
ds_write2_b32 v{t1}, v64, v65 offset0:0 offset1:2
v_add_u32 v{t6}, 0x800, v{t1}
ds_write2_b32 v{t6}, v66, v67 offset0:0 offset1:2
v_add_u32 v{t6}, 0x1000, v{t1}
ds_write2_b32 v{t6}, v70, v71 offset0:0 offset1:2
v_add_u32 v{t6}, 0x1800, v{t1}
ds_write2_b32 v{t6}, v72, v73 offset0:0 offset1:2''')
    A('s_waitcnt lgkmcnt(0)')
    A.stamp('kstart', True)
    A.fence()
    PRB = [64, 164]
    XA = [96, 100]; LB = [104, 196]
    T = 108
    def pread(buf):
        for jp in range(2):
            for pl in range(4): A(f'ds_read_b128 {vr(PRB[buf]+16*jp+4*pl,4)}, v{VPAR} offset:{2048*pl + 16*jp + 128*buf}')
    pread(0)
    A.label('Lkgen')
    if o['ssm'] == 'Kmid':
        A('s_cmp_lg_u32 s51, 1\ns_cbranch_scc1 Lnossm')
        ssm_dma(38)
        A.fence()
        A.label('Lnossm')
    for buf in range(2):
        PR = PRB[buf]
        def two(fmt, fmt1=None):
            for jp in range(2):
                t = T + 20 * jp; p_ = PR + 16 * jp
                names = dict(a=p_, b=p_+2, cr=p_+4, ci=p_+6, wr=p_+8, wi=p_+10, zr=p_+12, zi=p_+14, thL=t, thR=t+2, mL=t+4, mR=t+6, cL=t+8, sL=t+10, cR=t+12, sR=t+14, p=t+16, q=t+18, x=t, y=t+2)
                if fmt1 is None:
                    A(fmt.format(**{k: vr(v, 2) for k, v in names.items()}))
                else:
                    for e in range(2):
                        A(fmt1.format(j=2*jp+e, **{k: f'v{v+e}' for k, v in names.items()}))
        one = lambda f: two(None, f)
        def cvt(dst, o1, o2, neg=''):
            for k in range(4): A(f'v_cvt_pk_f16_f32 v{dst+k}, v{T+20*(k>>1)+o1+(k&1)}, {neg}v{T+20*(k>>1)+o2+(k&1)}')
        NEG = ' neg_lo:[1,0,0] neg_hi:[1,0,0]'
        A('s_waitcnt lgkmcnt(0)')
        if buf == 1: A(f'v_add_u32 v{VPAR}, 0x100, v{VPAR}')
        pread(1 - buf)
        two('v_pk_mul_f32 {thR}, {b}, v[34:35]'); two('v_pk_mul_f32 {thL}, {b}, v[32:33]')
        two('v_pk_fma_f32 {mL}, {a}, v[32:33], v[36:37]'); two('v_pk_mul_f32 {mR}, {a}, v[34:35]')
        one('v_fract_f32 {thR}, {thR}')
        one('v_exp_f32 {mL}, {mL}'); one('v_cos_f32 {cL}, {thL}'); one('v_sin_f32 {sL}, {thL}')
        one('v_cos_f32 {cR}, {thR}')
        two('v_pk_mul_f32 {cL}, {mL}, {cL}'); two('v_pk_mul_f32 {sL}, {mL}, {sL}')
        one('v_sin_f32 {sR}, {thR}')
        two('v_pk_mul_f32 {p}, {cL}, {wr}'); two('v_pk_mul_f32 {q}, {cL}, {wi}')
        one('v_exp_f32 {mR}, {mR}')
        two('v_pk_mul_f32 {x}, {cr}, {cR}'); two('v_pk_mul_f32 {y}, {cr}, {sR}')
        two('v_pk_fma_f32 {p}, {sL}, {wi}, {p}' + NEG); two('v_pk_fma_f32 {q}, {sL}, {wr}, {q}')
        two('v_pk_fma_f32 {x}, {ci}, {sR}, {x}' + NEG); two('v_pk_fma_f32 {y}, {ci}, {cR}, {y}')
        cvt(LB[0], 8, 10)
        two('v_pk_mul_f32 {x}, {mR}, {x}'); two('v_pk_mul_f32 {y}, {mR}, {y}')
        cvt(LB[1], 16, 18)
        two('v_pk_mul_f32 {cR}, {x}, {zr}'); two('v_pk_mul_f32 {sR}, {x}, {zi}')
        cvt(XA[0], 0, 2, '-')
        two('v_pk_fma_f32 {cR}, {y}, {zi}, {cR}' + NEG); two('v_pk_fma_f32 {sR}, {y}, {zr}, {sR}')
        for bb in range(2): A(f'v_mfma_f32_16x16x32_f16 {vr(ACC[bb],4)}, {vr(XA[0],4)}, {vr(LB[bb],4)}, {vr(ACC[bb],4)}')
        cvt(XA[1], 12, 14, '-')
        if buf == 1: A('s_add_u32 s51, s51, 1\ns_cmp_lt_u32 s51, 2')
        for bb in range(2): A(f'v_mfma_f32_16x16x32_f16 {vr(ACC[2+bb],4)}, {vr(XA[1],4)}, {vr(LB[bb],4)}, {vr(ACC[2+bb],4)}')
    A('s_cbranch_scc1 Lkgen')
    A.stamp('k1')
    if o['ssm'] == 'Kend': ssm_dma(38)
    A(f'''v_and_b32 v{t3}, 0x7f, v0
v_lshlrev_b32 v{t3}, 2, v{t3}
s_mul_i32 s94, s42, {2*KLS}
s_add_u32 s94, s94, {L_KL + 64}
v_add_u32 v{t4}, s94, v{t3}
v_add_u32 v{t5}, {KLC - 4}, v{t4}
v_lshl_add_u32 v{t3}, v{t3}, 1, s45
s_lshl_b32 s95, s3, 11
s_add_u32 s95, s95, {L_RED}
v_add_u32 v{t1}, s95, v{t0}
s_xor_b32 s95, s3, 1
s_lshl_b32 s95, s95, 11
s_add_u32 s95, s95, {L_RED}
v_add_u32 v{t2}, s95, v{t0}
s_waitcnt lgkmcnt(0)''')
    for i in range(8): A(f'v_cndmask_b32 v{64+i}, v{148+i}, v{156+i}, s[92:93]')
    for i in range(8): A(f'v_mul_f32 v{64+i}, v{FSC}, v{64+i}')
    A(f'ds_write_b128 v{t1}, v[64:67]\nds_write_b128 v{t1}, v[68:71] offset:1024')
    A(f'ds_write_b32 v{VSW}, v{ONE} offset:{F_K}')
    for i in range(8): A(f'v_cndmask_b32 v{72+i}, v{156+i}, v{148+i}, s[92:93]')
    sync(F_K, 2, None, VSR, ONE, 30)
    A(f'ds_read_b128 v[64:67], v{t2}\nds_read_b128 v[68:71], v{t2} offset:1024')
    for i in range(8):
        if i % 4 == 0: A(f's_waitcnt lgkmcnt({1 if i == 0 else 4})')
        A(f'v_fma_f32 v{72+i}, v{72+i}, v{FSC}, v{64+i}')
        A(f'ds_write_b32 v{CA+i}, v{72+i}')
    sync(F_K + 16, 2, VSW, VSR, ONE, 30)
    A.stamp('kred', True)
    RD = 64
    A(f'ds_read_b64 v[64:65], v{t3}')
    srcs = {1: (GI, 0), 2: (GI + 2, 0), 3: (GI + 2, 256), 4: (GI + 4, 0), 5: (GI + 4, 128), 6: (GI + 4, 256), 7: (GI + 4, 384)}
    for m in range(1, 8):
        g, off = srcs[m]
        A(f'ds_read_b32 v{RD+2*m}, v{g} offset:{off}\nds_read_b32 v{RD+2*m+1}, v{g+1} offset:{off}')
    for m in range(8):
        if m in (0, 4): A(f's_waitcnt lgkmcnt({8 if m == 0 else 0})')
        A(f'v_cvt_pk_bf16_f32 v{80+m}, v{RD+2*m}, v{RD+2*m+1}')
        if m == 3: A('s_waitcnt lgkmcnt(0)')
    for m in range(8):
        A(f'ds_write_b32 v{t4}, v{80+m} offset:{512*m}\nds_write_b32 v{t5}, v{80+m} offset:{512*m}')
        if m == 5: A('s_waitcnt lgkmcnt(4)')
    if o['ssm'] != 'T': V.wait('ssmk')
    sync(F_K + 32, 2, VSW, VSR, ONE, 30)
    if o['ssm'] == 'T': sync(F_S, 2, None, VSR, ONE, 30)
    A.stamp('kdone', True)
    A(f'''s_mul_i32 s94, s3, {KLS}
s_add_u32 s94, s94, {L_KL}
v_lshl_add_u32 v4, v{KG}, 2, v{IDX}
v_lshlrev_b32 v4, 2, v4
v_and_b32 v{t4}, 1, v{IDX}
v_mov_b32 v{t5}, {KLC}
v_cmp_eq_u32 vcc, 1, v{t4}
v_cndmask_b32 v{t5}, v{t5}, 4, vcc
v_add3_u32 v4, v4, v{t5}, s94          ; vK
v_mul_u32_u24 v5, {UXC}, v{t4}
v_lshrrev_b32 v{t4}, 1, v{IDX}
v_lshlrev_b32 v{t4}, 6, v{t4}
v_sub_u32 v5, v5, v{t4}
v_lshl_add_u32 v5, v{KG}, 4, v5
s_mul_i32 s94, s3, {UXS}
s_add_u32 s94, s94, {L_UX + 448}
v_add_u32 v5, s94, v5                  ; vU
s_lshl_b32 s94, s3, 12
s_add_u32 s94, s94, {L_Y}
v_lshlrev_b32 v6, 2, v{IDX}
v_lshl_add_u32 v6, v{KG}, 7, v6
v_add_u32 v6, s94, v6                  ; vY
v_mov_b32 v7, v{VSW}
v_mov_b32 v1, 1
v_add_u32 v2, {F_U}, v{VSW}''')
    if o['prio']: A(f"s_setprio {o['prio']}")
    o['UFS'] = 16
    mfma_phase(A, 4, 5, 6, 7, 1, 2, o)
    A.stamp_flush(0, 3)
    A.label('Lend')
    A('s_endpgm')
    HDR = open('gated_mix__ssm_conv_s4d__ssm_conv_h3__prompt.s.ref').read().split('; Override launch')[0]
    s = HDR + f'; @launch grid=(256,1,1) block=(512,1,1) lds={L_END}\n.amdgcn_target "amdgcn-amd-amdhsa--gfx950"\n.text\n' + A.text()
    s += '.section .rodata,"a"\n' + kdesc(KN, 256)
    if o.get('align', 4): s = align(s, nopmin=o.get('align', 4))[0]
    if o.get('ont', True):
        import re
        s = re.sub(r'(buffer_store_dword v\d+, v\d+, s\[56:59\], s60 offen[a-z:0-9 ]*)$', r'\1 nt', s, flags=re.M)
    open(path, 'w').write(s)
    return L_END, A.nops

SETS = dict(a=['issued', 'par', 'kstart', 'k1', 'tile', 'bar1'], b=['tst', 'drain', 'polled', 'staged', 'kred', 'kdone'],
            c=['kpre', 'ug0', 'ug1', 'ug2', 'ug3', 'gok'], d=['ug0', 'pass0', 'pass1', 'pass2', 'polled', 'staged'])
if __name__ == '__main__':
    out = sys.argv[1]
    print(gen(out))
    if len(sys.argv) > 2:
        for k, v in SETS.items(): gen(out.replace('.s', f'_{k}.s'), v)
        gen(out.replace('.s', '_late.s'), None, dict(late=True))
        gen(out.replace('.s', '_lb.s'), None, dict(early_bar=False))
        gen(out.replace('.s', '_lg.s'), None, dict(lateg=True))
        gen(out.replace('.s', '_lg_a.s'), SETS['a'], dict(lateg=True))
        gen(out.replace('.s', '_p32.s'), None, dict(pfwg=32))
        gen(out.replace('.s', '_lgp32.s'), None, dict(pfwg=32, lateg=True))
        gen(out.replace('.s', '_lp.s'), None, dict(lateprio=True))
        gen(out.replace('.s', '_lplg.s'), None, dict(lateprio=True, lateg=True))
        gen(out.replace('.s', '_pT.s'), None, dict(prefetch='T'))
        gen(out.replace('.s', '_pT_a.s'), SETS['a'], dict(prefetch='T'))
        gen(out.replace('.s', '_pTlg.s'), None, dict(prefetch='T', lateg=True))
        gen(out.replace('.s', '_dip.s'), None, dict(dip=True))
        for nm in ('FIX3000', 'FIX1500', 'END'):
            gen(out.replace('.s', f'_e{nm}.s'), [nm], dict(enc=True, lateg=True))
        gen(out.replace('.s', f'_eFIXp.s'), ['FIX3000'], dict(enc=True, lateg=True, ont=False))
        gen(out.replace('.s', f'_lgp.s'), None, dict(lateg=True, ont=False))
```
